```python
import torch

def _softmax(x, axis=-1):
    return torch.softmax(x, dim=axis)
def _gelu(x):
    return torch.nn.functional.gelu(x, approximate="tanh")
def _silu(x):
    return torch.nn.functional.silu(x)
def _sigmoid(x):
    return torch.sigmoid(x)
def _layernorm(x, axis=-1, eps=1e-5):
    m = x.mean(dim=axis, keepdim=True)
    v = x.var(dim=axis, keepdim=True, unbiased=False)
    return (x - m) / torch.sqrt(v + eps)
def _scatter_add(tgt, idx, src, axis=0):
    return tgt.clone().index_add_(axis, idx, src)
def _segment_sum(src, seg, n):
    out = torch.zeros((n,) + src.shape[1:], dtype=src.dtype)
    return out.index_add_(0, seg, src)
def _pad(x, pw):
    flat = tuple(v for pair in reversed(pw) for v in pair)
    return torch.nn.functional.pad(x, flat)

kernel_name = 'interleave_layers__spectral_gfnet__dense_activation_gelu__prompt'

def setup_inputs():

    _w = (lambda a: (lambda t: t.to(torch.bfloat16) if t.is_floating_point() else t)(torch.as_tensor(a)))
    def _A_setup():
        B, S, D = 1, 2048, 512
        Df = D // 2 + 1
        return {
            "x": _w((lambda *s: torch.randn(*s, dtype=torch.bfloat16) * 0.05)(B, S, D)),
            "w_r": _w((lambda *s: torch.randn(*s, dtype=torch.bfloat16) * 0.4)(S, Df) * 0.02),
            "w_i": _w((lambda *s: torch.randn(*s, dtype=torch.bfloat16) * 0.4)(S, Df) * 0.02),
        }
    _A_in = _A_setup()

    def _B_setup():
        B, S, D, F = 1, 2048, 512, 1792
        return {
            "x": _w((lambda *s: torch.randn(*s, dtype=torch.bfloat16) * 0.05)(B, S, D)),
            "w1": _w((lambda *s: torch.randn(*s, dtype=torch.bfloat16) * 0.4)(D, F) * (D ** -0.5)),
            "b1": _w((lambda *s: torch.randn(*s, dtype=torch.bfloat16) * 12.8)(F) * 0.01),
            "w2": _w((lambda *s: torch.randn(*s, dtype=torch.bfloat16) * 0.1)(F, D) * (F ** -0.5)),
            "b2": _w((lambda *s: torch.randn(*s, dtype=torch.bfloat16) * 0.8)(D) * 0.01),
        }
    _B_in = _B_setup()

    return {
        "A_x": _A_in["x"],
        "A_w_r": _A_in["w_r"],
        "A_w_i": _A_in["w_i"],
        "B_x": _B_in["x"],
        "B_w1": _B_in["w1"],
        "B_b1": _B_in["b1"],
        "B_w2": _B_in["w2"],
        "B_b2": _B_in["b2"],
    }

def reference(A_x, A_w_r, A_w_i, B_x, B_w1, B_b1, B_w2, B_b2):
    def _A_ref(x, w_r, w_i):
        B, S, D = x.shape
        X = (lambda x, axes=(-2,-1): torch.fft.rfft2(x.float(), dim=axes))(x, axes=(-2, -1))
        W = w_r + 1j * w_i
        X = X * W
        y = (lambda x, s, axes=(-2,-1): torch.fft.irfft2(x, s=s, dim=axes).to(torch.bfloat16))(X, (S, D), axes=(-2, -1))
        return y

    def _B_ref(x, w1, b1, w2, b2):
        h = torch.einsum("bsd,df->bsf", x, w1) + b1
        h = _gelu(h)
        return torch.einsum("bsf,fd->bsd", h, w2) + b2

    x = A_x
    x = x + _A_ref(_layernorm(x, axis=-1), A_w_r, A_w_i)
    x = x + _B_ref(_layernorm(x, axis=-1), B_w1, B_b1, B_w2, B_b2)
    x = x + _A_ref(_layernorm(x, axis=-1), A_w_r, A_w_i)
    x = x + _B_ref(_layernorm(x, axis=-1), B_w1, B_b1, B_w2, B_b2)
    return x
```

```python
import math, struct

NAME = "interleave_layers__spectral_gfnet__dense_activation_gelu__prompt"
S = 2048
D = 512
F = 1792
KF = 257

T1_OFF = 0x0000000
WT_OFF = 0x0420000
X1_OFF = 0x0640000
XN_OFF = 0x0840000
H_OFF = 0x0A40000
X2_OFF = 0x1140000
X3_OFF = 0x1340000
WS_BYTES = 0x10000000
T2_OFF = 0x2000000
T2_PITCH = 16640
CNT_OFF = 0x1E40000
T1_PITCH = 16384 + 256

KA_X, KA_WR, KA_WI, KA_BX, KA_W1, KA_B1, KA_W2, KA_B2, KA_OUT, KA_DBG, KA_WS = [8 * i for i in range(11)]


def f2u(f):
    return struct.unpack("<I", struct.pack("<f", f))[0]


class Asm:
    def __init__(self):
        self.lines = []
        self.uid = 0

    def __call__(self, s):
        for l in s.strip("\n").split("\n"):
            self.lines.append("    " + l.strip())

    def label(self, l):
        self.lines.append(l + ":")

    def cmt(self, s):
        self.lines.append("    ; " + s)

    def newlabel(self, base="L"):
        self.uid += 1
        return f"{base}_{self.uid}"

    def text(self):
        return "\n".join(self.lines) + "\n"


def vp(r):
    return f"v[{r}:{r+1}]"


def vq(r):
    return f"v[{r}:{r+3}]"


def sp(r):
    return f"s[{r}:{r+1}]"


def sq(r):
    return f"s[{r}:{r+3}]"


def cadd(a, d, x, y):
    a(f"v_pk_add_f32 {vp(d)}, {vp(x)}, {vp(y)}")


def csub(a, d, x, y):
    a(f"v_pk_add_f32 {vp(d)}, {vp(x)}, {vp(y)} neg_lo:[0,1] neg_hi:[0,1]")


def cadd_mi(a, d, x, y, sgn):
    if sgn > 0:
        a(f"v_pk_add_f32 {vp(d)}, {vp(x)}, {vp(y)} op_sel:[0,1] op_sel_hi:[1,0] neg_hi:[0,1]")
    else:
        a(f"v_pk_add_f32 {vp(d)}, {vp(x)}, {vp(y)} op_sel:[0,1] op_sel_hi:[1,0] neg_lo:[0,1]")


def csub_mi(a, d, x, y, sgn):
    cadd_mi(a, d, x, y, -sgn)


def cfma_s(a, d, x, sc, y, neg=False):
    m = " neg_lo:[1,0,0] neg_hi:[1,0,0]" if neg else ""
    a(f"v_pk_fma_f32 {vp(d)}, {vp(x)}, {sp(sc)}, {vp(y)}{m}")


def cfma_mi(a, d, x, sc, y, sgn):
    if sgn > 0:
        a(f"v_pk_fma_f32 {vp(d)}, {vp(x)}, {sp(sc)}, {vp(y)} op_sel:[1,0,0] op_sel_hi:[0,1,1] neg_hi:[1,0,0]")
    else:
        a(f"v_pk_fma_f32 {vp(d)}, {vp(x)}, {sp(sc)}, {vp(y)} op_sel:[1,0,0] op_sel_hi:[0,1,1] neg_lo:[1,0,0]")


def cmul_tw(a, d, x, w, t, sgn):
    a(f"v_pk_mul_f32 {vp(t)}, {vp(x)}, {vp(w)} op_sel_hi:[1,0]")
    if sgn > 0:
        a(f"v_pk_fma_f32 {vp(d)}, {vp(x)}, {vp(w)}, {vp(t)} op_sel:[1,1,0] op_sel_hi:[0,1,1] neg_lo:[1,0,0]")
    else:
        a(f"v_pk_fma_f32 {vp(d)}, {vp(x)}, {vp(w)}, {vp(t)} op_sel:[1,1,0] op_sel_hi:[0,1,1] neg_hi:[1,0,0]")


def radix8(a, x, t, sc, sgn):
    A = t[0:4]
    B = t[4:8]
    for j in range(4):
        cadd(a, A[j], x[j], x[j + 4])
        csub(a, B[j], x[j], x[j + 4])
    s0, s1, s2, s3 = x[1], x[3], x[5], x[7]
    cadd(a, s0, A[0], A[2])
    csub(a, s1, A[0], A[2])
    cadd(a, s2, A[1], A[3])
    csub(a, s3, A[1], A[3])
    cadd(a, x[0], s0, s2)
    csub(a, x[4], s0, s2)
    cadd_mi(a, x[2], s1, s3, sgn)
    csub_mi(a, x[6], s1, s3, sgn)
    t1, t3, u, v = A[0], A[1], A[2], A[3]
    cadd_mi(a, t1, B[1], B[1], sgn)
    if sgn > 0:
        a(f"v_pk_add_f32 {vp(t3)}, {vp(B[3])}, {vp(B[3])} op_sel:[0,1] op_sel_hi:[1,0] neg_lo:[1,0] neg_hi:[1,1]")
    else:
        a(f"v_pk_add_f32 {vp(t3)}, {vp(B[3])}, {vp(B[3])} op_sel:[0,1] op_sel_hi:[1,0] neg_lo:[1,1] neg_hi:[1,0]")
    cadd(a, u, t1, t3)
    csub(a, v, t1, t3)
    cadd_mi(a, B[1], B[0], B[2], sgn)
    csub_mi(a, B[3], B[0], B[2], sgn)
    cfma_s(a, x[1], u, sc, B[1])
    cfma_s(a, x[5], u, sc, B[1], neg=True)
    cfma_mi(a, x[3], v, sc, B[3], sgn)
    cfma_mi(a, x[7], v, sc, B[3], -sgn)


def radix4(a, x, t, sgn):
    cadd(a, t[0], x[0], x[2])
    csub(a, t[1], x[0], x[2])
    cadd(a, t[2], x[1], x[3])
    csub(a, t[3], x[1], x[3])
    cadd(a, x[0], t[0], t[2])
    csub(a, x[2], t[0], t[2])
    cadd_mi(a, x[1], t[1], t[3], sgn)
    csub_mi(a, x[3], t[1], t[3], sgn)


def tw_table(N, rows, mult):
    out = []
    for q in range(4):
        for r in range(rows):
            for e in range(2):
                k = 2 * q + e
                p = (r * mult * k) % N
                ang = -2.0 * math.pi * p / N
                out.append(f2u(math.cos(ang)))
                out.append(f2u(math.sin(ang)))
    return out


def emit_table(a, label, words):
    a.lines.append(".p2align 6")
    a.lines.append(f".type {label},@object")
    a.label(label)
    for i in range(0, len(words), 8):
        a.lines.append("    .long " + ", ".join(f"0x{w:08x}" for w in words[i:i + 8]))


def wave_sum2(a, va, vb, sa, sb):
    steps = ["row_shr:1 row_mask:0xf bank_mask:0xf bound_ctrl:0",
             "row_shr:2 row_mask:0xf bank_mask:0xf bound_ctrl:0",
             "row_shr:4 row_mask:0xf bank_mask:0xf bound_ctrl:0",
             "row_shr:8 row_mask:0xf bank_mask:0xf bound_ctrl:0",
             "row_bcast:15 row_mask:0xa bank_mask:0xf",
             "row_bcast:31 row_mask:0xc bank_mask:0xf"]
    a("s_nop 1")
    for st in steps:
        a(f"v_add_f32_dpp v{va}, v{va}, v{va} {st}")
        a(f"v_add_f32_dpp v{vb}, v{vb}, v{vb} {st}")
        a("s_nop 0")
    a(f"v_readlane_b32 s{sa}, v{va}, 63")
    a(f"v_readlane_b32 s{sb}, v{vb}, 63")
    a("s_nop 1")


def round_pair(a, p, tmp):
    a(f"v_cvt_pk_bf16_f32 v{tmp}, v{p}, v{p+1}")
    a(f"v_lshlrev_b32 v{p}, 16, v{tmp}")
    a(f"v_and_b32 v{p+1}, 0xffff0000, v{tmp}")


def wave_sum4(a, v4, s4):
    steps = ["row_shr:1 row_mask:0xf bank_mask:0xf bound_ctrl:0",
             "row_shr:2 row_mask:0xf bank_mask:0xf bound_ctrl:0",
             "row_shr:4 row_mask:0xf bank_mask:0xf bound_ctrl:0",
             "row_shr:8 row_mask:0xf bank_mask:0xf bound_ctrl:0",
             "row_bcast:15 row_mask:0xa bank_mask:0xf",
             "row_bcast:31 row_mask:0xc bank_mask:0xf"]
    a("s_nop 1")
    for st in steps:
        for v in v4:
            a(f"v_add_f32_dpp v{v}, v{v}, v{v} {st}")
    a("s_nop 0")
    for v, sr in zip(v4, s4):
        a(f"v_readlane_b32 s{sr}, v{v}, 63")
    a("s_nop 1")


def layernorm_pairs(a, z, tmp, st, s_c512, s_stat):
    s1, s2 = st[0], st[2]
    sp_ = s_stat + 4
    a(f"v_readfirstlane_b32 s{sp_}, v{z[0]}")
    a(f"v_readfirstlane_b32 s{sp_+1}, v{z[0]+1}")
    d = [tmp[0], tmp[2]]
    a("s_nop 0")
    for j in range(8):
        dd = d[j & 1]
        a(f"v_pk_add_f32 {vp(dd)}, {vp(z[j])}, {sp(sp_)} neg_lo:[0,1] neg_hi:[0,1]")
        if j == 0:
            a(f"v_pk_mul_f32 {vp(s2)}, {vp(dd)}, {vp(dd)}")
        else:
            a(f"v_pk_fma_f32 {vp(s2)}, {vp(dd)}, {vp(dd)}, {vp(s2)}")
        if j == 1:
            a(f"v_pk_add_f32 {vp(s1)}, {vp(d[0])}, {vp(d[1])}")
        elif j > 1:
            a(f"v_pk_add_f32 {vp(s1)}, {vp(s1)}, {vp(dd)}")
    a(f"v_pk_mul_f32 {vp(s1)}, {vp(s1)}, {sp(s_c512)}")
    a(f"v_pk_mul_f32 {vp(s2)}, {vp(s2)}, {sp(s_c512)}")
    wave_sum4(a, [s1, s1 + 1, s2, s2 + 1], [s_stat, s_stat + 1, s_stat + 2, s_stat + 3])
    a(f"v_mov_b32 v{s1}, s{s_stat}")
    a(f"v_mov_b32 v{s1+1}, s{s_stat+1}")
    a(f"v_mov_b32 v{s2}, s{s_stat+2}")
    a(f"v_mov_b32 v{s2+1}, s{s_stat+3}")
    a(f"v_pk_fma_f32 {vp(s2)}, {vp(s1)}, {vp(s1)}, {vp(s2)} neg_lo:[1,0,0] neg_hi:[1,0,0]")
    a(f"v_max_f32 v{s2}, 0, v{s2}")
    a(f"v_max_f32 v{s2+1}, 0, v{s2+1}")
    a(f"v_pk_add_f32 {vp(s1)}, {vp(s1)}, {sp(sp_)}")
    round_pair(a, s1, tmp[4])
    round_pair(a, s2, tmp[5])
    a(f"v_add_f32 v{s2}, 0x3727c5ac, v{s2}")
    a(f"v_add_f32 v{s2+1}, 0x3727c5ac, v{s2+1}")
    round_pair(a, s2, tmp[5])
    a(f"v_sqrt_f32 v{s2}, v{s2}")
    a(f"v_sqrt_f32 v{s2+1}, v{s2+1}")
    for j in range(8):
        a(f"v_pk_add_f32 {vp(z[j])}, {vp(z[j])}, {vp(s1)} neg_lo:[0,1] neg_hi:[0,1]")
    round_pair(a, s2, tmp[8])
    a(f"v_rcp_f32 v{s2}, v{s2}")
    a(f"v_rcp_f32 v{s2+1}, v{s2+1}")
    for j in range(8):
        a(f"v_cvt_pk_bf16_f32 v{tmp[j]}, v{z[j]}, v{z[j]+1}")
    for j in range(8):
        a(f"v_lshlrev_b32 v{z[j]}, 16, v{tmp[j]}")
        a(f"v_and_b32 v{z[j]+1}, 0xffff0000, v{tmp[j]}")
    for j in range(8):
        a(f"v_pk_mul_f32 {vp(z[j])}, {vp(z[j])}, {vp(s2)}")
    for j in range(8):
        a(f"v_cvt_pk_bf16_f32 v{tmp[j]}, v{z[j]}, v{z[j]+1}")
    for j in range(8):
        a(f"v_lshlrev_b32 v{z[j]}, 16, v{tmp[j]}")
        a(f"v_and_b32 v{z[j]+1}, 0xffff0000, v{tmp[j]}")


def kernel_header(a, name, comment=""):
    a.lines.append(f".globl {name}")
    a.lines.append(".p2align 8")
    a.lines.append(f".type {name},@function")
    a.label(name)
    if comment:
        a.cmt(comment)


def kernel_desc(name, vgpr, sgpr=102, agpr=0):
    acc = (vgpr + 3) // 4 * 4
    nfv = acc + agpr if agpr else vgpr
    return f""".p2align 6
.amdhsa_kernel {name}
  .amdhsa_next_free_vgpr {nfv}
  .amdhsa_next_free_sgpr {sgpr}
  .amdhsa_accum_offset {acc}
  .amdhsa_group_segment_fixed_size 0
  .amdhsa_kernarg_size 88
  .amdhsa_user_sgpr_count 2
  .amdhsa_user_sgpr_kernarg_segment_ptr 1
  .amdhsa_system_sgpr_workgroup_id_x 1
.end_amdhsa_kernel
"""


def make_srd(a, srd, base, nbytes):
    a(f"s_mov_b32 s{srd}, s{base}")
    a(f"s_and_b32 s{srd+1}, s{base+1}, 0xffff")
    a(f"s_mov_b32 s{srd+2}, 0x{nbytes:x}")
    a(f"s_mov_b32 s{srd+3}, 0x00020000")


def make_srd_off(a, srd, base, off, nbytes):
    a(f"s_add_u32 s{srd}, s{base}, 0x{off:x}")
    a(f"s_addc_u32 s{srd+1}, s{base+1}, 0")
    a(f"s_and_b32 s{srd+1}, s{srd+1}, 0xffff")
    a(f"s_mov_b32 s{srd+2}, 0x{nbytes:x}")
    a(f"s_mov_b32 s{srd+3}, 0x00020000")


def make_tab_srd(a, srd, label, nbytes):
    l = a.newlabel("Lpc")
    a(f"s_getpc_b64 {sp(srd)}")
    a.label(l)
    a(f"s_add_u32 s{srd}, s{srd}, {label}-{l}")
    a(f"s_addc_u32 s{srd+1}, s{srd+1}, 0")
    a(f"s_and_b32 s{srd+1}, s{srd+1}, 0xffff")
    a(f"s_mov_b32 s{srd+2}, 0x{nbytes:x}")
    a(f"s_mov_b32 s{srd+3}, 0x00020000")


STAMP_OFF = 0x8000000
INSTR = {"on": False}


def stamp(a, i):
    if INSTR["on"]:
        a(f"s_memtime s[{64+2*i}:{65+2*i}]")


def stamp_real(a, i):
    if INSTR["on"]:
        a(f"s_memrealtime s[{64+2*i}:{65+2*i}]")


def stamp_dump(a, n, ws_lo, kid, vtmp=2):
    if not INSTR["on"]:
        return
    L = a.newlabel("Lst")
    a("s_waitcnt lgkmcnt(0)")
    a("s_mov_b64 exec, -1")
    a(f"v_cmp_eq_u32 vcc, 0, v0")
    a("s_and_saveexec_b64 s[94:95], vcc")
    a(f"s_cbranch_execz {L}")
    make_srd_off(a, 96, ws_lo, STAMP_OFF + kid * 65536, 65536)
    a("s_lshl_b32 s93, s2, 6")
    for i in range(n):
        a(f"v_mov_b32 v{vtmp}, s{64+2*i}")
        a(f"v_mov_b32 v{vtmp+1}, {4*i}")
        a(f"buffer_store_dword v{vtmp}, v{vtmp+1}, s[96:99], s93 offen")
        a("s_waitcnt vmcnt(0)")
    a.label(L)

OPT = {}


def tw_powers(a, tw, t):
    w = lambda k: tw + 2 * k
    cmul_tw(a, w(2), w(1), w(1), t, +1)
    cmul_tw(a, w(3), w(2), w(1), t + 2, +1)
    cmul_tw(a, w(4), w(2), w(2), t, +1)
    cmul_tw(a, w(5), w(4), w(1), t + 2, +1)
    cmul_tw(a, w(6), w(3), w(3), t, +1)
    cmul_tw(a, w(7), w(4), w(3), t + 2, +1)


def tw_table1(N, rows):
    out = []
    for r in range(rows):
        ang = -2.0 * math.pi * r / N
        out.append(f2u(math.cos(ang)))
        out.append(f2u(math.sin(ang)))
    return out
```

```python
from common import *

TAB512A = "tab_tw512a"
TAB64 = "tab_tw64"
TAB2048A = "tab_tw2048a"
TAB256 = "tab_tw256"
TAB32 = "tab_tw32"


def emit_tables(a):
    emit_table(a, TAB2048A, tw_table1(2048, 256))


WAVE_LDS = 4768


def fft512_core(a, z, t, tw1, tw2, s_c, sgn, vA_w, vA_r, vB_w, vB_r):
    radix8(a, z, t, s_c, sgn)
    for k in range(1, 8):
        cmul_tw(a, z[k], z[k], tw1 + 2 * k, t[k & 7], sgn)
    for k in range(8):
        a(f"ds_write_b64 v{vA_w}, {vp(z[k])} offset:{72*8*k}")
    a("s_waitcnt lgkmcnt(0)")
    for b in range(8):
        a(f"ds_read_b64 {vp(z[b])}, v{vA_r} offset:{64*b}")
    a("s_waitcnt lgkmcnt(0)")
    radix8(a, z, t, s_c, sgn)
    for k in range(1, 8):
        cmul_tw(a, z[k], z[k], tw2 + 2 * k, t[k & 7], sgn)
    for k in range(8):
        a(f"ds_write_b64 v{vB_w}, {vp(z[k])} offset:{64*k}")
    a("s_waitcnt lgkmcnt(0)")
    for c in range(8):
        a(f"ds_read_b64 {vp(z[c])}, v{vB_r} offset:{66*8*c}")
    a("s_waitcnt lgkmcnt(0)")
    radix8(a, z, t, s_c, sgn)


def fft512_addr(a, vlane, sbase, vA_w, vA_r, vB_w, tmp):
    a(f"v_lshlrev_b32 v{vA_w}, 3, v{vlane}")
    a(f"v_add_u32 v{vA_w}, s{sbase}, v{vA_w}")
    a(f"v_lshrrev_b32 v{tmp}, 3, v{vlane}")
    a(f"v_mul_u32_u24 v{vA_r}, 72, v{tmp}")
    a(f"v_and_b32 v{tmp+1}, 7, v{vlane}")
    a(f"v_add_u32 v{vA_r}, v{vA_r}, v{tmp+1}")
    a(f"v_lshlrev_b32 v{vA_r}, 3, v{vA_r}")
    a(f"v_add_u32 v{vA_r}, s{sbase}, v{vA_r}")
    a(f"v_mul_u32_u24 v{vB_w}, 66, v{tmp+1}")
    a(f"v_add_u32 v{vB_w}, v{vB_w}, v{tmp}")
    a(f"v_lshlrev_b32 v{vB_w}, 3, v{vB_w}")
    a(f"v_add_u32 v{vB_w}, s{sbase}, v{vB_w}")


WT_ROWS = 32
WT_WGS = S // WT_ROWS


def gen_k1(a, name, src_ka, src_off, with_wt):
    kernel_header(a, name, "LN + row rFFT")
    Lend = a.newlabel("Lend")
    Lwt = a.newlabel("Lwt")
    nwg = 256 + (WT_WGS if with_wt else 0)
    a(f"s_cmp_ge_u32 s2, {nwg}")
    a(f"s_cbranch_scc1 {Lend}")
    stamp(a, 0)
    stamp_real(a, 6)
    a(f"s_load_dwordx2 s[4:5], s[0:1], {src_ka}")
    a(f"s_load_dwordx2 s[6:7], s[0:1], {KA_WS}")
    if with_wt:
        a(f"s_load_dwordx4 s[24:27], s[0:1], {KA_WR}")
    a("v_and_b32 v1, 63, v0")
    a("v_lshrrev_b32 v2, 6, v0")
    a("s_nop 0")
    a("v_readfirstlane_b32 s3, v2")
    make_tab_srd(a, 16, TAB2048A, 2048)
    a(f"s_mov_b32 s20, 0x{f2u(math.sqrt(0.5)):08x}")
    a("s_mov_b32 s21, s20")
    a(f"s_mov_b32 s22, 0x{f2u(1.0/512):08x}")
    a("s_mov_b32 s23, s22")
    a("s_waitcnt lgkmcnt(0)")
    if src_off:
        make_srd_off(a, 8, 4, src_off, S * D * 2)
    else:
        make_srd(a, 8, 4, S * D * 2)
    make_srd(a, 12, 6, WS_BYTES)
    if with_wt:
        a("s_cmp_ge_u32 s2, 256")
        a(f"s_cbranch_scc1 {Lwt}")
    Z = [10 + 2 * j for j in range(8)]
    T = [26 + 2 * j for j in range(8)]
    RA, RB = 42, 46
    TW1, TW2 = 50, 66
    ST = [82, 83, 84, 85]
    TMP = list(range(86, 96))
    vA_w, vA_r, vB_w, vX = 96, 97, 98, 99
    vI_w0, vI_r = 100, 101
    a("s_lshl_b32 s28, s2, 13")
    a("s_lshl_b32 s29, s3, 11")
    a("s_add_u32 s28, s28, s29")
    a("v_lshlrev_b32 v3, 4, v1")
    a("v_add_u32 v3, s28, v3")
    a(f"buffer_load_dwordx4 {vq(RA)}, v3, s[8:11], 0 offen")
    a(f"buffer_load_dwordx4 {vq(RB)}, v3, s[8:11], 0 offen offset:1024")
    a("v_lshlrev_b32 v4, 5, v1")
    a(f"buffer_load_dwordx2 {vp(TW1+2)}, v4, s[16:19], 0 offen")
    a("v_and_b32 v5, 7, v1")
    a("v_lshlrev_b32 v5, 8, v5")
    a(f"buffer_load_dwordx2 {vp(TW2+2)}, v5, s[16:19], 0 offen")
    a(f"s_mul_i32 s30, s3, {WAVE_LDS}")
    fft512_addr(a, 1, 30, vA_w, vA_r, vB_w, TMP[0])
    a(f"v_lshrrev_b32 v{TMP[0]}, 1, v1")
    a(f"v_lshlrev_b32 v{TMP[1]}, 6, v1")
    a(f"v_add_u32 v{TMP[1]}, s30, v{TMP[1]}")
    for c in range(4):
        a(f"v_add_u32 v{TMP[2]}, {c}, v{TMP[0]}")
        a(f"v_and_b32 v{TMP[2]}, 3, v{TMP[2]}")
        a(f"v_lshlrev_b32 v{TMP[2]}, 4, v{TMP[2]}")
        a(f"v_add_u32 v{102+c}, v{TMP[1]}, v{TMP[2]}")
    a(f"v_lshrrev_b32 v{TMP[0]}, 3, v1")
    a(f"v_lshlrev_b32 v{TMP[0]}, 6, v{TMP[0]}")
    a(f"v_bfe_u32 v{TMP[1]}, v1, 1, 2")
    a(f"v_lshrrev_b32 v{TMP[2]}, 4, v1")
    a(f"v_add_u32 v{TMP[1]}, v{TMP[1]}, v{TMP[2]}")
    a(f"v_and_b32 v{TMP[1]}, 3, v{TMP[1]}")
    a(f"v_lshlrev_b32 v{TMP[1]}, 4, v{TMP[1]}")
    a(f"v_and_b32 v{TMP[2]}, 1, v1")
    a(f"v_lshlrev_b32 v{TMP[2]}, 3, v{TMP[2]}")
    a(f"v_add3_u32 v{vI_r}, v{TMP[0]}, v{TMP[1]}, v{TMP[2]}")
    a(f"v_add_u32 v{vI_r}, s30, v{vI_r}")
    stamp(a, 8)
    a("s_waitcnt vmcnt(0)")
    stamp(a, 1)
    tw_powers(a, TW1, T[0])
    tw_powers(a, TW2, T[0])
    for j in range(8):
        if j & 1:
            a(f"v_and_b32 v{Z[j]}, 0xffff0000, v{RA + (j >> 1)}")
            a(f"v_and_b32 v{Z[j]+1}, 0xffff0000, v{RB + (j >> 1)}")
        else:
            a(f"v_lshlrev_b32 v{Z[j]}, 16, v{RA + (j >> 1)}")
            a(f"v_lshlrev_b32 v{Z[j]+1}, 16, v{RB + (j >> 1)}")
    layernorm_pairs(a, Z, TMP, ST, 22, 44)
    for c in range(4):
        a(f"ds_write_b128 v{102+c}, {vq(Z[2*c])}")
    a("s_waitcnt lgkmcnt(0)")
    for j in range(8):
        a(f"ds_read_b64 {vp(Z[j])}, v{vI_r} offset:{512*j}")
    a("s_waitcnt vmcnt(0) lgkmcnt(0)")
    stamp(a, 2)
    fft512_core(a, Z, T, TW1, TW2, 20, +1, vA_w, vA_r, vB_w, vA_w)
    stamp(a, 3)
    for k in range(8):
        a(f"ds_write_b64 v{vA_w}, {vp(Z[k])} offset:{512*k}")
    a("v_cmp_eq_u32 vcc, 0, v1")
    a("s_and_saveexec_b64 s[34:35], vcc")
    a(f"ds_write_b64 v{vA_w}, {vp(Z[0])} offset:{512*8}")
    a("s_mov_b64 exec, s[34:35]")
    a(f"v_sub_u32 v{vX}, 256, v1")
    a(f"v_lshlrev_b32 v{vX}, 3, v{vX}")
    a(f"v_add_u32 v{vX}, s30, v{vX}")
    a("s_waitcnt lgkmcnt(0)")
    for k in range(5):
        a(f"ds_read_b64 {vp(T[k])}, v{vX} offset:{(256-64*k)*8}")
    STG = 4 * WAVE_LDS
    a("v_and_b32 v3, 3, v1")
    a("v_xor_b32 v3, s3, v3")
    a("v_lshlrev_b32 v3, 4, v3")
    a("v_lshl_add_u32 v3, v1, 6, v3")
    a("s_waitcnt lgkmcnt(0)")
    O = [TW1 + 4 * k for k in range(5)]
    for k in range(5):
        a(f"v_pk_add_f32 {vp(O[k])}, {vp(Z[k])}, {vp(T[k])} neg_hi:[0,1]")
        a(f"v_pk_add_f32 {vp(O[k]+2)}, {vp(Z[k])}, {vp(T[k])} op_sel:[1,1] op_sel_hi:[0,0] neg_hi:[1,0]")
    for k in range(4):
        a(f"ds_write_b128 v3, {vq(O[k])} offset:{STG + 4096*k}")
    a("s_and_saveexec_b64 s[34:35], vcc")
    a(f"ds_write_b128 v3, {vq(O[4])} offset:{STG + 4096*4}")
    a("s_mov_b64 exec, s[34:35]")
    a("v_lshlrev_b32 v4, 4, v0")
    a("v_lshrrev_b32 v5, 2, v0")
    a("v_xor_b32 v6, v5, v0")
    a("v_and_b32 v6, 3, v6")
    a("v_lshlrev_b32 v6, 4, v6")
    a(f"v_mul_u32_u24 v5, {T1_PITCH}, v5")
    a("v_add_u32 v6, v5, v6")
    a("s_lshl_b32 s28, s2, 6")
    a("s_waitcnt lgkmcnt(0)")
    a("s_barrier")
    for k in range(4):
        a(f"ds_read_b128 {vq(Z[2*k])}, v4 offset:{STG + 4096*k}")
    a("v_cmp_gt_u32 vcc, 4, v0")
    a("s_and_saveexec_b64 s[34:35], vcc")
    a(f"ds_read_b128 {vq(T[0])}, v4 offset:{STG + 4096*4}")
    a("s_mov_b64 exec, s[34:35]")
    for k in range(4):
        a(f"s_add_u32 s29, s28, 0x{T1_OFF + k*64*T1_PITCH:x}")
        a(f"s_waitcnt lgkmcnt({4-k})")
        a(f"buffer_store_dwordx4 {vq(Z[2*k])}, v6, s[12:15], s29 offen")
    a("s_waitcnt lgkmcnt(0)")
    a("s_mov_b64 exec, vcc")
    Lsk = a.newlabel("Lsk")
    a(f"s_cbranch_execz {Lsk}")
    a(f"s_add_u32 s29, s28, 0x{T1_OFF + 4*64*T1_PITCH:x}")
    a(f"buffer_store_dwordx4 {vq(T[0])}, v6, s[12:15], s29 offen")
    a.label(Lsk)
    stamp(a, 4)
    if INSTR["on"]:
        a("s_waitcnt vmcnt(0)")
    stamp(a, 5)
    stamp_real(a, 7)
    stamp_dump(a, 12, 6, 0 if with_wt else 5)
    a("s_endpgm")
    if with_wt:
        a.label(Lwt)
        gen_wt(a)
    a.label(Lend)
    a("s_endpgm")
    return 106


def gen_wt(a):
    nb = WT_ROWS * KF * 2
    nch = nb // 16
    assert nb % 16 == 0
    make_srd(a, 36, 24, S * KF * 2)
    make_srd(a, 40, 26, S * KF * 2)
    a("s_sub_u32 s28, s2, 256")
    a(f"s_mul_i32 s29, s28, {nb}")
    a("v_lshlrev_b32 v3, 4, v0")
    nr = (nch + 255) // 256
    LB = ((nb + 4096 + 15) // 16) * 16
    for r in range(nr):
        a(f"buffer_load_dwordx4 {vq(10+8*r)}, v3, s[36:39], s29 offen offset:{0}")
        a(f"buffer_load_dwordx4 {vq(14+8*r)}, v3, s[40:43], s29 offen offset:{0}")
        a(f"s_add_u32 s29, s29, 4096")
    for r in range(nr):
        a(f"s_waitcnt vmcnt({2*(nr-1-r)})")
        a(f"ds_write_b128 v3, {vq(10+8*r)} offset:{4096*r}")
        a(f"ds_write_b128 v3, {vq(14+8*r)} offset:{LB+4096*r}")
    a("s_waitcnt lgkmcnt(0)")
    a("s_barrier")
    a("v_and_b32 v4, 31, v0")
    a("v_lshrrev_b32 v5, 5, v0")
    a(f"v_mul_u32_u24 v6, {KF*2}, v4")
    a("v_lshl_add_u32 v6, v5, 1, v6")
    a("v_lshlrev_b32 v7, 13, v5")
    a("v_lshl_add_u32 v7, v4, 2, v7")
    a(f"s_lshl_b32 s29, s28, {int(math.log2(WT_ROWS*4))}")
    a(f"s_add_u32 s29, s29, 0x{WT_OFF:x}")
    n_i = 33
    G = 11
    for i0 in range(0, n_i, G):
        for i in range(i0, min(i0 + G, n_i)):
            r = 10 + 2 * (i - i0)
            a(f"ds_read_u16 v{r}, v6 offset:{16*i}")
            a(f"ds_read_u16 v{r+1}, v6 offset:{LB+16*i}")
        a("s_waitcnt lgkmcnt(0)")
        for i in range(i0, min(i0 + G, n_i)):
            r = 10 + 2 * (i - i0)
            a(f"v_lshl_or_b32 v{r}, v{r+1}, 16, v{r}")
            if i == 32:
                a("v_cmp_gt_u32 vcc, 32, v0")
                a("s_and_saveexec_b64 s[34:35], vcc")
            a(f"buffer_store_dword v{r}, v7, s[12:15], s29 offen")
            a(f"s_add_u32 s29, s29, {8*8192}")
    a("s_endpgm")
    return LB + nb + 4096


def k1_lds(with_wt):
    nb = WT_ROWS * KF * 2
    LB = ((nb + 4096 + 15) // 16) * 16
    w = LB + 5 * 4096
    return max(4 * WAVE_LDS + 257 * 64, w if with_wt else 0)


K2_BUF = 18432


def gen_k2(a, name):
    kernel_header(a, name, "column FFT * W, inverse column FFT")
    Lend = a.newlabel("Lend")
    a(f"s_cmp_ge_u32 s2, {KF}")
    a(f"s_cbranch_scc1 {Lend}")
    stamp(a, 0)
    stamp_real(a, 6)
    a(f"s_load_dwordx2 s[6:7], s[0:1], {KA_WS}")
    make_tab_srd(a, 16, TAB2048A, 2048)
    a(f"s_mov_b32 s20, 0x{f2u(math.sqrt(0.5)):08x}")
    a("s_mov_b32 s21, s20")
    a("s_waitcnt lgkmcnt(0)")
    make_srd(a, 12, 6, WS_BYTES)
    Z = [10 + 2 * j for j in range(8)]
    T = [26 + 2 * j for j in range(8)]
    TW1, TW2, TW3 = 42, 58, 74
    WV = 90
    v1w, v1r, v2w, v2r, v3w, v3r = 98, 99, 100, 101, 102, 103
    a(f"s_mul_i32 s28, s2, {T1_PITCH}")
    a(f"s_add_u32 s28, s28, 0x{T1_OFF:x}")
    a("v_lshlrev_b32 v3, 3, v0")
    for jj in range(4):
        a(f"s_add_u32 s{36+jj}, s28, {4096*jj}")
    for j in range(8):
        a(f"buffer_load_dwordx2 {vp(Z[j])}, v3, s[12:15], s{36+(j>>1)} offen offset:{2048*(j&1)}")
    a(f"buffer_load_dwordx2 {vp(TW1+2)}, v3, s[16:19], 0 offen")
    a("v_and_b32 v5, 31, v0")
    a("v_lshlrev_b32 v5, 6, v5")
    a(f"buffer_load_dwordx2 {vp(TW2+2)}, v5, s[16:19], 0 offen")
    a("v_and_b32 v5, 3, v0")
    a("v_lshlrev_b32 v5, 9, v5")
    a(f"buffer_load_dwordx2 {vp(TW3+2)}, v5, s[16:19], 0 offen")
    a("s_lshl_b32 s29, s2, 13")
    a(f"s_add_u32 s29, s29, 0x{WT_OFF:x}")
    a("v_lshlrev_b32 v6, 2, v0")
    a("s_add_u32 s30, s29, 4096")
    for j in range(8):
        a(f"buffer_load_dword v{WV+j}, v6, s[12:15], s{29+(j>>2)} offen offset:{1024*(j&3)}")
    a(f"v_lshlrev_b32 v{v1w}, 3, v0")
    a("v_lshrrev_b32 v7, 5, v0")
    a("v_and_b32 v8, 31, v0")
    a("v_lshl_add_u32 v9, v7, 8, v8")
    a(f"v_lshlrev_b32 v{v1r}, 3, v9")
    a("v_mul_u32_u24 v9, 288, v7")
    a("v_add_u32 v8, v9, v8")
    a(f"v_lshlrev_b32 v{v2w}, 3, v8")
    a("v_bfe_u32 v8, v0, 2, 3")
    a("v_mul_u32_u24 v8, 36, v8")
    a("v_add_u32 v9, v9, v8")
    a("v_and_b32 v8, 3, v0")
    a("v_add_u32 v9, v9, v8")
    a(f"v_lshlrev_b32 v{v2r}, 3, v9")
    a("v_lshlrev_b32 v9, 2, v7")
    a("v_bfe_u32 v7, v0, 2, 2")
    a("v_add_u32 v9, v9, v7")
    a("v_bfe_u32 v7, v0, 4, 1")
    a("v_lshl_add_u32 v9, v7, 5, v9")
    a("v_mul_u32_u24 v8, 68, v8")
    a("v_add_u32 v9, v9, v8")
    a(f"v_lshlrev_b32 v{v3w}, 3, v9")
    a("v_and_b32 v7, 7, v0")
    a("v_lshlrev_b32 v9, 2, v7")
    a("v_bfe_u32 v7, v0, 3, 2")
    a("v_add_u32 v9, v9, v7")
    a("v_bfe_u32 v7, v0, 5, 1")
    a("v_lshl_add_u32 v9, v7, 5, v9")
    a("v_lshrrev_b32 v7, 6, v0")
    a("v_mul_u32_u24 v7, 272, v7")
    a("v_add_u32 v9, v9, v7")
    a(f"v_lshlrev_b32 v{v3r}, 3, v9")

    bufsel = [0]

    def fft2048(sgn, first):
        def nb():
            b = bufsel[0] * K2_BUF
            bufsel[0] ^= 1
            return b
        radix8(a, Z, T, 20, sgn)
        for k in range(1, 8):
            cmul_tw(a, Z[k], Z[k], TW1 + 2 * k, T[k], sgn)
        b = nb()
        for k in range(8):
            a(f"ds_write_b64 v{v1w}, {vp(Z[k])} offset:{b + 2048*k}")
        a("s_waitcnt lgkmcnt(0)")
        a("s_barrier")
        for j in range(8):
            a(f"ds_read_b64 {vp(Z[j])}, v{v1r} offset:{b + 256*j}")
        a("s_waitcnt lgkmcnt(0)")
        radix8(a, Z, T, 20, sgn)
        for k in range(1, 8):
            cmul_tw(a, Z[k], Z[k], TW2 + 2 * k, T[k], sgn)
        b = nb()
        for k in range(8):
            a(f"ds_write_b64 v{v2w}, {vp(Z[k])} offset:{b + 36*8*k}")
        a("s_waitcnt lgkmcnt(0)")
        a("s_barrier")
        for c in range(8):
            a(f"ds_read_b64 {vp(Z[c])}, v{v2r} offset:{b + 32*c}")
        a("s_waitcnt lgkmcnt(0)")
        radix8(a, Z, T, 20, sgn)
        for k in range(1, 8):
            cmul_tw(a, Z[k], Z[k], TW3 + 2 * k, T[k], sgn)
        b = nb()
        for k in range(8):
            a(f"ds_write_b64 v{v3w}, {vp(Z[k])} offset:{b + 272*8*k}")
        a("s_waitcnt lgkmcnt(0)")
        a("s_barrier")
        for hi in range(2):
            for n in range(4):
                a(f"ds_read_b64 {vp(Z[hi + 2*n])}, v{v3r} offset:{b + (68*n + 272*4*hi)*8}")
        a("s_waitcnt lgkmcnt(0)")
        radix4(a, [Z[0], Z[2], Z[4], Z[6]], T[0:4], sgn)
        radix4(a, [Z[1], Z[3], Z[5], Z[7]], T[4:8], sgn)

    stamp(a, 8)
    a("s_waitcnt vmcnt(8)")
    tw_powers(a, TW1, T[0])
    tw_powers(a, TW2, T[0])
    tw_powers(a, TW3, T[0])
    stamp(a, 1)
    fft2048(+1, True)
    stamp(a, 2)
    a("s_waitcnt vmcnt(0)")
    for j in range(8):
        w = T[j ^ 1]
        a(f"v_lshlrev_b32 v{w}, 16, v{WV+j}")
        a(f"v_and_b32 v{w+1}, 0xffff0000, v{WV+j}")
        cmul_tw(a, Z[j], Z[j], w, T[j], +1)
    fft2048(-1, False)
    stamp(a, 3)
    for j in range(8):
        a(f"buffer_store_dwordx2 {vp(Z[j])}, v3, s[12:15], s{36+(j>>1)} offen offset:{2048*(j&1)}")
    stamp(a, 4)
    if INSTR["on"]:
        a("s_waitcnt vmcnt(0)")
    stamp(a, 5)
    stamp_real(a, 7)
    stamp_dump(a, 12, 6, 1)
    a.label(Lend)
    a("s_endpgm")
    return 104


def gen_k3(a, name, res_ka, res_off, x_out_off):
    kernel_header(a, name, "row irFFT + residual + LN")
    Lend = a.newlabel("Lend")
    a("s_cmp_ge_u32 s2, 256")
    a(f"s_cbranch_scc1 {Lend}")
    stamp(a, 0)
    stamp_real(a, 6)
    a(f"s_load_dwordx2 s[4:5], s[0:1], {res_ka}")
    a(f"s_load_dwordx2 s[6:7], s[0:1], {KA_WS}")
    a("v_and_b32 v1, 63, v0")
    a("v_lshrrev_b32 v2, 6, v0")
    a("s_nop 0")
    a("v_readfirstlane_b32 s3, v2")
    make_tab_srd(a, 16, TAB2048A, 2048)
    a(f"s_mov_b32 s20, 0x{f2u(math.sqrt(0.5)):08x}")
    a("s_mov_b32 s21, s20")
    a(f"s_mov_b32 s22, 0x{f2u(1.0/512):08x}")
    a("s_mov_b32 s23, s22")
    a(f"s_mov_b32 s24, 0x{f2u(1.0/(2*2048*512)):08x}")
    a("s_mov_b32 s25, s24")
    a("s_waitcnt lgkmcnt(0)")
    if res_off:
        make_srd_off(a, 8, 4, res_off, S * D * 2)
    else:
        make_srd(a, 8, 4, S * D * 2)
    make_srd(a, 12, 6, WS_BYTES)
    Z = [10 + 2 * j for j in range(8)]
    T = [26 + 2 * j for j in range(8)]
    RA, RB = 42, 46
    TW1, TW2 = 50, 66
    ST = [82, 83, 84, 85]
    TMP = list(range(86, 96))
    vA_w, vA_r, vB_w, vX = 96, 97, 98, 99
    IN = [104 + 4 * q for q in range(5)]
    a("v_lshrrev_b32 v7, 2, v0")
    a("v_and_b32 v8, 3, v0")
    a(f"v_mul_u32_u24 v3, {T1_PITCH}, v7")
    a("v_lshl_add_u32 v3, v8, 4, v3")
    a("s_lshl_b32 s28, s2, 6")
    for q in range(4):
        a(f"s_add_u32 s29, s28, 0x{T1_OFF + q*64*T1_PITCH:x}")
        a(f"buffer_load_dwordx4 {vq(IN[q])}, v3, s[12:15], s29 offen")
    a("v_cmp_gt_u32 vcc, 4, v0")
    a("s_and_saveexec_b64 s[34:35], vcc")
    a(f"s_add_u32 s29, s28, 0x{T1_OFF + 4*64*T1_PITCH:x}")
    a(f"buffer_load_dwordx4 {vq(IN[4])}, v3, s[12:15], s29 offen")
    a("s_mov_b64 exec, s[34:35]")
    a("v_lshlrev_b32 v4, 5, v1")
    a(f"buffer_load_dwordx2 {vp(TW1+2)}, v4, s[16:19], 0 offen")
    a("v_and_b32 v5, 7, v1")
    a("v_lshlrev_b32 v5, 8, v5")
    a(f"buffer_load_dwordx2 {vp(TW2+2)}, v5, s[16:19], 0 offen")
    a("s_lshl_b32 s28, s2, 13")
    a("s_lshl_b32 s29, s3, 11")
    a("s_add_u32 s28, s28, s29")
    a("v_lshlrev_b32 v6, 4, v1")
    a("v_add_u32 v6, s28, v6")
    a(f"buffer_load_dwordx4 {vq(RA)}, v6, s[8:11], 0 offen")
    a(f"buffer_load_dwordx4 {vq(RB)}, v6, s[8:11], 0 offen offset:1024")
    a(f"s_mul_i32 s30, s3, {WAVE_LDS}")
    fft512_addr(a, 1, 30, vA_w, vA_r, vB_w, TMP[0])
    a(f"v_mul_u32_u24 v8, {WAVE_LDS}, v8")
    a("v_lshl_add_u32 v9, v7, 3, v8")
    a("v_sub_u32 v7, 256, v7")
    a(f"v_lshl_add_u32 v{vX}, v7, 3, v8")
    stamp(a, 8)
    a("s_waitcnt vmcnt(2)")
    stamp(a, 1)
    tw_powers(a, TW1, T[6])
    tw_powers(a, TW2, T[6])
    a("s_mov_b64 exec, vcc")
    for q in (0, 4):
        a(f"v_mov_b32 v{IN[q]+1}, 0")
        a(f"v_mov_b32 v{IN[q]+3}, 0")
    a(f"v_pk_add_f32 {vp(T[4])}, {vp(IN[4])}, {vp(IN[4]+2)} op_sel:[0,1] op_sel_hi:[1,0] neg_lo:[0,1]")
    a(f"ds_write_b64 v9, {vp(T[4])} offset:2048")
    a("s_mov_b64 exec, s[34:35]")
    for q in range(4):
        a(f"v_pk_add_f32 {vp(Z[q])}, {vp(IN[q])}, {vp(IN[q]+2)} op_sel:[0,1] op_sel_hi:[1,0] neg_lo:[0,1]")
        a(f"v_pk_add_f32 {vp(T[q])}, {vp(IN[q])}, {vp(IN[q]+2)} op_sel:[0,1] op_sel_hi:[1,0] neg_hi:[1,0]")
        a(f"ds_write_b64 v9, {vp(Z[q])} offset:{512*q}")
        a(f"ds_write_b64 v{vX}, {vp(T[q])} offset:{(256-64*q)*8}")
    a("s_waitcnt lgkmcnt(0)")
    a("s_barrier")
    for j in range(8):
        a(f"ds_read_b64 {vp(Z[j])}, v{vA_w} offset:{512*j}")
    a("s_waitcnt lgkmcnt(0)")
    stamp(a, 2)
    fft512_core(a, Z, T, TW1, TW2, 20, -1, vA_w, vA_r, vB_w, vA_w)
    stamp(a, 3)
    for par in range(2):
        a(f"v_bfe_u32 v{TMP[0]}, v1, 1, 2")
        a(f"v_lshrrev_b32 v{TMP[1]}, 5, v1")
        a(f"v_add3_u32 v{TMP[0]}, v{TMP[0]}, v{TMP[1]}, {2*par}")
        a(f"v_and_b32 v{TMP[0]}, 3, v{TMP[0]}")
        a(f"v_lshlrev_b32 v{TMP[0]}, 4, v{TMP[0]}")
        a(f"v_lshrrev_b32 v{TMP[1]}, 3, v1")
        a(f"v_lshl_add_u32 v{TMP[0]}, v{TMP[1]}, 6, v{TMP[0]}")
        a(f"v_and_b32 v{TMP[1]}, 1, v1")
        a(f"v_lshl_add_u32 v{TMP[0]}, v{TMP[1]}, 3, v{TMP[0]}")
        a(f"v_add_u32 v{100+par}, s30, v{TMP[0]}")
    for j in range(8):
        a(f"ds_write_b64 v{100+(j&1)}, {vp(Z[j])} offset:{512*j}")
    a(f"v_lshrrev_b32 v{TMP[0]}, 2, v1")
    a(f"v_lshlrev_b32 v{TMP[1]}, 6, v1")
    a(f"v_add_u32 v{TMP[1]}, s30, v{TMP[1]}")
    for c in range(4):
        a(f"v_add_u32 v{TMP[2]}, {c}, v{TMP[0]}")
        a(f"v_and_b32 v{TMP[2]}, 3, v{TMP[2]}")
        a(f"v_lshlrev_b32 v{TMP[2]}, 4, v{TMP[2]}")
        a(f"v_add_u32 v{T[c]}, v{TMP[1]}, v{TMP[2]}")
    a("s_waitcnt lgkmcnt(0)")
    for c in range(4):
        a(f"ds_read_b128 {vq(Z[2*c])}, v{T[c]}")
    a("s_waitcnt vmcnt(0) lgkmcnt(0)")
    for j in range(8):
        a(f"v_pk_mul_f32 {vp(Z[j])}, {vp(Z[j])}, s[24:25]")
    for j in range(8):
        a(f"v_cvt_pk_bf16_f32 v{TMP[j]}, v{Z[j]}, v{Z[j]+1}")
    for j in range(8):
        a(f"v_lshlrev_b32 v{Z[j]}, 16, v{TMP[j]}")
        a(f"v_and_b32 v{Z[j]+1}, 0xffff0000, v{TMP[j]}")
    for j in range(8):
        if j & 1:
            a(f"v_and_b32 v{T[j]}, 0xffff0000, v{RA + (j >> 1)}")
            a(f"v_and_b32 v{T[j]+1}, 0xffff0000, v{RB + (j >> 1)}")
        else:
            a(f"v_lshlrev_b32 v{T[j]}, 16, v{RA + (j >> 1)}")
            a(f"v_lshlrev_b32 v{T[j]+1}, 16, v{RB + (j >> 1)}")
    for j in range(8):
        a(f"v_pk_add_f32 {vp(Z[j])}, {vp(Z[j])}, {vp(T[j])}")
    for jj in range(4):
        a(f"v_cvt_pk_bf16_f32 v{RA+jj}, v{Z[2*jj]}, v{Z[2*jj+1]}")
        a(f"v_cvt_pk_bf16_f32 v{RB+jj}, v{Z[2*jj]+1}, v{Z[2*jj+1]+1}")
    a(f"s_mov_b32 s29, 0x{x_out_off:x}")
    a(f"buffer_store_dwordx4 {vq(RA)}, v6, s[12:15], s29 offen")
    a(f"buffer_store_dwordx4 {vq(RB)}, v6, s[12:15], s29 offen offset:1024")
    for j in range(8):
        if j & 1:
            a(f"v_and_b32 v{Z[j]}, 0xffff0000, v{RA + (j >> 1)}")
            a(f"v_and_b32 v{Z[j]+1}, 0xffff0000, v{RB + (j >> 1)}")
        else:
            a(f"v_lshlrev_b32 v{Z[j]}, 16, v{RA + (j >> 1)}")
            a(f"v_lshlrev_b32 v{Z[j]+1}, 16, v{RB + (j >> 1)}")
    layernorm_pairs(a, Z, TMP, ST, 22, 44)
    O1, O2 = T[0], T[2]
    for jj in range(4):
        a(f"v_cvt_pk_bf16_f32 v{O1+jj}, v{Z[2*jj]}, v{Z[2*jj+1]}")
        a(f"v_cvt_pk_bf16_f32 v{O2+jj}, v{Z[2*jj]+1}, v{Z[2*jj+1]+1}")
    a(f"s_mov_b32 s29, 0x{XN_OFF:x}")
    a(f"buffer_store_dwordx4 {vq(O1)}, v6, s[12:15], s29 offen")
    a(f"buffer_store_dwordx4 {vq(O2)}, v6, s[12:15], s29 offen offset:1024")
    stamp(a, 4)
    if INSTR["on"]:
        a("s_waitcnt vmcnt(0)")
    stamp(a, 5)
    stamp_real(a, 7)
    stamp_dump(a, 12, 6, 2)
    a.label(Lend)
    a("s_endpgm")
    return 124
```

```python
from common import *
from gemm_kernels import G1_STAGE, G1_NST, G1_LDS, G1_WGS


def gen_g1_8w(a, name):
    kernel_header(a, name, "GEMM1 + bias + gelu (8 waves)")
    Lend = a.newlabel("Lend")
    a(f"s_cmp_ge_u32 s2, {G1_WGS}")
    a(f"s_cbranch_scc1 {Lend}")
    stamp(a, 0)
    stamp_real(a, 6)
    a(f"s_load_dwordx4 s[4:7], s[0:1], {KA_W1}")
    a(f"s_load_dwordx2 s[8:9], s[0:1], {KA_WS}")
    a("v_and_b32 v1, 63, v0")
    a("v_lshrrev_b32 v2, 6, v0")
    a("s_nop 0")
    a("v_readfirstlane_b32 s3, v2")
    a("s_and_b32 s10, s2, 7")
    a("s_lshr_b32 s11, s2, 3")
    a("s_and_b32 s28, s11, 3")
    a("s_lshr_b32 s11, s11, 2")
    a("s_and_b32 s29, s10, 1")
    a("s_mul_i32 s29, s29, 7")
    a("s_add_u32 s11, s11, s29")
    a("s_lshr_b32 s10, s10, 1")
    a("s_lshl_b32 s10, s10, 2")
    a("s_add_u32 s10, s10, s28")
    vAd0, vAd1, vWd = 3, 4, 5
    a("v_lshrrev_b32 v6, 3, v1")
    a("v_lshlrev_b32 v6, 10, v6")
    a("v_and_b32 v7, 7, v1")
    a("v_lshrrev_b32 v8, 4, v1")
    a("v_xor_b32 v7, v7, v8")
    a(f"v_lshl_add_u32 v{vAd0}, v7, 4, v6")
    a("v_xor_b32 v7, 4, v7")
    a(f"v_lshl_add_u32 v{vAd1}, v7, 4, v6")
    a("s_lshl_b32 s28, s10, 17")
    a("s_lshl_b32 s29, s3, 14")
    a("s_add_u32 s28, s28, s29")
    a("v_and_b32 v7, 15, v1")
    a("v_lshlrev_b32 v9, 2, v8")
    a("v_xor_b32 v7, v7, v9")
    a("s_movk_i32 s30, 3584")
    a("v_mul_lo_u32 v8, v8, s30")
    a(f"v_lshl_add_u32 v{vWd}, v7, 4, v8")
    a("s_lshl_b32 s31, s11, 8")
    a(f"s_mul_i32 s29, s3, {8*3584}")
    a("s_add_u32 s31, s31, s29")
    a("s_lshl_b32 s32, s3, 11")
    a("s_waitcnt lgkmcnt(0)")
    stamp(a, 8)
    make_srd(a, 12, 4, D * F * 2)
    make_srd_off(a, 20, 8, XN_OFF, S * D * 2)

    def issue_stage(st):
        slot = st % G1_NST
        for q in range(2):
            a(f"s_add_u32 m0, s32, {slot*G1_STAGE + q*1024}")
            a(f"s_add_u32 s33, s28, {q*8192 + st*128}")
            a(f"buffer_load_dwordx4 v{vAd1 if q & 1 else vAd0}, s[20:23], s33 offen lds")
        for q in range(2):
            a(f"s_add_u32 m0, s32, {slot*G1_STAGE + 16384 + q*1024}")
            a(f"s_add_u32 s33, s31, {(st*64 + 4*q)*3584}")
            a(f"buffer_load_dwordx4 v{vWd}, s[12:15], s33 offen lds")

    stamp(a, 9)
    issue_stage(0)
    issue_stage(1)
    stamp(a, 10)
    order = [0]*4 + [1]*4
    make_srd(a, 16, 6, F * 2)
    make_srd_off(a, 24, 8, H_OFF, S * F * 2)
    BI = 10
    a("s_lshr_b32 s34, s3, 1")
    a("s_and_b32 s35, s3, 1")
    AA = 26
    a("v_and_b32 v6, 31, v1")
    a("v_lshlrev_b32 v6, 7, v6")
    a("s_lshl_b32 s37, s35, 13")
    a("v_add_u32 v6, s37, v6")
    a("v_lshrrev_b32 v7, 5, v1")
    a("v_bfe_u32 v8, v1, 1, 3")
    a("v_xor_b32 v7, v7, v8")
    a("v_lshl_add_u32 v6, v7, 4, v6")
    for ks in range(4):
        a(f"v_xor_b32 v{AA+ks}, {32*ks}, v6")
        a(f"v_add_u32 v{AA+4+ks}, 0x10000, v{AA+ks}")
    WA = 34
    a("v_lshrrev_b32 v6, 5, v1")
    a("v_lshlrev_b32 v6, 3, v6")
    a("v_bfe_u32 v7, v1, 2, 2")
    a("v_add_u32 v6, v6, v7")
    a("v_lshlrev_b32 v6, 8, v6")
    a("v_bfe_u32 v8, v1, 4, 1")
    a("v_lshlrev_b32 v8, 1, v8")
    a("v_bfe_u32 v9, v1, 1, 1")
    a("v_add_u32 v8, v8, v9")
    a("s_lshl_b32 s37, s34, 2")
    a("v_add_u32 v8, s37, v8")
    a("v_lshlrev_b32 v7, 2, v7")
    a("v_xor_b32 v8, v8, v7")
    a("v_lshl_add_u32 v6, v8, 4, v6")
    a("v_and_b32 v9, 1, v1")
    a("v_lshl_add_u32 v6, v9, 3, v6")
    a(f"v_add_u32 v{WA}, 16384, v6")
    a(f"v_add_u32 v{WA+1}, 0x10000, v{WA}")
    ACC = 64
    for i in range(32):
        a(f"v_mov_b32 v{ACC+i}, 0")
    issue_stage(2)
    issue_stage(3)
    order += [2]*4 + [3]*4
    a("v_lshrrev_b32 v6, 5, v1")
    a("v_lshlrev_b32 v6, 3, v6")
    a("s_lshl_b32 s36, s11, 8")
    a("s_lshl_b32 s37, s34, 6")
    a("s_add_u32 s36, s36, s37")
    for q in range(4):
        a(f"buffer_load_dwordx2 {vp(BI + 2*q)}, v6, s[16:19], s36 offen offset:{16*q}")
    order += ['b']*4
    stamp(a, 11)
    FR = [96, 108]

    def rd(st, ks, fs, which):
        slot = st % G1_NST
        s2_ = slot >> 1
        so = (slot & 1) * G1_STAGE
        f = FR[fs]
        if which[0] == 'W':
            h = which[1]
            a(f"ds_read_b64_tr_b16 {vp(f + 2*h)}, v{WA + s2_} offset:{so + (16*ks + 4*h)*256}")
        else:
            mt = which[1]
            a(f"ds_read_b128 {vq(f + 4 + 4*mt)}, v{AA + 4*s2_ + ks} offset:{so + mt*4096}")

    RD_ORDER = [('W', 0), ('W', 1), ('A', 0), ('A', 1)]

    def mf(fs, mt):
        f = FR[fs]
        c = ACC + 16 * mt
        a(f"v_mfma_f32_32x32x16_bf16 v[{c}:{c+15}], {vq(f)}, {vq(f + 4 + 4*mt)}, v[{c}:{c+15}]")

    NSTG = D // 64

    def need(tag):
        last = max(i for i, t in enumerate(order) if t == tag)
        return len(order) - 1 - last
    stamp(a, 1)
    a(f"s_waitcnt vmcnt({need(0)})")
    a("s_barrier")
    stamp(a, 2)
    for w in RD_ORDER:
        rd(0, 0, 0, w)
    fs = 0
    steps = [(st, ks) for st in range(NSTG) for ks in range(4)]
    for i, (st, ks) in enumerate(steps):
        nxt = steps[i + 1] if i + 1 < len(steps) else None
        cross = nxt is not None and nxt[0] != st
        a("s_waitcnt lgkmcnt(1)")
        mf(fs, 0)
        if cross:
            a(f"s_waitcnt vmcnt({need(st+1)}) lgkmcnt(0)")
            a("s_barrier")
            for w in RD_ORDER:
                rd(nxt[0], nxt[1], fs ^ 1, w)
            mf(fs, 1)
            if st + 4 < NSTG:
                issue_stage(st + 4)
                order.extend([st + 4] * 4)
        elif nxt is not None:
            for w in RD_ORDER[0:2]:
                rd(nxt[0], nxt[1], fs ^ 1, w)
            a("s_waitcnt lgkmcnt(2)")
            mf(fs, 1)
            for w in RD_ORDER[2:4]:
                rd(nxt[0], nxt[1], fs ^ 1, w)
        else:
            a("s_waitcnt lgkmcnt(0)")
            mf(fs, 1)
        fs ^= 1
    stamp(a, 3)
    a("s_waitcnt vmcnt(0)")
    c_k0 = 2.0 * math.sqrt(2.0 / math.pi) * math.log2(math.e)
    c_k1 = c_k0 * 0.044715
    KK0 = 36
    a(f"v_mov_b32 v{KK0}, 0x{f2u(-c_k0):08x}")
    a(f"v_mov_b32 v{KK0+1}, 0x{f2u(-c_k0):08x}")
    a(f"s_mov_b32 s42, 0x{f2u(-c_k1):08x}")
    a("s_mov_b32 s43, s42")
    a("s_mov_b32 s44, 1.0")
    a("s_mov_b32 s45, 1.0")
    BF = 96
    for e in range(4):
        for d in range(2):
            a(f"v_lshlrev_b32 v{BF + 4*e + 2*d}, 16, v{BI + 2*e + d}")
            a(f"v_and_b32 v{BF + 4*e + 2*d + 1}, 0xffff0000, v{BI + 2*e + d}")
    a("s_lshr_b32 s37, s34, 1")
    a("s_lshl_b32 s37, s37, 1")
    a("s_add_u32 s37, s37, s35")
    a("s_lshl_b32 s37, s37, 13")
    a("v_and_b32 v6, 31, v1")
    a("v_lshlrev_b32 v7, 7, v6")
    a("v_add_u32 v7, s37, v7")
    a("v_lshrrev_b32 v8, 5, v1")
    a("v_lshl_add_u32 v7, v8, 3, v7")
    a("v_and_b32 v8, 7, v1")
    a("v_lshl_add_u32 v7, v8, 4, v7")
    a("s_and_b32 s38, s34, 1")
    a("s_lshl_b32 s38, s38, 6")
    a("v_xor_b32 v7, s38, v7")
    T0 = 40
    for mt in range(2):
        c = ACC + 16 * mt
        for q in range(4):
            x = c + 4 * q
            bfr = BF + 4 * q
            t = T0 + 8 * (q & 1)
            a(f"v_cvt_pk_bf16_f32 v{t}, v{x}, v{x+1}")
            a(f"v_cvt_pk_bf16_f32 v{t+1}, v{x+2}, v{x+3}")
            a(f"v_lshlrev_b32 v{x}, 16, v{t}")
            a(f"v_and_b32 v{x+1}, 0xffff0000, v{t}")
            a(f"v_lshlrev_b32 v{x+2}, 16, v{t+1}")
            a(f"v_and_b32 v{x+3}, 0xffff0000, v{t+1}")
            a(f"v_pk_add_f32 {vp(x)}, {vp(x)}, {vp(bfr)}")
            a(f"v_pk_add_f32 {vp(x+2)}, {vp(x+2)}, {vp(bfr+2)}")
            a(f"v_cvt_pk_bf16_f32 v{t}, v{x}, v{x+1}")
            a(f"v_cvt_pk_bf16_f32 v{t+1}, v{x+2}, v{x+3}")
            a(f"v_lshlrev_b32 v{x}, 16, v{t}")
            a(f"v_and_b32 v{x+1}, 0xffff0000, v{t}")
            a(f"v_lshlrev_b32 v{x+2}, 16, v{t+1}")
            a(f"v_and_b32 v{x+3}, 0xffff0000, v{t+1}")
            a(f"v_pk_mul_f32 {vp(t)}, {vp(x)}, {vp(x)}")
            a(f"v_pk_mul_f32 {vp(t+2)}, {vp(x+2)}, {vp(x+2)}")
            a(f"v_pk_fma_f32 {vp(t)}, {vp(t)}, s[42:43], {vp(KK0)}")
            a(f"v_pk_fma_f32 {vp(t+2)}, {vp(t+2)}, s[42:43], {vp(KK0)}")
            a(f"v_pk_mul_f32 {vp(t)}, {vp(t)}, {vp(x)}")
            a(f"v_pk_mul_f32 {vp(t+2)}, {vp(t+2)}, {vp(x+2)}")
            for e in range(4):
                a(f"v_exp_f32 v{t+e}, v{t+e}")
            a(f"v_pk_add_f32 {vp(t)}, {vp(t)}, s[44:45]")
            a(f"v_pk_add_f32 {vp(t+2)}, {vp(t+2)}, s[44:45]")
            for e in range(4):
                a(f"v_rcp_f32 v{t+e}, v{t+e}")
            a(f"v_pk_mul_f32 {vp(x)}, {vp(x)}, {vp(t)}")
            a(f"v_pk_mul_f32 {vp(x+2)}, {vp(x+2)}, {vp(t+2)}")
            a(f"v_cvt_pk_bf16_f32 v{t+4}, v{x}, v{x+1}")
            a(f"v_cvt_pk_bf16_f32 v{t+5}, v{x+2}, v{x+3}")
            a(f"v_xor_b32 v{t+6}, {16*q}, v7")
            a(f"ds_write_b64 v{t+6}, {vp(t+4)} offset:{mt*4096}")
    a("v_lshlrev_b32 v6, 4, v1")
    a("s_and_b32 s38, s34, 1")
    a("s_lshl_b32 s39, s38, 12")
    a("s_add_u32 s39, s39, s37")
    a("v_add_u32 v6, s39, v6")
    a("v_lshrrev_b32 v8, 3, v1")
    a("v_and_b32 v9, 7, v1")
    a("v_xor_b32 v9, v9, v8")
    a("v_mul_lo_u32 v8, v8, s30")
    a("v_lshl_add_u32 v8, v9, 4, v8")
    a("s_lshl_b32 s38, s38, 5")
    a("s_lshl_b32 s39, s10, 7")
    a("s_add_u32 s38, s38, s39")
    a("s_lshl_b32 s39, s35, 6")
    a("s_add_u32 s38, s38, s39")
    a("s_mul_i32 s38, s38, 3584")
    a("s_lshl_b32 s39, s11, 8")
    a("s_add_u32 s38, s38, s39")
    a("s_lshr_b32 s39, s34, 1")
    a("s_lshl_b32 s39, s39, 7")
    a("s_add_u32 s38, s38, s39")
    a("s_waitcnt lgkmcnt(0)")
    a("s_barrier")
    for it in range(4):
        a(f"ds_read_b128 {vq(64+4*it)}, v6 offset:{1024*it}")
    for it in range(4):
        a(f"s_waitcnt lgkmcnt({3-it})")
        a(f"buffer_store_dwordx4 {vq(64+4*it)}, v8, s[24:27], s38 offen")
        a(f"s_add_u32 s38, s38, {8*3584}")
    stamp(a, 4)
    if INSTR["on"]:
        a("s_waitcnt vmcnt(0)")
    stamp(a, 5)
    stamp_real(a, 7)
    stamp_dump(a, 12, 8, 3)
    a.label(Lend)
    a("s_endpgm")
    return 120
```

```python
from common import *

G1_STAGE = 32768
G1_NST = 4
G1_LDS = G1_STAGE * G1_NST
G1_WGS = 224


def gen_g1(a, name):
    kernel_header(a, name, "GEMM1 + bias + gelu")
    Lend = a.newlabel("Lend")
    a(f"s_cmp_ge_u32 s2, {OPT.get('g1_wgs', G1_WGS)}")
    a(f"s_cbranch_scc1 {Lend}")
    stamp(a, 0)
    stamp_real(a, 6)
    a(f"s_load_dwordx4 s[4:7], s[0:1], {KA_W1}")
    a(f"s_load_dwordx2 s[8:9], s[0:1], {KA_WS}")
    a("v_and_b32 v1, 63, v0")
    a("v_lshrrev_b32 v2, 6, v0")
    a("s_nop 0")
    a("v_readfirstlane_b32 s3, v2")
    if OPT.get("g1_map", 1) == 0:
        a("s_and_b32 s10, s2, 7")
        a("s_lshr_b32 s11, s2, 3")
        a("s_and_b32 s28, s11, 1")
        a("s_lshl_b32 s10, s10, 1")
        a("s_add_u32 s10, s10, s28")
        a("s_lshr_b32 s11, s11, 1")
    else:
        a("s_and_b32 s10, s2, 7")
        a("s_lshr_b32 s11, s2, 3")
        a("s_and_b32 s28, s11, 3")
        a("s_lshr_b32 s11, s11, 2")
        a("s_and_b32 s29, s10, 1")
        a("s_mul_i32 s29, s29, 7")
        a("s_add_u32 s11, s11, s29")
        a("s_lshr_b32 s10, s10, 1")
        a("s_lshl_b32 s10, s10, 2")
        a("s_add_u32 s10, s10, s28")
    a("s_waitcnt lgkmcnt(0)")
    stamp(a, 8)
    make_srd(a, 12, 4, D * F * 2)
    make_srd(a, 16, 6, F * 2)
    make_srd_off(a, 20, 8, XN_OFF, S * D * 2)
    make_srd_off(a, 24, 8, H_OFF, S * F * 2)
    vAd0, vAd1, vWd = 3, 4, 5
    a("v_lshrrev_b32 v6, 3, v1")
    a("v_lshlrev_b32 v6, 10, v6")
    a("v_and_b32 v7, 7, v1")
    a("v_lshrrev_b32 v8, 4, v1")
    a("v_xor_b32 v7, v7, v8")
    a(f"v_lshl_add_u32 v{vAd0}, v7, 4, v6")
    a("v_xor_b32 v7, 4, v7")
    a(f"v_lshl_add_u32 v{vAd1}, v7, 4, v6")
    a("s_lshl_b32 s28, s10, 17")
    a("s_lshl_b32 s29, s3, 15")
    a("s_add_u32 s28, s28, s29")
    a("v_lshrrev_b32 v8, 4, v1")
    a("v_and_b32 v7, 15, v1")
    a("v_lshlrev_b32 v9, 2, v8")
    a("v_xor_b32 v7, v7, v9")
    a("s_movk_i32 s30, 3584")
    a("v_mul_lo_u32 v8, v8, s30")
    a(f"v_lshl_add_u32 v{vWd}, v7, 4, v8")
    a("s_lshl_b32 s31, s11, 8")
    a(f"s_mul_i32 s29, s3, {16*3584}")
    a("s_add_u32 s31, s31, s29")
    a("s_lshl_b32 s32, s3, 12")

    def issue_stage(st):
        slot = st % G1_NST
        for q in range(4):
            a(f"s_add_u32 m0, s32, {slot*G1_STAGE + q*1024}")
            a(f"s_add_u32 s33, s28, {q*8192 + st*128}")
            a(f"buffer_load_dwordx4 v{vAd1 if q & 1 else vAd0}, s[20:23], s33 offen lds")
        for q in range(4):
            a(f"s_add_u32 m0, s32, {slot*G1_STAGE + 16384 + q*1024}")
            a(f"s_add_u32 s33, s31, {(st*64 + 4*q)*3584}")
            a(f"buffer_load_dwordx4 v{vWd}, s[12:15], s33 offen lds")

    stamp(a, 9)
    if OPT.get("g1_mode") == "dmaonly":
        for st in range(8):
            issue_stage(st)
            if st == 3:
                stamp(a, 10)
        stamp(a, 1)
        a("s_waitcnt vmcnt(0)")
        for i in (2, 3, 4, 5, 11):
            stamp(a, i)
        stamp_real(a, 7)
        stamp_dump(a, 12, 8, 3)
        a.label(Lend)
        a("s_endpgm")
        return 160
    issue_stage(0)
    issue_stage(1)
    stamp(a, 10)
    order = [0]*8 + [1]*8
    BI = 10
    a("s_lshr_b32 s34, s3, 1")
    a("s_and_b32 s35, s3, 1")
    AA = 26
    a("v_and_b32 v6, 31, v1")
    a("v_lshlrev_b32 v6, 7, v6")
    a("s_lshl_b32 s37, s35, 13")
    a("v_add_u32 v6, s37, v6")
    a("v_lshrrev_b32 v7, 5, v1")
    a("v_bfe_u32 v8, v1, 1, 3")
    a("v_xor_b32 v7, v7, v8")
    a("v_lshl_add_u32 v6, v7, 4, v6")
    for ks in range(4):
        a(f"v_xor_b32 v{AA+ks}, {32*ks}, v6")
        a(f"v_add_u32 v{AA+4+ks}, 0x10000, v{AA+ks}")
    WA = 34
    a("v_lshrrev_b32 v6, 5, v1")
    a("v_lshlrev_b32 v6, 3, v6")
    a("v_bfe_u32 v7, v1, 2, 2")
    a("v_add_u32 v6, v6, v7")
    a("v_lshlrev_b32 v6, 8, v6")
    a("v_bfe_u32 v8, v1, 4, 1")
    a("v_lshlrev_b32 v8, 1, v8")
    a("v_bfe_u32 v9, v1, 1, 1")
    a("v_add_u32 v8, v8, v9")
    a("s_lshl_b32 s37, s34, 3")
    a("v_add_u32 v8, s37, v8")
    a("v_lshlrev_b32 v7, 2, v7")
    a("v_xor_b32 v8, v8, v7")
    a("v_lshl_add_u32 v6, v8, 4, v6")
    a("v_and_b32 v9, 1, v1")
    a("v_lshl_add_u32 v6, v9, 3, v6")
    a(f"v_add_u32 v{WA}, 16384, v6")
    a(f"v_xor_b32 v{WA+1}, 64, v{WA}")
    a(f"v_add_u32 v{WA+2}, 0x10000, v{WA}")
    a(f"v_add_u32 v{WA+3}, 0x10000, v{WA+1}")
    ACC = 64
    for i in range(64):
        a(f"v_mov_b32 v{ACC+i}, 0")
    issue_stage(2)
    issue_stage(3)
    order += [2]*8 + [3]*8
    a("v_lshrrev_b32 v6, 5, v1")
    a("v_lshlrev_b32 v6, 3, v6")
    a("s_lshl_b32 s36, s11, 8")
    a("s_lshl_b32 s37, s34, 7")
    a("s_add_u32 s36, s36, s37")
    for nt in range(2):
        for q in range(4):
            a(f"buffer_load_dwordx2 {vp(BI + 2*(4*nt+q))}, v6, s[16:19], s36 offen offset:{64*nt + 16*q}")
    order += ['b']*8
    stamp(a, 11)
    FR = [128, 144]

    def rd(st, ks, fs, which):
        slot = st % G1_NST
        s2_ = slot >> 1
        so = (slot & 1) * G1_STAGE
        f = FR[fs]
        if which[0] == 'W':
            nt, h = which[1], which[2]
            a(f"ds_read_b64_tr_b16 {vp(f + 4*nt + 2*h)}, v{WA + 2*s2_ + nt} offset:{so + (16*ks + 4*h)*256}")
        else:
            mt = which[1]
            a(f"ds_read_b128 {vq(f + 8 + 4*mt)}, v{AA + 4*s2_ + ks} offset:{so + mt*4096}")

    RD_ORDER = [('W', 0, 0), ('W', 0, 1), ('A', 0), ('A', 1), ('W', 1, 0), ('W', 1, 1)]

    def mf(fs, nt, mt):
        f = FR[fs]
        c = ACC + 16 * (2 * nt + mt)
        a(f"v_mfma_f32_32x32x16_bf16 v[{c}:{c+15}], {vq(f + 4*nt)}, {vq(f + 8 + 4*mt)}, v[{c}:{c+15}]")

    NSTG = D // 64

    def need(tag):
        last = max(i for i, t in enumerate(order) if t == tag)
        return len(order) - 1 - last
    stamp(a, 1)
    a(f"s_waitcnt vmcnt({need(0)})")
    a("s_barrier")
    stamp(a, 2)
    for w in RD_ORDER:
        rd(0, 0, 0, w)
    fs = 0
    steps = [(st, ks) for st in range(NSTG) for ks in range(4)]
    for i, (st, ks) in enumerate(steps):
        nxt = steps[i + 1] if i + 1 < len(steps) else None
        cross = nxt is not None and nxt[0] != st
        a("s_waitcnt lgkmcnt(3)")
        mf(fs, 0, 0)
        if cross:
            a("s_waitcnt lgkmcnt(2)")
            mf(fs, 0, 1)
            a(f"s_waitcnt vmcnt({need(st+1)}) lgkmcnt(0)")
            a("s_barrier")
            for w in RD_ORDER[0:4]:
                rd(nxt[0], nxt[1], fs ^ 1, w)
            mf(fs, 1, 0)
            for w in RD_ORDER[4:6]:
                rd(nxt[0], nxt[1], fs ^ 1, w)
            mf(fs, 1, 1)
            if st + 4 < NSTG:
                issue_stage(st + 4)
                order.extend([st + 4] * 8)
        elif nxt is not None:
            for w in RD_ORDER[0:2]:
                rd(nxt[0], nxt[1], fs ^ 1, w)
            a("s_waitcnt lgkmcnt(4)")
            mf(fs, 0, 1)
            for w in RD_ORDER[2:4]:
                rd(nxt[0], nxt[1], fs ^ 1, w)
            a("s_waitcnt lgkmcnt(4)")
            mf(fs, 1, 0)
            for w in RD_ORDER[4:6]:
                rd(nxt[0], nxt[1], fs ^ 1, w)
            mf(fs, 1, 1)
        else:
            a("s_waitcnt lgkmcnt(2)")
            mf(fs, 0, 1)
            a("s_waitcnt lgkmcnt(0)")
            mf(fs, 1, 0)
            mf(fs, 1, 1)
        fs ^= 1
    stamp(a, 3)
    a("s_waitcnt vmcnt(0)")
    c_k0 = 2.0 * math.sqrt(2.0 / math.pi) * math.log2(math.e)
    c_k1 = c_k0 * 0.044715
    a(f"s_mov_b32 s40, 0x{f2u(-c_k0):08x}")
    a("s_mov_b32 s41, s40")
    a(f"s_mov_b32 s42, 0x{f2u(-c_k1):08x}")
    a("s_mov_b32 s43, s42")
    a("s_mov_b32 s44, 1.0")
    a("s_mov_b32 s45, 1.0")
    BF = 128
    for e in range(8):
        for d in range(2):
            a(f"v_lshlrev_b32 v{BF + 4*e + 2*d}, 16, v{BI + 2*e + d}")
            a(f"v_and_b32 v{BF + 4*e + 2*d + 1}, 0xffff0000, v{BI + 2*e + d}")
    a("s_lshl_b32 s37, s3, 13")
    a("v_and_b32 v6, 31, v1")
    a("v_lshlrev_b32 v7, 7, v6")
    a("v_add_u32 v7, s37, v7")
    a("v_lshrrev_b32 v8, 5, v1")
    a("v_lshl_add_u32 v7, v8, 3, v7")
    a("v_and_b32 v8, 7, v1")
    a("v_lshl_add_u32 v7, v8, 4, v7")
    T0 = 26
    for nt in range(2):
        for mt in range(2):
            c = ACC + 16 * (2 * nt + mt)
            for q in range(4):
                x = c + 4 * q
                bfr = BF + 4 * (4 * nt + q)
                t = T0 + 8 * (q & 1)
                a(f"v_cvt_pk_bf16_f32 v{t}, v{x}, v{x+1}")
                a(f"v_cvt_pk_bf16_f32 v{t+1}, v{x+2}, v{x+3}")
                a(f"v_lshlrev_b32 v{x}, 16, v{t}")
                a(f"v_and_b32 v{x+1}, 0xffff0000, v{t}")
                a(f"v_lshlrev_b32 v{x+2}, 16, v{t+1}")
                a(f"v_and_b32 v{x+3}, 0xffff0000, v{t+1}")
                a(f"v_pk_add_f32 {vp(x)}, {vp(x)}, {vp(bfr)}")
                a(f"v_pk_add_f32 {vp(x+2)}, {vp(x+2)}, {vp(bfr+2)}")
                a(f"v_cvt_pk_bf16_f32 v{t}, v{x}, v{x+1}")
                a(f"v_cvt_pk_bf16_f32 v{t+1}, v{x+2}, v{x+3}")
                a(f"v_lshlrev_b32 v{x}, 16, v{t}")
                a(f"v_and_b32 v{x+1}, 0xffff0000, v{t}")
                a(f"v_lshlrev_b32 v{x+2}, 16, v{t+1}")
                a(f"v_and_b32 v{x+3}, 0xffff0000, v{t+1}")
                a(f"v_pk_mul_f32 {vp(t)}, {vp(x)}, {vp(x)}")
                a(f"v_pk_mul_f32 {vp(t+2)}, {vp(x+2)}, {vp(x+2)}")
                a(f"v_pk_mul_f32 {vp(t)}, {vp(t)}, s[42:43]")
                a(f"v_pk_mul_f32 {vp(t+2)}, {vp(t+2)}, s[42:43]")
                a(f"v_pk_add_f32 {vp(t)}, {vp(t)}, s[40:41]")
                a(f"v_pk_add_f32 {vp(t+2)}, {vp(t+2)}, s[40:41]")
                a(f"v_pk_mul_f32 {vp(t)}, {vp(t)}, {vp(x)}")
                a(f"v_pk_mul_f32 {vp(t+2)}, {vp(t+2)}, {vp(x+2)}")
                for e in range(4):
                    a(f"v_exp_f32 v{t+e}, v{t+e}")
                a(f"v_pk_add_f32 {vp(t)}, {vp(t)}, s[44:45]")
                a(f"v_pk_add_f32 {vp(t+2)}, {vp(t+2)}, s[44:45]")
                for e in range(4):
                    a(f"v_rcp_f32 v{t+e}, v{t+e}")
                a(f"v_pk_mul_f32 {vp(x)}, {vp(x)}, {vp(t)}")
                a(f"v_pk_mul_f32 {vp(x+2)}, {vp(x+2)}, {vp(t+2)}")
                a(f"v_cvt_pk_bf16_f32 v{t+4}, v{x}, v{x+1}")
                a(f"v_cvt_pk_bf16_f32 v{t+5}, v{x+2}, v{x+3}")
                a(f"v_xor_b32 v{t+6}, {16*(4*nt+q)}, v7")
                a(f"ds_write_b64 v{t+6}, {vp(t+4)} offset:{mt*4096}")
    a("v_lshlrev_b32 v6, 4, v1")
    a("v_add_u32 v6, s37, v6")
    a("v_lshrrev_b32 v8, 3, v1")
    a("v_and_b32 v9, 7, v1")
    a("v_xor_b32 v9, v9, v8")
    a("s_movk_i32 s30, 3584")
    a("v_mul_lo_u32 v8, v8, s30")
    a("v_lshl_add_u32 v8, v9, 4, v8")
    a("s_lshl_b32 s38, s10, 7")
    a("s_lshl_b32 s39, s35, 6")
    a("s_add_u32 s38, s38, s39")
    a("s_mul_i32 s38, s38, 3584")
    a("s_add_u32 s38, s38, s36")
    a("s_waitcnt lgkmcnt(0)")
    for it in range(8):
        a(f"ds_read_b128 {vq(64+4*it)}, v6 offset:{1024*it}")
    for it in range(8):
        a(f"s_waitcnt lgkmcnt({7-it})")
        a(f"buffer_store_dwordx4 {vq(64+4*it)}, v8, s[24:27], s38 offen")
        a(f"s_add_u32 s38, s38, {8*3584}")
    stamp(a, 4)
    a("s_waitcnt vmcnt(0)")
    stamp(a, 5)
    stamp_real(a, 7)
    stamp_dump(a, 12, 8, 3)
    a.label(Lend)
    a("s_endpgm")
    return 160


G2_STAGE = 8192
G2_NST = 5
G2_LDS = G2_STAGE * G2_NST * 4


def gen_g2(a, name, res_off, out_ka, out_off):
    kernel_header(a, name, "GEMM2 + bias + residual")
    Lend = a.newlabel("Lend")
    a("s_cmp_ge_u32 s2, 256")
    a(f"s_cbranch_scc1 {Lend}")
    stamp(a, 0)
    stamp_real(a, 6)
    a(f"s_load_dwordx4 s[4:7], s[0:1], {KA_W2}")
    a(f"s_load_dwordx2 s[8:9], s[0:1], {KA_WS}")
    a(f"s_load_dwordx2 s[40:41], s[0:1], {out_ka}")
    a("v_and_b32 v1, 63, v0")
    a("v_lshrrev_b32 v2, 6, v0")
    a("s_nop 0")
    a("v_readfirstlane_b32 s3, v2")
    a("s_and_b32 s10, s2, 7")
    a("s_lshr_b32 s11, s2, 3")
    a("s_and_b32 s28, s11, 3")
    a("s_lshl_b32 s10, s10, 2")
    a("s_add_u32 s10, s10, s28")
    a("s_lshr_b32 s11, s11, 2")
    a("s_waitcnt lgkmcnt(0)")
    make_srd(a, 12, 4, F * D * 2)
    make_srd(a, 16, 6, D * 2)
    make_srd_off(a, 20, 8, H_OFF, S * F * 2)
    make_srd_off(a, 24, 8, res_off, S * D * 2)
    if out_off:
        make_srd_off(a, 44, 40, out_off, S * D * 2)
    else:
        make_srd(a, 44, 40, S * D * 2)
    vHd0, vHd1, vWd = 3, 4, 5
    a("v_lshrrev_b32 v6, 3, v1")
    a("s_movk_i32 s30, 3584")
    a("v_mul_lo_u32 v6, v6, s30")
    a("v_and_b32 v7, 7, v1")
    a("v_lshrrev_b32 v8, 4, v1")
    a("v_xor_b32 v7, v7, v8")
    a(f"v_lshl_add_u32 v{vHd0}, v7, 4, v6")
    a("v_xor_b32 v7, 4, v7")
    a(f"v_lshl_add_u32 v{vHd1}, v7, 4, v6")
    a("s_lshl_b32 s28, s10, 6")
    a("s_mul_i32 s28, s28, 3584")
    a("s_mul_i32 s29, s3, 896")
    a("s_add_u32 s28, s28, s29")
    a("v_lshrrev_b32 v6, 3, v1")
    a("v_lshlrev_b32 v6, 10, v6")
    a("v_and_b32 v7, 7, v1")
    a("v_bfe_u32 v8, v1, 4, 1")
    a("v_lshlrev_b32 v8, 2, v8")
    a("v_xor_b32 v7, v7, v8")
    a(f"v_lshl_add_u32 v{vWd}, v7, 4, v6")
    a(f"s_mul_i32 s31, s3, {448*1024}")
    a("s_lshl_b32 s29, s11, 7")
    a("s_add_u32 s31, s31, s29")
    a(f"s_mul_i32 s32, s3, {G2_STAGE*G2_NST}")
    NSTG = 448 // 64
    NU = 2 * NSTG

    def issue_unit(u):
        slot = u % G2_NST
        st = u >> 1
        for q in range(8):
            a(f"s_add_u32 m0, s32, {slot*G2_STAGE + q*1024}")
            if u & 1 == 0:
                a(f"s_add_u32 s33, s28, {q*8*3584 + st*128}")
                a(f"buffer_load_dwordx4 v{vHd1 if q & 1 else vHd0}, s[20:23], s33 offen lds")
            else:
                a(f"s_add_u32 s33, s31, {(st*64 + 8*q)*1024}")
                a(f"buffer_load_dwordx4 v{vWd}, s[12:15], s33 offen lds")

    for u in range(2):
        issue_unit(u)
    HA = 10
    a("v_and_b32 v6, 31, v1")
    a("v_lshlrev_b32 v6, 7, v6")
    a("v_add_u32 v6, s32, v6")
    a("v_lshrrev_b32 v7, 5, v1")
    a("v_bfe_u32 v8, v1, 1, 3")
    a("v_xor_b32 v7, v7, v8")
    a("v_lshl_add_u32 v6, v7, 4, v6")
    for ks in range(4):
        a(f"v_xor_b32 v{HA+ks}, {32*ks}, v6")
    WA = 14
    a("v_lshrrev_b32 v6, 5, v1")
    a("v_lshlrev_b32 v6, 3, v6")
    a("v_bfe_u32 v7, v1, 2, 2")
    a("v_add_u32 v6, v6, v7")
    a("v_lshlrev_b32 v6, 7, v6")
    a("v_bfe_u32 v8, v1, 4, 1")
    a("v_lshlrev_b32 v8, 1, v8")
    a("v_bfe_u32 v9, v1, 1, 1")
    a("v_add_u32 v8, v8, v9")
    a("v_bfe_u32 v7, v1, 3, 1")
    a("v_lshlrev_b32 v7, 2, v7")
    a("v_xor_b32 v8, v8, v7")
    a("v_lshl_add_u32 v6, v8, 4, v6")
    a("v_and_b32 v9, 1, v1")
    a("v_lshl_add_u32 v6, v9, 3, v6")
    a(f"v_add_u32 v{WA}, s32, v6")
    a(f"v_xor_b32 v{WA+1}, 64, v{WA}")
    ACC = 64
    for i in range(64):
        a(f"v_mov_b32 v{ACC+i}, 0")
    FR = [128, 144]
    for u in range(2, G2_NST):
        issue_unit(u)
    issued = [G2_NST]

    def rd(st, ks, fs, which):
        f = FR[fs]
        if which[0] == 'W':
            so = ((2 * st + 1) % G2_NST) * G2_STAGE
            nt, h = which[1], which[2]
            a(f"ds_read_b64_tr_b16 {vp(f + 4*nt + 2*h)}, v{WA + nt} offset:{so + (16*ks + 4*h)*128}")
        else:
            so = ((2 * st) % G2_NST) * G2_STAGE
            mt = which[1]
            a(f"ds_read_b128 {vq(f + 8 + 4*mt)}, v{HA + ks} offset:{so + mt*4096}")

    RD_ORDER = [('W', 0, 0), ('W', 0, 1), ('A', 0), ('A', 1), ('W', 1, 0), ('W', 1, 1)]

    def mf(fs, nt, mt):
        f = FR[fs]
        c = ACC + 16 * (2 * nt + mt)
        a(f"v_mfma_f32_32x32x16_bf16 v[{c}:{c+15}], {vq(f + 4*nt)}, {vq(f + 8 + 4*mt)}, v[{c}:{c+15}]")

    stamp(a, 1)
    a(f"s_waitcnt vmcnt({8*(issued[0]-2)})")
    stamp(a, 2)
    for w in RD_ORDER:
        rd(0, 0, 0, w)
    fs = 0
    steps = [(st, ks) for st in range(NSTG) for ks in range(4)]
    for i, (st, ks) in enumerate(steps):
        nxt = steps[i + 1] if i + 1 < len(steps) else None
        cross = nxt is not None and nxt[0] != st
        a("s_waitcnt lgkmcnt(3)")
        mf(fs, 0, 0)
        if cross:
            a("s_waitcnt lgkmcnt(2)")
            mf(fs, 0, 1)
            a(f"s_waitcnt vmcnt({8*(issued[0] - (2*st+4))}) lgkmcnt(0)")
            for w in RD_ORDER[0:4]:
                rd(nxt[0], nxt[1], fs ^ 1, w)
            mf(fs, 1, 0)
            for w in RD_ORDER[4:6]:
                rd(nxt[0], nxt[1], fs ^ 1, w)
            mf(fs, 1, 1)
            for u in (2 * st + 5, 2 * st + 6):
                if u < NU:
                    issue_unit(u)
                    issued[0] = u + 1
        elif nxt is not None:
            for w in RD_ORDER[0:2]:
                rd(nxt[0], nxt[1], fs ^ 1, w)
            a("s_waitcnt lgkmcnt(4)")
            mf(fs, 0, 1)
            for w in RD_ORDER[2:4]:
                rd(nxt[0], nxt[1], fs ^ 1, w)
            a("s_waitcnt lgkmcnt(4)")
            mf(fs, 1, 0)
            for w in RD_ORDER[4:6]:
                rd(nxt[0], nxt[1], fs ^ 1, w)
            mf(fs, 1, 1)
        else:
            a("s_waitcnt lgkmcnt(2)")
            mf(fs, 0, 1)
            a("s_waitcnt lgkmcnt(0)")
            mf(fs, 1, 0)
            mf(fs, 1, 1)
        fs ^= 1
    stamp(a, 3)
    RS = 272
    PT = 64 * RS
    a("v_lshrrev_b32 v6, 3, v1")
    a("v_lshlrev_b32 v6, 10, v6")
    a("v_and_b32 v7, 7, v1")
    a("v_lshl_add_u32 v6, v7, 4, v6")
    a("s_lshl_b32 s34, s10, 16")
    a("s_lshl_b32 s35, s3, 14")
    a("s_add_u32 s34, s34, s35")
    a("s_lshl_b32 s35, s11, 7")
    a("s_add_u32 s34, s34, s35")
    a(f"buffer_load_dwordx4 v[16:19], v6, s[24:27], s34 offen")
    a(f"s_add_u32 s36, s34, 8192")
    a(f"buffer_load_dwordx4 v[20:23], v6, s[24:27], s36 offen")
    a("v_lshlrev_b32 v8, 4, v7")
    a(f"buffer_load_dwordx4 v[24:27], v8, s[16:19], s35 offen")
    a("s_barrier")
    a(f"s_mul_i32 s37, s3, {PT}")
    a("v_and_b32 v9, 31, v1")
    a(f"v_mul_u32_u24 v9, {RS}, v9")
    a("v_lshrrev_b32 v10, 5, v1")
    a("v_lshl_add_u32 v9, v10, 4, v9")
    a("v_add_u32 v9, s37, v9")
    a("s_nop 7")
    for nt in range(2):
        for mt in range(2):
            c = ACC + 16 * (2 * nt + mt)
            for q in range(4):
                a(f"ds_write_b128 v9, {vq(c+4*q)} offset:{mt*32*RS + (32*nt + 8*q)*4}")
    a("s_waitcnt lgkmcnt(0)")
    a("s_barrier")
    a("v_lshrrev_b32 v9, 3, v1")
    a(f"v_mul_u32_u24 v9, {RS}, v9")
    a("v_lshl_add_u32 v9, v7, 5, v9")
    a(f"s_mul_i32 s37, s3, {16*RS}")
    a("v_add_u32 v9, s37, v9")
    for it in range(2):
        for p in range(4):
            for hh in range(2):
                a(f"ds_read_b128 {vq(64 + 32*it + 8*p + 4*hh)}, v9 offset:{p*PT + it*8*RS + hh*16}")
    a("s_waitcnt vmcnt(0)")
    for d in range(4):
        a(f"v_lshlrev_b32 v{28+2*d}, 16, v{24+d}")
        a(f"v_and_b32 v{29+2*d}, 0xffff0000, v{24+d}")
    a("s_waitcnt lgkmcnt(0)")
    for it in range(2):
        b = 64 + 32 * it
        for e in range(4):
            a(f"v_pk_add_f32 {vp(b+2*e)}, {vp(b+2*e)}, {vp(b+8+2*e)}")
            a(f"v_pk_add_f32 {vp(b+16+2*e)}, {vp(b+16+2*e)}, {vp(b+24+2*e)}")
        for e in range(4):
            a(f"v_pk_add_f32 {vp(b+2*e)}, {vp(b+2*e)}, {vp(b+16+2*e)}")
        for e in range(4):
            round_pair(a, b + 2 * e, 36 + e)
        for e in range(4):
            a(f"v_pk_add_f32 {vp(b+2*e)}, {vp(b+2*e)}, {vp(28+2*e)}")
        for e in range(4):
            round_pair(a, b + 2 * e, 36 + e)
        for e in range(4):
            a(f"v_lshlrev_b32 v{b+8+2*e}, 16, v{16+4*it+e}")
            a(f"v_and_b32 v{b+9+2*e}, 0xffff0000, v{16+4*it+e}")
        for e in range(4):
            a(f"v_pk_add_f32 {vp(b+2*e)}, {vp(b+2*e)}, {vp(b+8+2*e)}")
        for e in range(4):
            a(f"v_cvt_pk_bf16_f32 v{40+4*it+e}, v{b+2*e}, v{b+2*e+1}")
    a(f"buffer_store_dwordx4 v[40:43], v6, s[44:47], s34 offen")
    a(f"buffer_store_dwordx4 v[44:47], v6, s[44:47], s36 offen")
    stamp(a, 4)
    a("s_waitcnt vmcnt(0)")
    stamp(a, 5)
    stamp_real(a, 7)
    stamp_dump(a, 8, 8, 4)
    a.label(Lend)
    a("s_endpgm")
    return 160
```

```python
import sys
from common import *
from fft_kernels import *
from gemm_kernels import *
from gemm1_8w import *

def build(extra_triv=0):
    a = Asm()
    descs = []
    launches = []
    def K(name, fn, grid, lds, block=256):
        v = fn()
        descs.append(kernel_desc(name, v))
        return (name, grid, block, lds)
    k1a = K("k1a_kernel", lambda: gen_k1(a, "k1a_kernel", KA_X, 0, True), 256 + WT_WGS, k1_lds(True))
    k1b = K("k1b_kernel", lambda: gen_k1(a, "k1b_kernel", KA_WS, X2_OFF, False), 256, k1_lds(False))
    k2 = K("k2_kernel", lambda: gen_k2(a, "k2_kernel"), KF, 2 * K2_BUF)
    k3a = K("k3a_kernel", lambda: gen_k3(a, "k3a_kernel", KA_X, 0, X1_OFF), 256, 4 * WAVE_LDS)
    k3b = K("k3b_kernel", lambda: gen_k3(a, "k3b_kernel", KA_WS, X2_OFF, X3_OFF), 256, 4 * WAVE_LDS)
    if OPT.get("g1_8w", 1):
        g1 = K("g1_kernel", lambda: gen_g1_8w(a, "g1_kernel"), G1_WGS, G1_LDS, 512)
    else:
        g1 = K("g1_kernel", lambda: gen_g1(a, "g1_kernel"), G1_WGS, G1_LDS)
    g2a = K("g2a_kernel", lambda: gen_g2(a, "g2a_kernel", X1_OFF, KA_WS, X2_OFF), 256, G2_LDS)
    g2b = K("g2b_kernel", lambda: gen_g2(a, "g2b_kernel", X3_OFF, KA_OUT, 0), 256, G2_LDS)
    launches = [k1a, k2, k3a, g1, g2a, k1b, k2, k3b, g1, g2b]
    if extra_triv:
        kernel_header(a, "triv_kernel")
        a("s_endpgm")
        descs.append(kernel_desc("triv_kernel", 8, 16))
        launches += [("triv_kernel", 256, 256, 0)] * extra_triv
    emit_tables(a)
    hdr = []
    for (n, g, b, l) in launches:
        hdr.append(f"; @launch kernel={n} grid=({g},1,1) block=({b},1,1) lds={l}")
    out = "\n".join(hdr) + "\n"
    out += '.amdgcn_target "amdgcn-amd-amdhsa--gfx950"\n.text\n'
    out += a.text()
    out += '.section .rodata,"a"\n' + "".join(descs)
    return out

if __name__ == "__main__":
    path = sys.argv[1] if len(sys.argv) > 1 else f"cdna_kernels/{NAME}.s"
    extra = int(sys.argv[2]) if len(sys.argv) > 2 else 0
    if len(sys.argv) > 3 and sys.argv[3] == "instr":
        INSTR["on"] = True
    for kv in sys.argv[4:]:
        k, v = kv.split("=")
        OPT[k] = int(v) if v.isdigit() else v
    open(path, "w").write(build(extra))
    print("wrote", path)
```

```python
import sys
from common import *
from fft_kernels import *
from gemm_kernels import *
from gemm1_8w import *

def build(extra_triv=0):
    a = Asm()
    descs = []
    launches = []
    def K(name, fn, grid, lds, block=256):
        v = fn()
        descs.append(kernel_desc(name, v))
        return (name, grid, block, lds)
    k1a = K("k1a_kernel", lambda: gen_k1(a, "k1a_kernel", KA_X, 0, True), 256 + WT_WGS, k1_lds(True))
    k1b = K("k1b_kernel", lambda: gen_k1(a, "k1b_kernel", KA_WS, X2_OFF, False), 256, k1_lds(False))
    k2 = K("k2_kernel", lambda: gen_k2(a, "k2_kernel"), KF, 2 * K2_BUF)
    k3a = K("k3a_kernel", lambda: gen_k3(a, "k3a_kernel", KA_X, 0, X1_OFF), 256, 4 * WAVE_LDS)
    k3b = K("k3b_kernel", lambda: gen_k3(a, "k3b_kernel", KA_WS, X2_OFF, X3_OFF), 256, 4 * WAVE_LDS)
    if OPT.get("g1_8w", 1):
        g1 = K("g1_kernel", lambda: gen_g1_8w(a, "g1_kernel"), G1_WGS, G1_LDS, 512)
    else:
        g1 = K("g1_kernel", lambda: gen_g1(a, "g1_kernel"), G1_WGS, G1_LDS)
    g2a = K("g2a_kernel", lambda: gen_g2(a, "g2a_kernel", X1_OFF, KA_WS, X2_OFF), 256, G2_LDS)
    g2b = K("g2b_kernel", lambda: gen_g2(a, "g2b_kernel", X3_OFF, KA_OUT, 0), 256, G2_LDS)
    launches = [k1a, k2, k3a, g1, g2a, k1b, k2, k3b, g1, g2b]
    if extra_triv:
        kernel_header(a, "triv_kernel")
        a("s_endpgm")
        descs.append(kernel_desc("triv_kernel", 8, 16))
        launches += [("triv_kernel", 256, 256, 0)] * extra_triv
    emit_tables(a)
    hdr = []
    for (n, g, b, l) in launches:
        hdr.append(f"; @launch kernel={n} grid=({g},1,1) block=({b},1,1) lds={l}")
    out = "\n".join(hdr) + "\n"
    out += '.amdgcn_target "amdgcn-amd-amdhsa--gfx950"\n.text\n'
    body = a.text()
    sf = OPT.get("stflag", "")
    if sf:
        import re
        body = re.sub(r"(buffer_store_dword\S* [^\n]*)", lambda m: m.group(1) + " " + sf.replace("+", " "), body)
    out += body
    out += '.section .rodata,"a"\n' + "".join(descs)
    return out

if __name__ == "__main__":
    path = sys.argv[1] if len(sys.argv) > 1 else f"cdna_kernels/{NAME}.s"
    extra = int(sys.argv[2]) if len(sys.argv) > 2 else 0
    if len(sys.argv) > 3 and sys.argv[3] == "instr":
        INSTR["on"] = True
    for kv in sys.argv[4:]:
        k, v = kv.split("=")
        OPT[k] = int(v) if v.isdigit() else v
    open(path, "w").write(build(extra))
    print("wrote", path)
```

```python
from common import *
from fft_kernels import *
from gemm_kernels import *
from gemm1_8w import *

XN2_OFF = 0x1540000
H2_OFF = 0x1740000
PB = 64
CHAIN_LDS = 163840


def gen_chain(a, name, layer):
    kernel_header(a, name, "fused K3 -> G1 -> G2 [-> K1]")
    Lend = a.newlabel("Lend")
    a("s_cmp_ge_u32 s2, 256")
    a(f"s_cbranch_scc1 {Lend}")
    a(f"s_load_dwordx16 s[{PB}:{PB+15}], s[0:1], 0")
    a(f"s_load_dwordx4 s[{PB+16}:{PB+19}], s[0:1], 64")
    a(f"s_load_dwordx2 s[{PB+20}:{PB+21}], s[0:1], 80")
    a("v_and_b32 v1, 63, v0")
    a("v_lshrrev_b32 v2, 6, v0")
    a("s_nop 0")
    a("v_readfirstlane_b32 s3, v2")
    a("s_waitcnt lgkmcnt(0)")
    ptr = lambda ka: PB + ka // 4
    make_srd_off(a, 96, ptr(KA_WS), CNT_OFF + layer * 16384, 16384)
    inner = INSTR["on"]
    INSTR["on"] = False
    if inner:
        make_srd_off(a, 88, ptr(KA_WS), STAMP_OFF + (6 + layer) * 65536, 65536)

    def cstamp(i, real=False):
        if not inner:
            return
        L = a.newlabel("Lcs")
        a("s_cmp_lg_u32 s3, 0")
        a(f"s_cbranch_scc1 {L}")
        a("s_memrealtime s[86:87]" if real else "s_memtime s[86:87]")
        a("s_lshl_b32 s92, s2, 6")
        a("s_waitcnt lgkmcnt(0)")
        a("v_mov_b32 v158, s86")
        a(f"v_mov_b32 v159, {4*i}")
        a("buffer_store_dword v158, v159, s[88:91], s92 offen")
        a.label(L)

    def mk_poll(emit_off, target):
        def poll(a):
            Ld = a.newlabel("Lpd")
            Ll = a.newlabel("Lpl")
            a("s_cmp_lg_u32 s3, 0")
            a(f"s_cbranch_scc1 {Ld}")
            emit_off(a)
            a("v_mov_b32 v159, 0")
            a("s_mov_b32 s93, 0")
            a.label(Ll)
            if OPT.get("pollmode", "atomic") == "atomic":
                a("v_mov_b32 v158, 0")
                a("s_mov_b64 exec, 1")
                a("buffer_atomic_add v158, v159, s[96:99], s92 offen sc0 sc1")
                a("s_mov_b64 exec, -1")
            else:
                a("buffer_load_dword v158, v159, s[96:99], s92 offen " + OPT["pollmode"].replace("+", " "))
            a("s_waitcnt vmcnt(0)")
            a("v_readfirstlane_b32 s94, v158")
            a("s_add_u32 s93, s93, 1")
            a(f"s_cmp_ge_u32 s94, {target}")
            a(f"s_cbranch_scc1 {Ld}")
            a("s_cmp_gt_u32 s93, 0x40000")
            a(f"s_cbranch_scc1 {Ld}")
            a(f"s_sleep {OPT.get('sleep', 2)}")
            a(f"s_branch {Ll}")
            a.label(Ld)
        return poll

    def publish(emit_off):
        L = a.newlabel("Lpub")
        a("s_waitcnt vmcnt(0)")
        a("s_barrier")
        a("s_cmp_lg_u32 s3, 0")
        a(f"s_cbranch_scc1 {L}")
        emit_off(a)
        a("v_mov_b32 v158, 1")
        a("v_mov_b32 v159, 0")
        a("s_mov_b64 exec, 1")
        a("buffer_atomic_add v158, v159, s[96:99], s92 offen sc1")
        a("s_mov_b64 exec, -1")
        a.label(L)

    def four_wave_phase(fn):
        Ls = a.newlabel("Lskip")
        Lj = a.newlabel("Ljoin")
        a("s_cmp_ge_u32 s3, 4")
        a(f"s_cbranch_scc1 {Ls}")
        i0 = len(a.lines)
        fn()
        nb = sum(1 for l in a.lines[i0:] if l.strip() == "s_barrier")
        a(f"s_branch {Lj}")
        a.label(Ls)
        for _ in range(nb):
            a("s_barrier")
        a.label(Lj)

    xn_off = XN_OFF if layer == 0 else XN2_OFF
    h_off = H_OFF if layer == 0 else H2_OFF
    cstamp(0)
    cstamp(14, True)
    fz = {"ptr": ptr}
    if layer == 0:
        four_wave_phase(lambda: gen_k3(a, None, KA_X, 0, X1_OFF, fz=fz, xn_off=xn_off))
    else:
        four_wave_phase(lambda: gen_k3(a, None, KA_WS, X2_OFF, X3_OFF, fz=fz, xn_off=xn_off))
    cstamp(1)

    def off_c3_pub(a):
        a("s_lshr_b32 s92, s2, 4")
        a("s_lshl_b32 s92, s92, 8")
    publish(off_c3_pub)
    cstamp(2)
    Lg1 = a.newlabel("Lg1skip")
    a(f"s_cmp_ge_u32 s2, {G1_WGS}")
    a(f"s_cbranch_scc1 {Lg1}")
    fz = {"ptr": ptr, "poll": mk_poll(lambda a: a("s_lshl_b32 s92, s10, 8"), 16), "cst": cstamp}
    gen_g1_8w(a, None, fz=fz, xn_off=xn_off, h_off=h_off)
    cstamp(3)

    def off_c1_pub(a):
        a("s_lshl_b32 s92, s10, 8")
        a("s_add_u32 s92, s92, 4096")
    publish(off_c1_pub)
    a.label(Lg1)
    cstamp(4)

    def off_c1_wait(a):
        a("s_lshr_b32 s92, s10, 1")
        a("s_lshl_b32 s92, s92, 8")
        a("s_add_u32 s92, s92, 4096")
    fz = {"ptr": ptr, "poll": mk_poll(off_c1_wait, 14)}
    if layer == 0:
        four_wave_phase(lambda: gen_g2(a, None, X1_OFF, KA_WS, X2_OFF, fz=fz, h_off=h_off))
    else:
        four_wave_phase(lambda: gen_g2(a, None, X3_OFF, KA_OUT, 0, fz=fz, h_off=h_off))
    cstamp(5)
    if layer == 0:
        def off_c2_pub(a):
            a("s_lshl_b32 s92, s10, 8")
            a("s_add_u32 s92, s92, 8192")
        publish(off_c2_pub)
        cstamp(6)

        def off_c2_wait(a):
            a("s_lshr_b32 s92, s2, 3")
            a("s_lshl_b32 s92, s92, 8")
            a("s_add_u32 s92, s92, 8192")
        fz = {"ptr": ptr, "poll": mk_poll(off_c2_wait, 8)}
        four_wave_phase(lambda: gen_k1(a, None, KA_WS, X2_OFF, False, fz=fz))
        cstamp(7)
    if inner:
        a("s_waitcnt vmcnt(0)")
    cstamp(8)
    cstamp(15, True)
    a.label(Lend)
    a("s_endpgm")
    INSTR["on"] = inner
    return 160
```

```python
from common import *

TAB512A = "tab_tw512a"
TAB64 = "tab_tw64"
TAB2048A = "tab_tw2048a"
TAB256 = "tab_tw256"
TAB32 = "tab_tw32"


def emit_tables(a):
    emit_table(a, TAB2048A, tw_table1(2048, 256))


WAVE_LDS = 4768


def fft512_core(a, z, t, tw1, tw2, s_c, sgn, vA_w, vA_r, vB_w, vB_r):
    radix8(a, z, t, s_c, sgn)
    for k in range(1, 8):
        cmul_tw(a, z[k], z[k], tw1 + 2 * k, t[k & 7], sgn)
    for k in range(8):
        a(f"ds_write_b64 v{vA_w}, {vp(z[k])} offset:{72*8*k}")
    a("s_waitcnt lgkmcnt(0)")
    for b in range(8):
        a(f"ds_read_b64 {vp(z[b])}, v{vA_r} offset:{64*b}")
    a("s_waitcnt lgkmcnt(0)")
    radix8(a, z, t, s_c, sgn)
    for k in range(1, 8):
        cmul_tw(a, z[k], z[k], tw2 + 2 * k, t[k & 7], sgn)
    for k in range(8):
        a(f"ds_write_b64 v{vB_w}, {vp(z[k])} offset:{64*k}")
    a("s_waitcnt lgkmcnt(0)")
    for c in range(8):
        a(f"ds_read_b64 {vp(z[c])}, v{vB_r} offset:{66*8*c}")
    a("s_waitcnt lgkmcnt(0)")
    radix8(a, z, t, s_c, sgn)


def fft512_addr(a, vlane, sbase, vA_w, vA_r, vB_w, tmp):
    a(f"v_lshlrev_b32 v{vA_w}, 3, v{vlane}")
    a(f"v_add_u32 v{vA_w}, s{sbase}, v{vA_w}")
    a(f"v_lshrrev_b32 v{tmp}, 3, v{vlane}")
    a(f"v_mul_u32_u24 v{vA_r}, 72, v{tmp}")
    a(f"v_and_b32 v{tmp+1}, 7, v{vlane}")
    a(f"v_add_u32 v{vA_r}, v{vA_r}, v{tmp+1}")
    a(f"v_lshlrev_b32 v{vA_r}, 3, v{vA_r}")
    a(f"v_add_u32 v{vA_r}, s{sbase}, v{vA_r}")
    a(f"v_mul_u32_u24 v{vB_w}, 66, v{tmp+1}")
    a(f"v_add_u32 v{vB_w}, v{vB_w}, v{tmp}")
    a(f"v_lshlrev_b32 v{vB_w}, 3, v{vB_w}")
    a(f"v_add_u32 v{vB_w}, s{sbase}, v{vB_w}")


WT_ROWS = 32
WT_WGS = S // WT_ROWS


def gen_k1(a, name, src_ka, src_off, with_wt, fz=None):
    Lend = a.newlabel("Lend")
    Lwt = a.newlabel("Lwt")
    if fz is None:
        kernel_header(a, name, "LN + row rFFT")
        nwg = 256 + (WT_WGS if with_wt else 0)
        a(f"s_cmp_ge_u32 s2, {nwg}")
        a(f"s_cbranch_scc1 {Lend}")
        stamp(a, 0)
        stamp_real(a, 6)
        a(f"s_load_dwordx2 s[4:5], s[0:1], {src_ka}")
        a(f"s_load_dwordx2 s[6:7], s[0:1], {KA_WS}")
        if with_wt:
            a(f"s_load_dwordx4 s[24:27], s[0:1], {KA_WR}")
        a("v_and_b32 v1, 63, v0")
        a("v_lshrrev_b32 v2, 6, v0")
        a("s_nop 0")
        a("v_readfirstlane_b32 s3, v2")
    make_tab_srd(a, 16, TAB2048A, 2048)
    a(f"s_mov_b32 s20, 0x{f2u(math.sqrt(0.5)):08x}")
    a("s_mov_b32 s21, s20")
    a(f"s_mov_b32 s22, 0x{f2u(1.0/512):08x}")
    a("s_mov_b32 s23, s22")
    a("s_waitcnt lgkmcnt(0)")
    if fz is not None:
        a(f"s_mov_b64 s[4:5], {sp(fz['ptr'](src_ka))}")
        a(f"s_mov_b64 s[6:7], {sp(fz['ptr'](KA_WS))}")
    if src_off:
        make_srd_off(a, 8, 4, src_off, S * D * 2)
    else:
        make_srd(a, 8, 4, S * D * 2)
    make_srd(a, 12, 6, WS_BYTES)
    if with_wt:
        a("s_cmp_ge_u32 s2, 256")
        a(f"s_cbranch_scc1 {Lwt}")
    Z = [10 + 2 * j for j in range(8)]
    T = [26 + 2 * j for j in range(8)]
    RA, RB = 42, 46
    TW1, TW2 = 50, 66
    ST = [82, 83, 84, 85]
    TMP = list(range(86, 96))
    vA_w, vA_r, vB_w, vX = 96, 97, 98, 99
    vI_w0, vI_r = 100, 101
    a("s_lshl_b32 s28, s2, 13")
    a("s_lshl_b32 s29, s3, 11")
    a("s_add_u32 s28, s28, s29")
    a("v_lshlrev_b32 v3, 4, v1")
    a("v_add_u32 v3, s28, v3")
    if fz is not None:
        fz['poll'](a)
    else:
        a(f"buffer_load_dwordx4 {vq(RA)}, v3, s[8:11], 0 offen")
        a(f"buffer_load_dwordx4 {vq(RB)}, v3, s[8:11], 0 offen offset:1024")
    a("v_lshlrev_b32 v4, 5, v1")
    a(f"buffer_load_dwordx2 {vp(TW1+2)}, v4, s[16:19], 0 offen")
    a("v_and_b32 v5, 7, v1")
    a("v_lshlrev_b32 v5, 8, v5")
    a(f"buffer_load_dwordx2 {vp(TW2+2)}, v5, s[16:19], 0 offen")
    if fz is not None:
        a("s_barrier")
        a(f"buffer_load_dwordx4 {vq(RA)}, v3, s[8:11], 0 offen sc1")
        a(f"buffer_load_dwordx4 {vq(RB)}, v3, s[8:11], 0 offen offset:1024 sc1")
    a(f"s_mul_i32 s30, s3, {WAVE_LDS}")
    fft512_addr(a, 1, 30, vA_w, vA_r, vB_w, TMP[0])
    a(f"v_lshrrev_b32 v{TMP[0]}, 1, v1")
    a(f"v_lshlrev_b32 v{TMP[1]}, 6, v1")
    a(f"v_add_u32 v{TMP[1]}, s30, v{TMP[1]}")
    for c in range(4):
        a(f"v_add_u32 v{TMP[2]}, {c}, v{TMP[0]}")
        a(f"v_and_b32 v{TMP[2]}, 3, v{TMP[2]}")
        a(f"v_lshlrev_b32 v{TMP[2]}, 4, v{TMP[2]}")
        a(f"v_add_u32 v{102+c}, v{TMP[1]}, v{TMP[2]}")
    a(f"v_lshrrev_b32 v{TMP[0]}, 3, v1")
    a(f"v_lshlrev_b32 v{TMP[0]}, 6, v{TMP[0]}")
    a(f"v_bfe_u32 v{TMP[1]}, v1, 1, 2")
    a(f"v_lshrrev_b32 v{TMP[2]}, 4, v1")
    a(f"v_add_u32 v{TMP[1]}, v{TMP[1]}, v{TMP[2]}")
    a(f"v_and_b32 v{TMP[1]}, 3, v{TMP[1]}")
    a(f"v_lshlrev_b32 v{TMP[1]}, 4, v{TMP[1]}")
    a(f"v_and_b32 v{TMP[2]}, 1, v1")
    a(f"v_lshlrev_b32 v{TMP[2]}, 3, v{TMP[2]}")
    a(f"v_add3_u32 v{vI_r}, v{TMP[0]}, v{TMP[1]}, v{TMP[2]}")
    a(f"v_add_u32 v{vI_r}, s30, v{vI_r}")
    stamp(a, 8)
    a("s_waitcnt vmcnt(0)")
    stamp(a, 1)
    tw_powers(a, TW1, T[0])
    tw_powers(a, TW2, T[0])
    for j in range(8):
        if j & 1:
            a(f"v_and_b32 v{Z[j]}, 0xffff0000, v{RA + (j >> 1)}")
            a(f"v_and_b32 v{Z[j]+1}, 0xffff0000, v{RB + (j >> 1)}")
        else:
            a(f"v_lshlrev_b32 v{Z[j]}, 16, v{RA + (j >> 1)}")
            a(f"v_lshlrev_b32 v{Z[j]+1}, 16, v{RB + (j >> 1)}")
    layernorm_pairs(a, Z, TMP, ST, 22, 44)
    for c in range(4):
        a(f"ds_write_b128 v{102+c}, {vq(Z[2*c])}")
    a("s_waitcnt lgkmcnt(0)")
    for j in range(8):
        a(f"ds_read_b64 {vp(Z[j])}, v{vI_r} offset:{512*j}")
    a("s_waitcnt vmcnt(0) lgkmcnt(0)")
    stamp(a, 2)
    fft512_core(a, Z, T, TW1, TW2, 20, +1, vA_w, vA_r, vB_w, vA_w)
    stamp(a, 3)
    for k in range(8):
        a(f"ds_write_b64 v{vA_w}, {vp(Z[k])} offset:{512*k}")
    a("v_cmp_eq_u32 vcc, 0, v1")
    a("s_and_saveexec_b64 s[34:35], vcc")
    a(f"ds_write_b64 v{vA_w}, {vp(Z[0])} offset:{512*8}")
    a("s_mov_b64 exec, s[34:35]")
    a(f"v_sub_u32 v{vX}, 256, v1")
    a(f"v_lshlrev_b32 v{vX}, 3, v{vX}")
    a(f"v_add_u32 v{vX}, s30, v{vX}")
    a("s_waitcnt lgkmcnt(0)")
    for k in range(5):
        a(f"ds_read_b64 {vp(T[k])}, v{vX} offset:{(256-64*k)*8}")
    STG = 4 * WAVE_LDS
    a("v_and_b32 v3, 3, v1")
    a("v_xor_b32 v3, s3, v3")
    a("v_lshlrev_b32 v3, 4, v3")
    a("v_lshl_add_u32 v3, v1, 6, v3")
    a("s_waitcnt lgkmcnt(0)")
    O = [TW1 + 4 * k for k in range(5)]
    for k in range(5):
        a(f"v_pk_add_f32 {vp(O[k])}, {vp(Z[k])}, {vp(T[k])} neg_hi:[0,1]")
        a(f"v_pk_add_f32 {vp(O[k]+2)}, {vp(Z[k])}, {vp(T[k])} op_sel:[1,1] op_sel_hi:[0,0] neg_hi:[1,0]")
    for k in range(4):
        a(f"ds_write_b128 v3, {vq(O[k])} offset:{STG + 4096*k}")
    a("s_and_saveexec_b64 s[34:35], vcc")
    a(f"ds_write_b128 v3, {vq(O[4])} offset:{STG + 4096*4}")
    a("s_mov_b64 exec, s[34:35]")
    a("v_lshlrev_b32 v4, 4, v0")
    a("v_lshrrev_b32 v5, 2, v0")
    a("v_xor_b32 v6, v5, v0")
    a("v_and_b32 v6, 3, v6")
    a("v_lshlrev_b32 v6, 4, v6")
    a(f"v_mul_u32_u24 v5, {T1_PITCH}, v5")
    a("v_add_u32 v6, v5, v6")
    a("s_lshl_b32 s28, s2, 6")
    a("s_waitcnt lgkmcnt(0)")
    a("s_barrier")
    for k in range(4):
        a(f"ds_read_b128 {vq(Z[2*k])}, v4 offset:{STG + 4096*k}")
    a("v_cmp_gt_u32 vcc, 4, v0")
    a("s_and_saveexec_b64 s[34:35], vcc")
    a(f"ds_read_b128 {vq(T[0])}, v4 offset:{STG + 4096*4}")
    a("s_mov_b64 exec, s[34:35]")
    for k in range(4):
        a(f"s_add_u32 s29, s28, 0x{T1_OFF + k*64*T1_PITCH:x}")
        a(f"s_waitcnt lgkmcnt({4-k})")
        a(f"buffer_store_dwordx4 {vq(Z[2*k])}, v6, s[12:15], s29 offen")
    a("s_waitcnt lgkmcnt(0)")
    a("s_mov_b64 exec, vcc")
    Lsk = a.newlabel("Lsk")
    a(f"s_cbranch_execz {Lsk}")
    a(f"s_add_u32 s29, s28, 0x{T1_OFF + 4*64*T1_PITCH:x}")
    a(f"buffer_store_dwordx4 {vq(T[0])}, v6, s[12:15], s29 offen")
    a.label(Lsk)
    if fz is not None:
        a("s_mov_b64 exec, -1")
        return 106
    stamp(a, 4)
    if INSTR["on"]:
        a("s_waitcnt vmcnt(0)")
    stamp(a, 5)
    stamp_real(a, 7)
    stamp_dump(a, 12, 6, 0 if with_wt else 5)
    a("s_endpgm")
    if with_wt:
        a.label(Lwt)
        gen_wt(a)
    a.label(Lend)
    a("s_endpgm")
    return 106


def gen_wt(a):
    nb = WT_ROWS * KF * 2
    nch = nb // 16
    assert nb % 16 == 0
    make_srd(a, 36, 24, S * KF * 2)
    make_srd(a, 40, 26, S * KF * 2)
    a("s_sub_u32 s28, s2, 256")
    Lz = a.newlabel("Lz")
    a("s_cmp_lg_u32 s28, 0")
    a(f"s_cbranch_scc1 {Lz}")
    a("v_cmp_gt_u32 vcc, 128, v0")
    a("s_and_saveexec_b64 s[34:35], vcc")
    a(f"s_cbranch_execz {Lz}r")
    a("v_lshlrev_b32 v3, 8, v0")
    a("v_mov_b32 v4, 0")
    a(f"s_mov_b32 s29, 0x{CNT_OFF:x}")
    a("buffer_store_dword v4, v3, s[12:15], s29 offen")
    a.label(Lz + "r")
    a("s_mov_b64 exec, s[34:35]")
    a.label(Lz)
    a(f"s_mul_i32 s29, s28, {nb}")
    a("v_lshlrev_b32 v3, 4, v0")
    nr = (nch + 255) // 256
    LB = ((nb + 4096 + 15) // 16) * 16
    for r in range(nr):
        a(f"buffer_load_dwordx4 {vq(10+8*r)}, v3, s[36:39], s29 offen offset:{0}")
        a(f"buffer_load_dwordx4 {vq(14+8*r)}, v3, s[40:43], s29 offen offset:{0}")
        a(f"s_add_u32 s29, s29, 4096")
    for r in range(nr):
        a(f"s_waitcnt vmcnt({2*(nr-1-r)})")
        a(f"ds_write_b128 v3, {vq(10+8*r)} offset:{4096*r}")
        a(f"ds_write_b128 v3, {vq(14+8*r)} offset:{LB+4096*r}")
    a("s_waitcnt lgkmcnt(0)")
    a("s_barrier")
    a("v_and_b32 v4, 31, v0")
    a("v_lshrrev_b32 v5, 5, v0")
    a(f"v_mul_u32_u24 v6, {KF*2}, v4")
    a("v_lshl_add_u32 v6, v5, 1, v6")
    a("v_lshlrev_b32 v7, 13, v5")
    a("v_lshl_add_u32 v7, v4, 2, v7")
    a(f"s_lshl_b32 s29, s28, {int(math.log2(WT_ROWS*4))}")
    a(f"s_add_u32 s29, s29, 0x{WT_OFF:x}")
    n_i = 33
    G = 11
    for i0 in range(0, n_i, G):
        for i in range(i0, min(i0 + G, n_i)):
            r = 10 + 2 * (i - i0)
            a(f"ds_read_u16 v{r}, v6 offset:{16*i}")
            a(f"ds_read_u16 v{r+1}, v6 offset:{LB+16*i}")
        a("s_waitcnt lgkmcnt(0)")
        for i in range(i0, min(i0 + G, n_i)):
            r = 10 + 2 * (i - i0)
            a(f"v_lshl_or_b32 v{r}, v{r+1}, 16, v{r}")
            if i == 32:
                a("v_cmp_gt_u32 vcc, 32, v0")
                a("s_and_saveexec_b64 s[34:35], vcc")
            a(f"buffer_store_dword v{r}, v7, s[12:15], s29 offen")
            a(f"s_add_u32 s29, s29, {8*8192}")
    a("s_endpgm")
    return LB + nb + 4096


def k1_lds(with_wt):
    nb = WT_ROWS * KF * 2
    LB = ((nb + 4096 + 15) // 16) * 16
    w = LB + 5 * 4096
    return max(4 * WAVE_LDS + 257 * 64, w if with_wt else 0)


K2_BUF = 18432


def gen_k2(a, name):
    kernel_header(a, name, "column FFT * W, inverse column FFT")
    Lend = a.newlabel("Lend")
    a(f"s_cmp_ge_u32 s2, {KF}")
    a(f"s_cbranch_scc1 {Lend}")
    stamp(a, 0)
    stamp_real(a, 6)
    a(f"s_load_dwordx2 s[6:7], s[0:1], {KA_WS}")
    make_tab_srd(a, 16, TAB2048A, 2048)
    a(f"s_mov_b32 s20, 0x{f2u(math.sqrt(0.5)):08x}")
    a("s_mov_b32 s21, s20")
    a("s_waitcnt lgkmcnt(0)")
    make_srd(a, 12, 6, WS_BYTES)
    Z = [10 + 2 * j for j in range(8)]
    T = [26 + 2 * j for j in range(8)]
    TW1, TW2, TW3 = 42, 58, 74
    WV = 90
    v1w, v1r, v2w, v2r, v3w, v3r = 98, 99, 100, 101, 102, 103
    a(f"s_mul_i32 s28, s2, {T1_PITCH}")
    a(f"s_add_u32 s28, s28, 0x{T1_OFF:x}")
    a("v_lshlrev_b32 v3, 3, v0")
    for jj in range(4):
        a(f"s_add_u32 s{36+jj}, s28, {4096*jj}")
    for j in range(8):
        a(f"buffer_load_dwordx2 {vp(Z[j])}, v3, s[12:15], s{36+(j>>1)} offen offset:{2048*(j&1)}")
    a(f"buffer_load_dwordx2 {vp(TW1+2)}, v3, s[16:19], 0 offen")
    a("v_and_b32 v5, 31, v0")
    a("v_lshlrev_b32 v5, 6, v5")
    a(f"buffer_load_dwordx2 {vp(TW2+2)}, v5, s[16:19], 0 offen")
    a("v_and_b32 v5, 3, v0")
    a("v_lshlrev_b32 v5, 9, v5")
    a(f"buffer_load_dwordx2 {vp(TW3+2)}, v5, s[16:19], 0 offen")
    a("s_lshl_b32 s29, s2, 13")
    a(f"s_add_u32 s29, s29, 0x{WT_OFF:x}")
    a("v_lshlrev_b32 v6, 2, v0")
    a("s_add_u32 s30, s29, 4096")
    for j in range(8):
        a(f"buffer_load_dword v{WV+j}, v6, s[12:15], s{29+(j>>2)} offen offset:{1024*(j&3)}")
    a(f"v_lshlrev_b32 v{v1w}, 3, v0")
    a("v_lshrrev_b32 v7, 5, v0")
    a("v_and_b32 v8, 31, v0")
    a("v_lshl_add_u32 v9, v7, 8, v8")
    a(f"v_lshlrev_b32 v{v1r}, 3, v9")
    a("v_mul_u32_u24 v9, 288, v7")
    a("v_add_u32 v8, v9, v8")
    a(f"v_lshlrev_b32 v{v2w}, 3, v8")
    a("v_bfe_u32 v8, v0, 2, 3")
    a("v_mul_u32_u24 v8, 36, v8")
    a("v_add_u32 v9, v9, v8")
    a("v_and_b32 v8, 3, v0")
    a("v_add_u32 v9, v9, v8")
    a(f"v_lshlrev_b32 v{v2r}, 3, v9")
    a("v_lshlrev_b32 v9, 2, v7")
    a("v_bfe_u32 v7, v0, 2, 2")
    a("v_add_u32 v9, v9, v7")
    a("v_bfe_u32 v7, v0, 4, 1")
    a("v_lshl_add_u32 v9, v7, 5, v9")
    a("v_mul_u32_u24 v8, 68, v8")
    a("v_add_u32 v9, v9, v8")
    a(f"v_lshlrev_b32 v{v3w}, 3, v9")
    a("v_and_b32 v7, 7, v0")
    a("v_lshlrev_b32 v9, 2, v7")
    a("v_bfe_u32 v7, v0, 3, 2")
    a("v_add_u32 v9, v9, v7")
    a("v_bfe_u32 v7, v0, 5, 1")
    a("v_lshl_add_u32 v9, v7, 5, v9")
    a("v_lshrrev_b32 v7, 6, v0")
    a("v_mul_u32_u24 v7, 272, v7")
    a("v_add_u32 v9, v9, v7")
    a(f"v_lshlrev_b32 v{v3r}, 3, v9")

    bufsel = [0]

    def fft2048(sgn, first):
        def nb():
            b = bufsel[0] * K2_BUF
            bufsel[0] ^= 1
            return b
        radix8(a, Z, T, 20, sgn)
        for k in range(1, 8):
            cmul_tw(a, Z[k], Z[k], TW1 + 2 * k, T[k], sgn)
        b = nb()
        for k in range(8):
            a(f"ds_write_b64 v{v1w}, {vp(Z[k])} offset:{b + 2048*k}")
        a("s_waitcnt lgkmcnt(0)")
        a("s_barrier")
        for j in range(8):
            a(f"ds_read_b64 {vp(Z[j])}, v{v1r} offset:{b + 256*j}")
        a("s_waitcnt lgkmcnt(0)")
        radix8(a, Z, T, 20, sgn)
        for k in range(1, 8):
            cmul_tw(a, Z[k], Z[k], TW2 + 2 * k, T[k], sgn)
        b = nb()
        for k in range(8):
            a(f"ds_write_b64 v{v2w}, {vp(Z[k])} offset:{b + 36*8*k}")
        a("s_waitcnt lgkmcnt(0)")
        a("s_barrier")
        for c in range(8):
            a(f"ds_read_b64 {vp(Z[c])}, v{v2r} offset:{b + 32*c}")
        a("s_waitcnt lgkmcnt(0)")
        radix8(a, Z, T, 20, sgn)
        for k in range(1, 8):
            cmul_tw(a, Z[k], Z[k], TW3 + 2 * k, T[k], sgn)
        b = nb()
        for k in range(8):
            a(f"ds_write_b64 v{v3w}, {vp(Z[k])} offset:{b + 272*8*k}")
        a("s_waitcnt lgkmcnt(0)")
        a("s_barrier")
        for hi in range(2):
            for n in range(4):
                a(f"ds_read_b64 {vp(Z[hi + 2*n])}, v{v3r} offset:{b + (68*n + 272*4*hi)*8}")
        a("s_waitcnt lgkmcnt(0)")
        radix4(a, [Z[0], Z[2], Z[4], Z[6]], T[0:4], sgn)
        radix4(a, [Z[1], Z[3], Z[5], Z[7]], T[4:8], sgn)

    stamp(a, 8)
    a("s_waitcnt vmcnt(8)")
    tw_powers(a, TW1, T[0])
    tw_powers(a, TW2, T[0])
    tw_powers(a, TW3, T[0])
    stamp(a, 1)
    fft2048(+1, True)
    stamp(a, 2)
    a("s_waitcnt vmcnt(0)")
    for j in range(8):
        w = T[j ^ 1]
        a(f"v_lshlrev_b32 v{w}, 16, v{WV+j}")
        a(f"v_and_b32 v{w+1}, 0xffff0000, v{WV+j}")
        cmul_tw(a, Z[j], Z[j], w, T[j], +1)
    fft2048(-1, False)
    stamp(a, 3)
    for j in range(8):
        a(f"buffer_store_dwordx2 {vp(Z[j])}, v3, s[12:15], s{36+(j>>1)} offen offset:{2048*(j&1)}")
    stamp(a, 4)
    if INSTR["on"]:
        a("s_waitcnt vmcnt(0)")
    stamp(a, 5)
    stamp_real(a, 7)
    stamp_dump(a, 12, 6, 1)
    a.label(Lend)
    a("s_endpgm")
    return 104


def gen_k3(a, name, res_ka, res_off, x_out_off, fz=None, xn_off=XN_OFF):
    Lend = a.newlabel("Lend")
    if fz is None:
        kernel_header(a, name, "row irFFT + residual + LN")
        a("s_cmp_ge_u32 s2, 256")
        a(f"s_cbranch_scc1 {Lend}")
        stamp(a, 0)
        stamp_real(a, 6)
        a(f"s_load_dwordx2 s[4:5], s[0:1], {res_ka}")
        a(f"s_load_dwordx2 s[6:7], s[0:1], {KA_WS}")
        a("v_and_b32 v1, 63, v0")
        a("v_lshrrev_b32 v2, 6, v0")
        a("s_nop 0")
        a("v_readfirstlane_b32 s3, v2")
    make_tab_srd(a, 16, TAB2048A, 2048)
    a(f"s_mov_b32 s20, 0x{f2u(math.sqrt(0.5)):08x}")
    a("s_mov_b32 s21, s20")
    a(f"s_mov_b32 s22, 0x{f2u(1.0/512):08x}")
    a("s_mov_b32 s23, s22")
    a(f"s_mov_b32 s24, 0x{f2u(1.0/(2*2048*512)):08x}")
    a("s_mov_b32 s25, s24")
    a("s_waitcnt lgkmcnt(0)")
    if fz is not None:
        a(f"s_mov_b64 s[4:5], {sp(fz['ptr'](res_ka))}")
        a(f"s_mov_b64 s[6:7], {sp(fz['ptr'](KA_WS))}")
    if res_off:
        make_srd_off(a, 8, 4, res_off, S * D * 2)
    else:
        make_srd(a, 8, 4, S * D * 2)
    make_srd(a, 12, 6, WS_BYTES)
    Z = [10 + 2 * j for j in range(8)]
    T = [26 + 2 * j for j in range(8)]
    RA, RB = 42, 46
    TW1, TW2 = 50, 66
    ST = [82, 83, 84, 85]
    TMP = list(range(86, 96))
    vA_w, vA_r, vB_w, vX = 96, 97, 98, 99
    IN = [104 + 4 * q for q in range(5)]
    a("v_lshrrev_b32 v7, 2, v0")
    a("v_and_b32 v8, 3, v0")
    a(f"v_mul_u32_u24 v3, {T1_PITCH}, v7")
    a("v_lshl_add_u32 v3, v8, 4, v3")
    a("s_lshl_b32 s28, s2, 6")
    for q in range(4):
        a(f"s_add_u32 s29, s28, 0x{T1_OFF + q*64*T1_PITCH:x}")
        a(f"buffer_load_dwordx4 {vq(IN[q])}, v3, s[12:15], s29 offen")
    a("v_cmp_gt_u32 vcc, 4, v0")
    a("s_and_saveexec_b64 s[34:35], vcc")
    a(f"s_add_u32 s29, s28, 0x{T1_OFF + 4*64*T1_PITCH:x}")
    a(f"buffer_load_dwordx4 {vq(IN[4])}, v3, s[12:15], s29 offen")
    a("s_mov_b64 exec, s[34:35]")
    a("v_lshlrev_b32 v4, 5, v1")
    a(f"buffer_load_dwordx2 {vp(TW1+2)}, v4, s[16:19], 0 offen")
    a("v_and_b32 v5, 7, v1")
    a("v_lshlrev_b32 v5, 8, v5")
    a(f"buffer_load_dwordx2 {vp(TW2+2)}, v5, s[16:19], 0 offen")
    a("s_lshl_b32 s28, s2, 13")
    a("s_lshl_b32 s29, s3, 11")
    a("s_add_u32 s28, s28, s29")
    a("v_lshlrev_b32 v6, 4, v1")
    a("v_add_u32 v6, s28, v6")
    a(f"buffer_load_dwordx4 {vq(RA)}, v6, s[8:11], 0 offen")
    a(f"buffer_load_dwordx4 {vq(RB)}, v6, s[8:11], 0 offen offset:1024")
    a(f"s_mul_i32 s30, s3, {WAVE_LDS}")
    fft512_addr(a, 1, 30, vA_w, vA_r, vB_w, TMP[0])
    a(f"v_mul_u32_u24 v8, {WAVE_LDS}, v8")
    a("v_lshl_add_u32 v9, v7, 3, v8")
    a("v_sub_u32 v7, 256, v7")
    a(f"v_lshl_add_u32 v{vX}, v7, 3, v8")
    stamp(a, 8)
    a("s_waitcnt vmcnt(2)")
    stamp(a, 1)
    tw_powers(a, TW1, T[6])
    tw_powers(a, TW2, T[6])
    a("s_mov_b64 exec, vcc")
    for q in (0, 4):
        a(f"v_mov_b32 v{IN[q]+1}, 0")
        a(f"v_mov_b32 v{IN[q]+3}, 0")
    a(f"v_pk_add_f32 {vp(T[4])}, {vp(IN[4])}, {vp(IN[4]+2)} op_sel:[0,1] op_sel_hi:[1,0] neg_lo:[0,1]")
    a(f"ds_write_b64 v9, {vp(T[4])} offset:2048")
    a("s_mov_b64 exec, s[34:35]")
    for q in range(4):
        a(f"v_pk_add_f32 {vp(Z[q])}, {vp(IN[q])}, {vp(IN[q]+2)} op_sel:[0,1] op_sel_hi:[1,0] neg_lo:[0,1]")
        a(f"v_pk_add_f32 {vp(T[q])}, {vp(IN[q])}, {vp(IN[q]+2)} op_sel:[0,1] op_sel_hi:[1,0] neg_hi:[1,0]")
        a(f"ds_write_b64 v9, {vp(Z[q])} offset:{512*q}")
        a(f"ds_write_b64 v{vX}, {vp(T[q])} offset:{(256-64*q)*8}")
    a("s_waitcnt lgkmcnt(0)")
    a("s_barrier")
    for j in range(8):
        a(f"ds_read_b64 {vp(Z[j])}, v{vA_w} offset:{512*j}")
    a("s_waitcnt lgkmcnt(0)")
    stamp(a, 2)
    fft512_core(a, Z, T, TW1, TW2, 20, -1, vA_w, vA_r, vB_w, vA_w)
    stamp(a, 3)
    for par in range(2):
        a(f"v_bfe_u32 v{TMP[0]}, v1, 1, 2")
        a(f"v_lshrrev_b32 v{TMP[1]}, 5, v1")
        a(f"v_add3_u32 v{TMP[0]}, v{TMP[0]}, v{TMP[1]}, {2*par}")
        a(f"v_and_b32 v{TMP[0]}, 3, v{TMP[0]}")
        a(f"v_lshlrev_b32 v{TMP[0]}, 4, v{TMP[0]}")
        a(f"v_lshrrev_b32 v{TMP[1]}, 3, v1")
        a(f"v_lshl_add_u32 v{TMP[0]}, v{TMP[1]}, 6, v{TMP[0]}")
        a(f"v_and_b32 v{TMP[1]}, 1, v1")
        a(f"v_lshl_add_u32 v{TMP[0]}, v{TMP[1]}, 3, v{TMP[0]}")
        a(f"v_add_u32 v{100+par}, s30, v{TMP[0]}")
    for j in range(8):
        a(f"ds_write_b64 v{100+(j&1)}, {vp(Z[j])} offset:{512*j}")
    a(f"v_lshrrev_b32 v{TMP[0]}, 2, v1")
    a(f"v_lshlrev_b32 v{TMP[1]}, 6, v1")
    a(f"v_add_u32 v{TMP[1]}, s30, v{TMP[1]}")
    for c in range(4):
        a(f"v_add_u32 v{TMP[2]}, {c}, v{TMP[0]}")
        a(f"v_and_b32 v{TMP[2]}, 3, v{TMP[2]}")
        a(f"v_lshlrev_b32 v{TMP[2]}, 4, v{TMP[2]}")
        a(f"v_add_u32 v{T[c]}, v{TMP[1]}, v{TMP[2]}")
    a("s_waitcnt lgkmcnt(0)")
    for c in range(4):
        a(f"ds_read_b128 {vq(Z[2*c])}, v{T[c]}")
    a("s_waitcnt vmcnt(0) lgkmcnt(0)")
    for j in range(8):
        a(f"v_pk_mul_f32 {vp(Z[j])}, {vp(Z[j])}, s[24:25]")
    for j in range(8):
        a(f"v_cvt_pk_bf16_f32 v{TMP[j]}, v{Z[j]}, v{Z[j]+1}")
    for j in range(8):
        a(f"v_lshlrev_b32 v{Z[j]}, 16, v{TMP[j]}")
        a(f"v_and_b32 v{Z[j]+1}, 0xffff0000, v{TMP[j]}")
    for j in range(8):
        if j & 1:
            a(f"v_and_b32 v{T[j]}, 0xffff0000, v{RA + (j >> 1)}")
            a(f"v_and_b32 v{T[j]+1}, 0xffff0000, v{RB + (j >> 1)}")
        else:
            a(f"v_lshlrev_b32 v{T[j]}, 16, v{RA + (j >> 1)}")
            a(f"v_lshlrev_b32 v{T[j]+1}, 16, v{RB + (j >> 1)}")
    for j in range(8):
        a(f"v_pk_add_f32 {vp(Z[j])}, {vp(Z[j])}, {vp(T[j])}")
    for jj in range(4):
        a(f"v_cvt_pk_bf16_f32 v{RA+jj}, v{Z[2*jj]}, v{Z[2*jj+1]}")
        a(f"v_cvt_pk_bf16_f32 v{RB+jj}, v{Z[2*jj]+1}, v{Z[2*jj+1]+1}")
    a(f"s_mov_b32 s29, 0x{x_out_off:x}")
    a(f"buffer_store_dwordx4 {vq(RA)}, v6, s[12:15], s29 offen")
    a(f"buffer_store_dwordx4 {vq(RB)}, v6, s[12:15], s29 offen offset:1024")
    for j in range(8):
        if j & 1:
            a(f"v_and_b32 v{Z[j]}, 0xffff0000, v{RA + (j >> 1)}")
            a(f"v_and_b32 v{Z[j]+1}, 0xffff0000, v{RB + (j >> 1)}")
        else:
            a(f"v_lshlrev_b32 v{Z[j]}, 16, v{RA + (j >> 1)}")
            a(f"v_lshlrev_b32 v{Z[j]+1}, 16, v{RB + (j >> 1)}")
    layernorm_pairs(a, Z, TMP, ST, 22, 44)
    O1, O2 = T[0], T[2]
    for jj in range(4):
        a(f"v_cvt_pk_bf16_f32 v{O1+jj}, v{Z[2*jj]}, v{Z[2*jj+1]}")
        a(f"v_cvt_pk_bf16_f32 v{O2+jj}, v{Z[2*jj]+1}, v{Z[2*jj+1]+1}")
    a(f"s_mov_b32 s29, 0x{xn_off:x}")
    a(f"buffer_store_dwordx4 {vq(O1)}, v6, s[12:15], s29 offen")
    a(f"buffer_store_dwordx4 {vq(O2)}, v6, s[12:15], s29 offen offset:1024")
    if fz is not None:
        return 124
    stamp(a, 4)
    if INSTR["on"]:
        a("s_waitcnt vmcnt(0)")
    stamp(a, 5)
    stamp_real(a, 7)
    stamp_dump(a, 12, 6, 2)
    a.label(Lend)
    a("s_endpgm")
    return 124
```

```python
from common import *
from gemm_kernels import G1_STAGE, G1_NST, G1_LDS, G1_WGS


def gen_g1_8w(a, name, fz=None, xn_off=XN_OFF, h_off=H_OFF):
    Lend = a.newlabel("Lend")
    if fz is None:
        kernel_header(a, name, "GEMM1 + bias + gelu (8 waves)")
        a(f"s_cmp_ge_u32 s2, {G1_WGS}")
        a(f"s_cbranch_scc1 {Lend}")
        stamp(a, 0)
        stamp_real(a, 6)
        a(f"s_load_dwordx4 s[4:7], s[0:1], {KA_W1}")
        a(f"s_load_dwordx2 s[8:9], s[0:1], {KA_WS}")
        a("v_and_b32 v1, 63, v0")
        a("v_lshrrev_b32 v2, 6, v0")
        a("s_nop 0")
        a("v_readfirstlane_b32 s3, v2")
    else:
        a(f"s_mov_b64 s[4:5], {sp(fz['ptr'](KA_W1))}")
        a(f"s_mov_b64 s[6:7], {sp(fz['ptr'](KA_B1))}")
        a(f"s_mov_b64 s[8:9], {sp(fz['ptr'](KA_WS))}")
    a("s_and_b32 s10, s2, 7")
    a("s_lshr_b32 s11, s2, 3")
    a("s_and_b32 s28, s11, 3")
    a("s_lshr_b32 s11, s11, 2")
    a("s_and_b32 s29, s10, 1")
    a("s_mul_i32 s29, s29, 7")
    a("s_add_u32 s11, s11, s29")
    a("s_lshr_b32 s10, s10, 1")
    a("s_lshl_b32 s10, s10, 2")
    a("s_add_u32 s10, s10, s28")
    vAd0, vAd1, vWd = 3, 4, 5
    a("v_lshrrev_b32 v6, 3, v1")
    a("v_lshlrev_b32 v6, 10, v6")
    a("v_and_b32 v7, 7, v1")
    a("v_lshrrev_b32 v8, 4, v1")
    a("v_xor_b32 v7, v7, v8")
    a(f"v_lshl_add_u32 v{vAd0}, v7, 4, v6")
    a("v_xor_b32 v7, 4, v7")
    a(f"v_lshl_add_u32 v{vAd1}, v7, 4, v6")
    a("s_lshl_b32 s28, s10, 17")
    a("s_lshl_b32 s29, s3, 14")
    a("s_add_u32 s28, s28, s29")
    a("v_and_b32 v7, 15, v1")
    a("v_lshlrev_b32 v9, 2, v8")
    a("v_xor_b32 v7, v7, v9")
    a("s_movk_i32 s30, 3584")
    a("v_mul_lo_u32 v8, v8, s30")
    a(f"v_lshl_add_u32 v{vWd}, v7, 4, v8")
    a("s_lshl_b32 s31, s11, 8")
    a(f"s_mul_i32 s29, s3, {8*3584}")
    a("s_add_u32 s31, s31, s29")
    a("s_lshl_b32 s32, s3, 11")
    a("s_waitcnt lgkmcnt(0)")
    stamp(a, 8)
    make_srd(a, 12, 4, D * F * 2)
    make_srd_off(a, 20, 8, xn_off, S * D * 2)

    scf = " sc1" if (fz is not None and OPT.get("ldsc1", 0)) else ""

    def issue_A(st):
        slot = st % G1_NST
        for q in range(2):
            a(f"s_add_u32 m0, s32, {slot*G1_STAGE + q*1024}")
            a(f"s_add_u32 s33, s28, {q*8192 + st*128}")
            a(f"buffer_load_dwordx4 v{vAd1 if q & 1 else vAd0}, s[20:23], s33 offen{scf} lds")

    def issue_W(st):
        slot = st % G1_NST
        for q in range(2):
            a(f"s_add_u32 m0, s32, {slot*G1_STAGE + 16384 + q*1024}")
            a(f"s_add_u32 s33, s31, {(st*64 + 4*q)*3584}")
            a(f"buffer_load_dwordx4 v{vWd}, s[12:15], s33 offen lds")

    def issue_stage(st):
        issue_A(st)
        issue_W(st)

    stamp(a, 9)
    if fz is None:
        issue_stage(0)
        issue_stage(1)
        order = [0]*4 + [1]*4
    else:
        fz['poll'](a)
        fz['cst'](9)
        order = []
        for st in range(4):
            issue_W(st)
            order += [st] * 2
    stamp(a, 10)
    make_srd(a, 16, 6, F * 2)
    make_srd_off(a, 24, 8, h_off, S * F * 2)
    BI = 10
    a("s_lshr_b32 s34, s3, 1")
    a("s_and_b32 s35, s3, 1")
    AA = 26
    a("v_and_b32 v6, 31, v1")
    a("v_lshlrev_b32 v6, 7, v6")
    a("s_lshl_b32 s37, s35, 13")
    a("v_add_u32 v6, s37, v6")
    a("v_lshrrev_b32 v7, 5, v1")
    a("v_bfe_u32 v8, v1, 1, 3")
    a("v_xor_b32 v7, v7, v8")
    a("v_lshl_add_u32 v6, v7, 4, v6")
    for ks in range(4):
        a(f"v_xor_b32 v{AA+ks}, {32*ks}, v6")
        a(f"v_add_u32 v{AA+4+ks}, 0x10000, v{AA+ks}")
    WA = 34
    a("v_lshrrev_b32 v6, 5, v1")
    a("v_lshlrev_b32 v6, 3, v6")
    a("v_bfe_u32 v7, v1, 2, 2")
    a("v_add_u32 v6, v6, v7")
    a("v_lshlrev_b32 v6, 8, v6")
    a("v_bfe_u32 v8, v1, 4, 1")
    a("v_lshlrev_b32 v8, 1, v8")
    a("v_bfe_u32 v9, v1, 1, 1")
    a("v_add_u32 v8, v8, v9")
    a("s_lshl_b32 s37, s34, 2")
    a("v_add_u32 v8, s37, v8")
    a("v_lshlrev_b32 v7, 2, v7")
    a("v_xor_b32 v8, v8, v7")
    a("v_lshl_add_u32 v6, v8, 4, v6")
    a("v_and_b32 v9, 1, v1")
    a("v_lshl_add_u32 v6, v9, 3, v6")
    a(f"v_add_u32 v{WA}, 16384, v6")
    a(f"v_add_u32 v{WA+1}, 0x10000, v{WA}")
    ACC = 64
    for i in range(32):
        a(f"v_mov_b32 v{ACC+i}, 0")
    if fz is None:
        issue_stage(2)
        issue_stage(3)
        order += [2]*4 + [3]*4
    else:
        a("s_barrier")
        for st in range(4):
            issue_A(st)
            order += [st] * 2
    a("v_lshrrev_b32 v6, 5, v1")
    a("v_lshlrev_b32 v6, 3, v6")
    a("s_lshl_b32 s36, s11, 8")
    a("s_lshl_b32 s37, s34, 6")
    a("s_add_u32 s36, s36, s37")
    for q in range(4):
        a(f"buffer_load_dwordx2 {vp(BI + 2*q)}, v6, s[16:19], s36 offen offset:{16*q}")
    order += ['b']*4
    stamp(a, 11)
    FR = [96, 108]

    def rd(st, ks, fs, which):
        slot = st % G1_NST
        s2_ = slot >> 1
        so = (slot & 1) * G1_STAGE
        f = FR[fs]
        if which[0] == 'W':
            h = which[1]
            a(f"ds_read_b64_tr_b16 {vp(f + 2*h)}, v{WA + s2_} offset:{so + (16*ks + 4*h)*256}")
        else:
            mt = which[1]
            a(f"ds_read_b128 {vq(f + 4 + 4*mt)}, v{AA + 4*s2_ + ks} offset:{so + mt*4096}")

    RD_ORDER = [('W', 0), ('W', 1), ('A', 0), ('A', 1)]

    def mf(fs, mt):
        f = FR[fs]
        c = ACC + 16 * mt
        a(f"v_mfma_f32_32x32x16_bf16 v[{c}:{c+15}], {vq(f)}, {vq(f + 4 + 4*mt)}, v[{c}:{c+15}]")

    NSTG = D // 64

    def need(tag):
        last = max(i for i, t in enumerate(order) if t == tag)
        return len(order) - 1 - last
    stamp(a, 1)
    a(f"s_waitcnt vmcnt({need(0)})")
    a("s_barrier")
    stamp(a, 2)
    if fz is not None:
        fz['cst'](10)
    for w in RD_ORDER:
        rd(0, 0, 0, w)
    fs = 0
    steps = [(st, ks) for st in range(NSTG) for ks in range(4)]
    for i, (st, ks) in enumerate(steps):
        nxt = steps[i + 1] if i + 1 < len(steps) else None
        cross = nxt is not None and nxt[0] != st
        a("s_waitcnt lgkmcnt(1)")
        mf(fs, 0)
        if cross:
            a(f"s_waitcnt vmcnt({need(st+1)}) lgkmcnt(0)")
            a("s_barrier")
            for w in RD_ORDER:
                rd(nxt[0], nxt[1], fs ^ 1, w)
            mf(fs, 1)
            if st + 4 < NSTG:
                issue_stage(st + 4)
                order.extend([st + 4] * 4)
        elif nxt is not None:
            for w in RD_ORDER[0:2]:
                rd(nxt[0], nxt[1], fs ^ 1, w)
            a("s_waitcnt lgkmcnt(2)")
            mf(fs, 1)
            for w in RD_ORDER[2:4]:
                rd(nxt[0], nxt[1], fs ^ 1, w)
        else:
            a("s_waitcnt lgkmcnt(0)")
            mf(fs, 1)
        fs ^= 1
    stamp(a, 3)
    if fz is not None:
        fz['cst'](11)
    a("s_waitcnt vmcnt(0)")
    c_k0 = 2.0 * math.sqrt(2.0 / math.pi) * math.log2(math.e)
    c_k1 = c_k0 * 0.044715
    KK0 = 36
    a(f"v_mov_b32 v{KK0}, 0x{f2u(-c_k0):08x}")
    a(f"v_mov_b32 v{KK0+1}, 0x{f2u(-c_k0):08x}")
    a(f"s_mov_b32 s42, 0x{f2u(-c_k1):08x}")
    a("s_mov_b32 s43, s42")
    a("s_mov_b32 s44, 1.0")
    a("s_mov_b32 s45, 1.0")
    BF = 96
    for e in range(4):
        for d in range(2):
            a(f"v_lshlrev_b32 v{BF + 4*e + 2*d}, 16, v{BI + 2*e + d}")
            a(f"v_and_b32 v{BF + 4*e + 2*d + 1}, 0xffff0000, v{BI + 2*e + d}")
    a("s_lshr_b32 s37, s34, 1")
    a("s_lshl_b32 s37, s37, 1")
    a("s_add_u32 s37, s37, s35")
    a("s_lshl_b32 s37, s37, 13")
    a("v_and_b32 v6, 31, v1")
    a("v_lshlrev_b32 v7, 7, v6")
    a("v_add_u32 v7, s37, v7")
    a("v_lshrrev_b32 v8, 5, v1")
    a("v_lshl_add_u32 v7, v8, 3, v7")
    a("v_and_b32 v8, 7, v1")
    a("v_lshl_add_u32 v7, v8, 4, v7")
    a("s_and_b32 s38, s34, 1")
    a("s_lshl_b32 s38, s38, 6")
    a("v_xor_b32 v7, s38, v7")
    T0 = 40
    for mt in range(2):
        c = ACC + 16 * mt
        for q in range(4):
            x = c + 4 * q
            bfr = BF + 4 * q
            t = T0 + 8 * (q & 1)
            a(f"v_cvt_pk_bf16_f32 v{t}, v{x}, v{x+1}")
            a(f"v_cvt_pk_bf16_f32 v{t+1}, v{x+2}, v{x+3}")
            a(f"v_lshlrev_b32 v{x}, 16, v{t}")
            a(f"v_and_b32 v{x+1}, 0xffff0000, v{t}")
            a(f"v_lshlrev_b32 v{x+2}, 16, v{t+1}")
            a(f"v_and_b32 v{x+3}, 0xffff0000, v{t+1}")
            a(f"v_pk_add_f32 {vp(x)}, {vp(x)}, {vp(bfr)}")
            a(f"v_pk_add_f32 {vp(x+2)}, {vp(x+2)}, {vp(bfr+2)}")
            a(f"v_cvt_pk_bf16_f32 v{t}, v{x}, v{x+1}")
            a(f"v_cvt_pk_bf16_f32 v{t+1}, v{x+2}, v{x+3}")
            a(f"v_lshlrev_b32 v{x}, 16, v{t}")
            a(f"v_and_b32 v{x+1}, 0xffff0000, v{t}")
            a(f"v_lshlrev_b32 v{x+2}, 16, v{t+1}")
            a(f"v_and_b32 v{x+3}, 0xffff0000, v{t+1}")
            a(f"v_pk_mul_f32 {vp(t)}, {vp(x)}, {vp(x)}")
            a(f"v_pk_mul_f32 {vp(t+2)}, {vp(x+2)}, {vp(x+2)}")
            a(f"v_pk_fma_f32 {vp(t)}, {vp(t)}, s[42:43], {vp(KK0)}")
            a(f"v_pk_fma_f32 {vp(t+2)}, {vp(t+2)}, s[42:43], {vp(KK0)}")
            a(f"v_pk_mul_f32 {vp(t)}, {vp(t)}, {vp(x)}")
            a(f"v_pk_mul_f32 {vp(t+2)}, {vp(t+2)}, {vp(x+2)}")
            for e in range(4):
                a(f"v_exp_f32 v{t+e}, v{t+e}")
            a(f"v_pk_add_f32 {vp(t)}, {vp(t)}, s[44:45]")
            a(f"v_pk_add_f32 {vp(t+2)}, {vp(t+2)}, s[44:45]")
            for e in range(4):
                a(f"v_rcp_f32 v{t+e}, v{t+e}")
            a(f"v_pk_mul_f32 {vp(x)}, {vp(x)}, {vp(t)}")
            a(f"v_pk_mul_f32 {vp(x+2)}, {vp(x+2)}, {vp(t+2)}")
            a(f"v_cvt_pk_bf16_f32 v{t+4}, v{x}, v{x+1}")
            a(f"v_cvt_pk_bf16_f32 v{t+5}, v{x+2}, v{x+3}")
            a(f"v_xor_b32 v{t+6}, {16*q}, v7")
            a(f"ds_write_b64 v{t+6}, {vp(t+4)} offset:{mt*4096}")
    a("v_lshlrev_b32 v6, 4, v1")
    a("s_and_b32 s38, s34, 1")
    a("s_lshl_b32 s39, s38, 12")
    a("s_add_u32 s39, s39, s37")
    a("v_add_u32 v6, s39, v6")
    a("v_lshrrev_b32 v8, 3, v1")
    a("v_and_b32 v9, 7, v1")
    a("v_xor_b32 v9, v9, v8")
    a("v_mul_lo_u32 v8, v8, s30")
    a("v_lshl_add_u32 v8, v9, 4, v8")
    a("s_lshl_b32 s38, s38, 5")
    a("s_lshl_b32 s39, s10, 7")
    a("s_add_u32 s38, s38, s39")
    a("s_lshl_b32 s39, s35, 6")
    a("s_add_u32 s38, s38, s39")
    a("s_mul_i32 s38, s38, 3584")
    a("s_lshl_b32 s39, s11, 8")
    a("s_add_u32 s38, s38, s39")
    a("s_lshr_b32 s39, s34, 1")
    a("s_lshl_b32 s39, s39, 7")
    a("s_add_u32 s38, s38, s39")
    a("s_waitcnt lgkmcnt(0)")
    a("s_barrier")
    for it in range(4):
        a(f"ds_read_b128 {vq(64+4*it)}, v6 offset:{1024*it}")
    for it in range(4):
        a(f"s_waitcnt lgkmcnt({3-it})")
        a(f"buffer_store_dwordx4 {vq(64+4*it)}, v8, s[24:27], s38 offen")
        a(f"s_add_u32 s38, s38, {8*3584}")
    if fz is not None:
        return 120
    stamp(a, 4)
    if INSTR["on"]:
        a("s_waitcnt vmcnt(0)")
    stamp(a, 5)
    stamp_real(a, 7)
    stamp_dump(a, 12, 8, 3)
    a.label(Lend)
    a("s_endpgm")
    return 120
```

```python
from common import *

G1_STAGE = 32768
G1_NST = 4
G1_LDS = G1_STAGE * G1_NST
G1_WGS = 224


def gen_g1(a, name):
    kernel_header(a, name, "GEMM1 + bias + gelu")
    Lend = a.newlabel("Lend")
    a(f"s_cmp_ge_u32 s2, {OPT.get('g1_wgs', G1_WGS)}")
    a(f"s_cbranch_scc1 {Lend}")
    stamp(a, 0)
    stamp_real(a, 6)
    a(f"s_load_dwordx4 s[4:7], s[0:1], {KA_W1}")
    a(f"s_load_dwordx2 s[8:9], s[0:1], {KA_WS}")
    a("v_and_b32 v1, 63, v0")
    a("v_lshrrev_b32 v2, 6, v0")
    a("s_nop 0")
    a("v_readfirstlane_b32 s3, v2")
    if OPT.get("g1_map", 1) == 0:
        a("s_and_b32 s10, s2, 7")
        a("s_lshr_b32 s11, s2, 3")
        a("s_and_b32 s28, s11, 1")
        a("s_lshl_b32 s10, s10, 1")
        a("s_add_u32 s10, s10, s28")
        a("s_lshr_b32 s11, s11, 1")
    else:
        a("s_and_b32 s10, s2, 7")
        a("s_lshr_b32 s11, s2, 3")
        a("s_and_b32 s28, s11, 3")
        a("s_lshr_b32 s11, s11, 2")
        a("s_and_b32 s29, s10, 1")
        a("s_mul_i32 s29, s29, 7")
        a("s_add_u32 s11, s11, s29")
        a("s_lshr_b32 s10, s10, 1")
        a("s_lshl_b32 s10, s10, 2")
        a("s_add_u32 s10, s10, s28")
    a("s_waitcnt lgkmcnt(0)")
    stamp(a, 8)
    make_srd(a, 12, 4, D * F * 2)
    make_srd(a, 16, 6, F * 2)
    make_srd_off(a, 20, 8, XN_OFF, S * D * 2)
    make_srd_off(a, 24, 8, H_OFF, S * F * 2)
    vAd0, vAd1, vWd = 3, 4, 5
    a("v_lshrrev_b32 v6, 3, v1")
    a("v_lshlrev_b32 v6, 10, v6")
    a("v_and_b32 v7, 7, v1")
    a("v_lshrrev_b32 v8, 4, v1")
    a("v_xor_b32 v7, v7, v8")
    a(f"v_lshl_add_u32 v{vAd0}, v7, 4, v6")
    a("v_xor_b32 v7, 4, v7")
    a(f"v_lshl_add_u32 v{vAd1}, v7, 4, v6")
    a("s_lshl_b32 s28, s10, 17")
    a("s_lshl_b32 s29, s3, 15")
    a("s_add_u32 s28, s28, s29")
    a("v_lshrrev_b32 v8, 4, v1")
    a("v_and_b32 v7, 15, v1")
    a("v_lshlrev_b32 v9, 2, v8")
    a("v_xor_b32 v7, v7, v9")
    a("s_movk_i32 s30, 3584")
    a("v_mul_lo_u32 v8, v8, s30")
    a(f"v_lshl_add_u32 v{vWd}, v7, 4, v8")
    a("s_lshl_b32 s31, s11, 8")
    a(f"s_mul_i32 s29, s3, {16*3584}")
    a("s_add_u32 s31, s31, s29")
    a("s_lshl_b32 s32, s3, 12")

    def issue_stage(st):
        slot = st % G1_NST
        for q in range(4):
            a(f"s_add_u32 m0, s32, {slot*G1_STAGE + q*1024}")
            a(f"s_add_u32 s33, s28, {q*8192 + st*128}")
            a(f"buffer_load_dwordx4 v{vAd1 if q & 1 else vAd0}, s[20:23], s33 offen lds")
        for q in range(4):
            a(f"s_add_u32 m0, s32, {slot*G1_STAGE + 16384 + q*1024}")
            a(f"s_add_u32 s33, s31, {(st*64 + 4*q)*3584}")
            a(f"buffer_load_dwordx4 v{vWd}, s[12:15], s33 offen lds")

    stamp(a, 9)
    if OPT.get("g1_mode") == "dmaonly":
        for st in range(8):
            issue_stage(st)
            if st == 3:
                stamp(a, 10)
        stamp(a, 1)
        a("s_waitcnt vmcnt(0)")
        for i in (2, 3, 4, 5, 11):
            stamp(a, i)
        stamp_real(a, 7)
        stamp_dump(a, 12, 8, 3)
        a.label(Lend)
        a("s_endpgm")
        return 160
    issue_stage(0)
    issue_stage(1)
    stamp(a, 10)
    order = [0]*8 + [1]*8
    BI = 10
    a("s_lshr_b32 s34, s3, 1")
    a("s_and_b32 s35, s3, 1")
    AA = 26
    a("v_and_b32 v6, 31, v1")
    a("v_lshlrev_b32 v6, 7, v6")
    a("s_lshl_b32 s37, s35, 13")
    a("v_add_u32 v6, s37, v6")
    a("v_lshrrev_b32 v7, 5, v1")
    a("v_bfe_u32 v8, v1, 1, 3")
    a("v_xor_b32 v7, v7, v8")
    a("v_lshl_add_u32 v6, v7, 4, v6")
    for ks in range(4):
        a(f"v_xor_b32 v{AA+ks}, {32*ks}, v6")
        a(f"v_add_u32 v{AA+4+ks}, 0x10000, v{AA+ks}")
    WA = 34
    a("v_lshrrev_b32 v6, 5, v1")
    a("v_lshlrev_b32 v6, 3, v6")
    a("v_bfe_u32 v7, v1, 2, 2")
    a("v_add_u32 v6, v6, v7")
    a("v_lshlrev_b32 v6, 8, v6")
    a("v_bfe_u32 v8, v1, 4, 1")
    a("v_lshlrev_b32 v8, 1, v8")
    a("v_bfe_u32 v9, v1, 1, 1")
    a("v_add_u32 v8, v8, v9")
    a("s_lshl_b32 s37, s34, 3")
    a("v_add_u32 v8, s37, v8")
    a("v_lshlrev_b32 v7, 2, v7")
    a("v_xor_b32 v8, v8, v7")
    a("v_lshl_add_u32 v6, v8, 4, v6")
    a("v_and_b32 v9, 1, v1")
    a("v_lshl_add_u32 v6, v9, 3, v6")
    a(f"v_add_u32 v{WA}, 16384, v6")
    a(f"v_xor_b32 v{WA+1}, 64, v{WA}")
    a(f"v_add_u32 v{WA+2}, 0x10000, v{WA}")
    a(f"v_add_u32 v{WA+3}, 0x10000, v{WA+1}")
    ACC = 64
    for i in range(64):
        a(f"v_mov_b32 v{ACC+i}, 0")
    issue_stage(2)
    issue_stage(3)
    order += [2]*8 + [3]*8
    a("v_lshrrev_b32 v6, 5, v1")
    a("v_lshlrev_b32 v6, 3, v6")
    a("s_lshl_b32 s36, s11, 8")
    a("s_lshl_b32 s37, s34, 7")
    a("s_add_u32 s36, s36, s37")
    for nt in range(2):
        for q in range(4):
            a(f"buffer_load_dwordx2 {vp(BI + 2*(4*nt+q))}, v6, s[16:19], s36 offen offset:{64*nt + 16*q}")
    order += ['b']*8
    stamp(a, 11)
    FR = [128, 144]

    def rd(st, ks, fs, which):
        slot = st % G1_NST
        s2_ = slot >> 1
        so = (slot & 1) * G1_STAGE
        f = FR[fs]
        if which[0] == 'W':
            nt, h = which[1], which[2]
            a(f"ds_read_b64_tr_b16 {vp(f + 4*nt + 2*h)}, v{WA + 2*s2_ + nt} offset:{so + (16*ks + 4*h)*256}")
        else:
            mt = which[1]
            a(f"ds_read_b128 {vq(f + 8 + 4*mt)}, v{AA + 4*s2_ + ks} offset:{so + mt*4096}")

    RD_ORDER = [('W', 0, 0), ('W', 0, 1), ('A', 0), ('A', 1), ('W', 1, 0), ('W', 1, 1)]

    def mf(fs, nt, mt):
        f = FR[fs]
        c = ACC + 16 * (2 * nt + mt)
        a(f"v_mfma_f32_32x32x16_bf16 v[{c}:{c+15}], {vq(f + 4*nt)}, {vq(f + 8 + 4*mt)}, v[{c}:{c+15}]")

    NSTG = D // 64

    def need(tag):
        last = max(i for i, t in enumerate(order) if t == tag)
        return len(order) - 1 - last
    stamp(a, 1)
    a(f"s_waitcnt vmcnt({need(0)})")
    a("s_barrier")
    stamp(a, 2)
    for w in RD_ORDER:
        rd(0, 0, 0, w)
    fs = 0
    steps = [(st, ks) for st in range(NSTG) for ks in range(4)]
    for i, (st, ks) in enumerate(steps):
        nxt = steps[i + 1] if i + 1 < len(steps) else None
        cross = nxt is not None and nxt[0] != st
        a("s_waitcnt lgkmcnt(3)")
        mf(fs, 0, 0)
        if cross:
            a("s_waitcnt lgkmcnt(2)")
            mf(fs, 0, 1)
            a(f"s_waitcnt vmcnt({need(st+1)}) lgkmcnt(0)")
            a("s_barrier")
            for w in RD_ORDER[0:4]:
                rd(nxt[0], nxt[1], fs ^ 1, w)
            mf(fs, 1, 0)
            for w in RD_ORDER[4:6]:
                rd(nxt[0], nxt[1], fs ^ 1, w)
            mf(fs, 1, 1)
            if st + 4 < NSTG:
                issue_stage(st + 4)
                order.extend([st + 4] * 8)
        elif nxt is not None:
            for w in RD_ORDER[0:2]:
                rd(nxt[0], nxt[1], fs ^ 1, w)
            a("s_waitcnt lgkmcnt(4)")
            mf(fs, 0, 1)
            for w in RD_ORDER[2:4]:
                rd(nxt[0], nxt[1], fs ^ 1, w)
            a("s_waitcnt lgkmcnt(4)")
            mf(fs, 1, 0)
            for w in RD_ORDER[4:6]:
                rd(nxt[0], nxt[1], fs ^ 1, w)
            mf(fs, 1, 1)
        else:
            a("s_waitcnt lgkmcnt(2)")
            mf(fs, 0, 1)
            a("s_waitcnt lgkmcnt(0)")
            mf(fs, 1, 0)
            mf(fs, 1, 1)
        fs ^= 1
    stamp(a, 3)
    a("s_waitcnt vmcnt(0)")
    c_k0 = 2.0 * math.sqrt(2.0 / math.pi) * math.log2(math.e)
    c_k1 = c_k0 * 0.044715
    a(f"s_mov_b32 s40, 0x{f2u(-c_k0):08x}")
    a("s_mov_b32 s41, s40")
    a(f"s_mov_b32 s42, 0x{f2u(-c_k1):08x}")
    a("s_mov_b32 s43, s42")
    a("s_mov_b32 s44, 1.0")
    a("s_mov_b32 s45, 1.0")
    BF = 128
    for e in range(8):
        for d in range(2):
            a(f"v_lshlrev_b32 v{BF + 4*e + 2*d}, 16, v{BI + 2*e + d}")
            a(f"v_and_b32 v{BF + 4*e + 2*d + 1}, 0xffff0000, v{BI + 2*e + d}")
    a("s_lshl_b32 s37, s3, 13")
    a("v_and_b32 v6, 31, v1")
    a("v_lshlrev_b32 v7, 7, v6")
    a("v_add_u32 v7, s37, v7")
    a("v_lshrrev_b32 v8, 5, v1")
    a("v_lshl_add_u32 v7, v8, 3, v7")
    a("v_and_b32 v8, 7, v1")
    a("v_lshl_add_u32 v7, v8, 4, v7")
    T0 = 26
    for nt in range(2):
        for mt in range(2):
            c = ACC + 16 * (2 * nt + mt)
            for q in range(4):
                x = c + 4 * q
                bfr = BF + 4 * (4 * nt + q)
                t = T0 + 8 * (q & 1)
                a(f"v_cvt_pk_bf16_f32 v{t}, v{x}, v{x+1}")
                a(f"v_cvt_pk_bf16_f32 v{t+1}, v{x+2}, v{x+3}")
                a(f"v_lshlrev_b32 v{x}, 16, v{t}")
                a(f"v_and_b32 v{x+1}, 0xffff0000, v{t}")
                a(f"v_lshlrev_b32 v{x+2}, 16, v{t+1}")
                a(f"v_and_b32 v{x+3}, 0xffff0000, v{t+1}")
                a(f"v_pk_add_f32 {vp(x)}, {vp(x)}, {vp(bfr)}")
                a(f"v_pk_add_f32 {vp(x+2)}, {vp(x+2)}, {vp(bfr+2)}")
                a(f"v_cvt_pk_bf16_f32 v{t}, v{x}, v{x+1}")
                a(f"v_cvt_pk_bf16_f32 v{t+1}, v{x+2}, v{x+3}")
                a(f"v_lshlrev_b32 v{x}, 16, v{t}")
                a(f"v_and_b32 v{x+1}, 0xffff0000, v{t}")
                a(f"v_lshlrev_b32 v{x+2}, 16, v{t+1}")
                a(f"v_and_b32 v{x+3}, 0xffff0000, v{t+1}")
                a(f"v_pk_mul_f32 {vp(t)}, {vp(x)}, {vp(x)}")
                a(f"v_pk_mul_f32 {vp(t+2)}, {vp(x+2)}, {vp(x+2)}")
                a(f"v_pk_mul_f32 {vp(t)}, {vp(t)}, s[42:43]")
                a(f"v_pk_mul_f32 {vp(t+2)}, {vp(t+2)}, s[42:43]")
                a(f"v_pk_add_f32 {vp(t)}, {vp(t)}, s[40:41]")
                a(f"v_pk_add_f32 {vp(t+2)}, {vp(t+2)}, s[40:41]")
                a(f"v_pk_mul_f32 {vp(t)}, {vp(t)}, {vp(x)}")
                a(f"v_pk_mul_f32 {vp(t+2)}, {vp(t+2)}, {vp(x+2)}")
                for e in range(4):
                    a(f"v_exp_f32 v{t+e}, v{t+e}")
                a(f"v_pk_add_f32 {vp(t)}, {vp(t)}, s[44:45]")
                a(f"v_pk_add_f32 {vp(t+2)}, {vp(t+2)}, s[44:45]")
                for e in range(4):
                    a(f"v_rcp_f32 v{t+e}, v{t+e}")
                a(f"v_pk_mul_f32 {vp(x)}, {vp(x)}, {vp(t)}")
                a(f"v_pk_mul_f32 {vp(x+2)}, {vp(x+2)}, {vp(t+2)}")
                a(f"v_cvt_pk_bf16_f32 v{t+4}, v{x}, v{x+1}")
                a(f"v_cvt_pk_bf16_f32 v{t+5}, v{x+2}, v{x+3}")
                a(f"v_xor_b32 v{t+6}, {16*(4*nt+q)}, v7")
                a(f"ds_write_b64 v{t+6}, {vp(t+4)} offset:{mt*4096}")
    a("v_lshlrev_b32 v6, 4, v1")
    a("v_add_u32 v6, s37, v6")
    a("v_lshrrev_b32 v8, 3, v1")
    a("v_and_b32 v9, 7, v1")
    a("v_xor_b32 v9, v9, v8")
    a("s_movk_i32 s30, 3584")
    a("v_mul_lo_u32 v8, v8, s30")
    a("v_lshl_add_u32 v8, v9, 4, v8")
    a("s_lshl_b32 s38, s10, 7")
    a("s_lshl_b32 s39, s35, 6")
    a("s_add_u32 s38, s38, s39")
    a("s_mul_i32 s38, s38, 3584")
    a("s_add_u32 s38, s38, s36")
    a("s_waitcnt lgkmcnt(0)")
    for it in range(8):
        a(f"ds_read_b128 {vq(64+4*it)}, v6 offset:{1024*it}")
    for it in range(8):
        a(f"s_waitcnt lgkmcnt({7-it})")
        a(f"buffer_store_dwordx4 {vq(64+4*it)}, v8, s[24:27], s38 offen")
        a(f"s_add_u32 s38, s38, {8*3584}")
    stamp(a, 4)
    a("s_waitcnt vmcnt(0)")
    stamp(a, 5)
    stamp_real(a, 7)
    stamp_dump(a, 12, 8, 3)
    a.label(Lend)
    a("s_endpgm")
    return 160


G2_STAGE = 8192
G2_NST = 5
G2_LDS = G2_STAGE * G2_NST * 4


def gen_g2(a, name, res_off, out_ka, out_off, fz=None, h_off=H_OFF):
    Lend = a.newlabel("Lend")
    if fz is None:
        kernel_header(a, name, "GEMM2 + bias + residual")
        a("s_cmp_ge_u32 s2, 256")
        a(f"s_cbranch_scc1 {Lend}")
        stamp(a, 0)
        stamp_real(a, 6)
        a(f"s_load_dwordx4 s[4:7], s[0:1], {KA_W2}")
        a(f"s_load_dwordx2 s[8:9], s[0:1], {KA_WS}")
        a(f"s_load_dwordx2 s[40:41], s[0:1], {out_ka}")
        a("v_and_b32 v1, 63, v0")
        a("v_lshrrev_b32 v2, 6, v0")
        a("s_nop 0")
        a("v_readfirstlane_b32 s3, v2")
    else:
        a(f"s_mov_b64 s[4:5], {sp(fz['ptr'](KA_W2))}")
        a(f"s_mov_b64 s[6:7], {sp(fz['ptr'](KA_B2))}")
        a(f"s_mov_b64 s[8:9], {sp(fz['ptr'](KA_WS))}")
        a(f"s_mov_b64 s[40:41], {sp(fz['ptr'](out_ka))}")
    a("s_and_b32 s10, s2, 7")
    a("s_lshr_b32 s11, s2, 3")
    a("s_and_b32 s28, s11, 3")
    a("s_lshl_b32 s10, s10, 2")
    a("s_add_u32 s10, s10, s28")
    a("s_lshr_b32 s11, s11, 2")
    a("s_waitcnt lgkmcnt(0)")
    make_srd(a, 12, 4, F * D * 2)
    make_srd(a, 16, 6, D * 2)
    make_srd_off(a, 20, 8, h_off, S * F * 2)
    make_srd_off(a, 24, 8, res_off, S * D * 2)
    if out_off:
        make_srd_off(a, 44, 40, out_off, S * D * 2)
    else:
        make_srd(a, 44, 40, S * D * 2)
    vHd0, vHd1, vWd = 3, 4, 5
    a("v_lshrrev_b32 v6, 3, v1")
    a("s_movk_i32 s30, 3584")
    a("v_mul_lo_u32 v6, v6, s30")
    a("v_and_b32 v7, 7, v1")
    a("v_lshrrev_b32 v8, 4, v1")
    a("v_xor_b32 v7, v7, v8")
    a(f"v_lshl_add_u32 v{vHd0}, v7, 4, v6")
    a("v_xor_b32 v7, 4, v7")
    a(f"v_lshl_add_u32 v{vHd1}, v7, 4, v6")
    a("s_lshl_b32 s28, s10, 6")
    a("s_mul_i32 s28, s28, 3584")
    a("s_mul_i32 s29, s3, 896")
    a("s_add_u32 s28, s28, s29")
    a("v_lshrrev_b32 v6, 3, v1")
    a("v_lshlrev_b32 v6, 10, v6")
    a("v_and_b32 v7, 7, v1")
    a("v_bfe_u32 v8, v1, 4, 1")
    a("v_lshlrev_b32 v8, 2, v8")
    a("v_xor_b32 v7, v7, v8")
    a(f"v_lshl_add_u32 v{vWd}, v7, 4, v6")
    a(f"s_mul_i32 s31, s3, {448*1024}")
    a("s_lshl_b32 s29, s11, 7")
    a("s_add_u32 s31, s31, s29")
    a(f"s_mul_i32 s32, s3, {G2_STAGE*G2_NST}")
    NSTG = 448 // 64
    NU = 2 * NSTG

    scf = " sc1" if (fz is not None and OPT.get("ldsc1", 0)) else ""
    order = []

    def need(u):
        last = max(i for i, t in enumerate(order) if t <= u)
        return len(order) - 1 - last

    def issue_unit(u):
        order.extend([u] * 8)
        slot = u % G2_NST
        st = u >> 1
        for q in range(8):
            a(f"s_add_u32 m0, s32, {slot*G2_STAGE + q*1024}")
            if u & 1 == 0:
                a(f"s_add_u32 s33, s28, {q*8*3584 + st*128}")
                a(f"buffer_load_dwordx4 v{vHd1 if q & 1 else vHd0}, s[20:23], s33 offen{scf} lds")
            else:
                a(f"s_add_u32 s33, s31, {(st*64 + 8*q)*1024}")
                a(f"buffer_load_dwordx4 v{vWd}, s[12:15], s33 offen lds")

    if fz is None:
        for u in range(2):
            issue_unit(u)
    else:
        fz['poll'](a)
        for u in (1, 3):
            issue_unit(u)
    HA = 10
    a("v_and_b32 v6, 31, v1")
    a("v_lshlrev_b32 v6, 7, v6")
    a("v_add_u32 v6, s32, v6")
    a("v_lshrrev_b32 v7, 5, v1")
    a("v_bfe_u32 v8, v1, 1, 3")
    a("v_xor_b32 v7, v7, v8")
    a("v_lshl_add_u32 v6, v7, 4, v6")
    for ks in range(4):
        a(f"v_xor_b32 v{HA+ks}, {32*ks}, v6")
    WA = 14
    a("v_lshrrev_b32 v6, 5, v1")
    a("v_lshlrev_b32 v6, 3, v6")
    a("v_bfe_u32 v7, v1, 2, 2")
    a("v_add_u32 v6, v6, v7")
    a("v_lshlrev_b32 v6, 7, v6")
    a("v_bfe_u32 v8, v1, 4, 1")
    a("v_lshlrev_b32 v8, 1, v8")
    a("v_bfe_u32 v9, v1, 1, 1")
    a("v_add_u32 v8, v8, v9")
    a("v_bfe_u32 v7, v1, 3, 1")
    a("v_lshlrev_b32 v7, 2, v7")
    a("v_xor_b32 v8, v8, v7")
    a("v_lshl_add_u32 v6, v8, 4, v6")
    a("v_and_b32 v9, 1, v1")
    a("v_lshl_add_u32 v6, v9, 3, v6")
    a(f"v_add_u32 v{WA}, s32, v6")
    a(f"v_xor_b32 v{WA+1}, 64, v{WA}")
    ACC = 64
    for i in range(64):
        a(f"v_mov_b32 v{ACC+i}, 0")
    FR = [128, 144]
    if fz is None:
        for u in range(2, G2_NST):
            issue_unit(u)
    else:
        a("s_barrier")
        for u in (0, 2, 4):
            issue_unit(u)

    def rd(st, ks, fs, which):
        f = FR[fs]
        if which[0] == 'W':
            so = ((2 * st + 1) % G2_NST) * G2_STAGE
            nt, h = which[1], which[2]
            a(f"ds_read_b64_tr_b16 {vp(f + 4*nt + 2*h)}, v{WA + nt} offset:{so + (16*ks + 4*h)*128}")
        else:
            so = ((2 * st) % G2_NST) * G2_STAGE
            mt = which[1]
            a(f"ds_read_b128 {vq(f + 8 + 4*mt)}, v{HA + ks} offset:{so + mt*4096}")

    RD_ORDER = [('W', 0, 0), ('W', 0, 1), ('A', 0), ('A', 1), ('W', 1, 0), ('W', 1, 1)]

    def mf(fs, nt, mt):
        f = FR[fs]
        c = ACC + 16 * (2 * nt + mt)
        a(f"v_mfma_f32_32x32x16_bf16 v[{c}:{c+15}], {vq(f + 4*nt)}, {vq(f + 8 + 4*mt)}, v[{c}:{c+15}]")

    stamp(a, 1)
    a(f"s_waitcnt vmcnt({need(1)})")
    stamp(a, 2)
    for w in RD_ORDER:
        rd(0, 0, 0, w)
    fs = 0
    steps = [(st, ks) for st in range(NSTG) for ks in range(4)]
    for i, (st, ks) in enumerate(steps):
        nxt = steps[i + 1] if i + 1 < len(steps) else None
        cross = nxt is not None and nxt[0] != st
        a("s_waitcnt lgkmcnt(3)")
        mf(fs, 0, 0)
        if cross:
            a("s_waitcnt lgkmcnt(2)")
            mf(fs, 0, 1)
            a(f"s_waitcnt vmcnt({need(2*st+3)}) lgkmcnt(0)")
            for w in RD_ORDER[0:4]:
                rd(nxt[0], nxt[1], fs ^ 1, w)
            mf(fs, 1, 0)
            for w in RD_ORDER[4:6]:
                rd(nxt[0], nxt[1], fs ^ 1, w)
            mf(fs, 1, 1)
            for u in (2 * st + 5, 2 * st + 6):
                if u < NU:
                    issue_unit(u)
        elif nxt is not None:
            for w in RD_ORDER[0:2]:
                rd(nxt[0], nxt[1], fs ^ 1, w)
            a("s_waitcnt lgkmcnt(4)")
            mf(fs, 0, 1)
            for w in RD_ORDER[2:4]:
                rd(nxt[0], nxt[1], fs ^ 1, w)
            a("s_waitcnt lgkmcnt(4)")
            mf(fs, 1, 0)
            for w in RD_ORDER[4:6]:
                rd(nxt[0], nxt[1], fs ^ 1, w)
            mf(fs, 1, 1)
        else:
            a("s_waitcnt lgkmcnt(2)")
            mf(fs, 0, 1)
            a("s_waitcnt lgkmcnt(0)")
            mf(fs, 1, 0)
            mf(fs, 1, 1)
        fs ^= 1
    stamp(a, 3)
    RS = 272
    PT = 64 * RS
    a("v_lshrrev_b32 v6, 3, v1")
    a("v_lshlrev_b32 v6, 10, v6")
    a("v_and_b32 v7, 7, v1")
    a("v_lshl_add_u32 v6, v7, 4, v6")
    a("s_lshl_b32 s34, s10, 16")
    a("s_lshl_b32 s35, s3, 14")
    a("s_add_u32 s34, s34, s35")
    a("s_lshl_b32 s35, s11, 7")
    a("s_add_u32 s34, s34, s35")
    a(f"buffer_load_dwordx4 v[16:19], v6, s[24:27], s34 offen{scf}")
    a(f"s_add_u32 s36, s34, 8192")
    a(f"buffer_load_dwordx4 v[20:23], v6, s[24:27], s36 offen{scf}")
    a("v_lshlrev_b32 v8, 4, v7")
    a(f"buffer_load_dwordx4 v[24:27], v8, s[16:19], s35 offen")
    a("s_barrier")
    a(f"s_mul_i32 s37, s3, {PT}")
    a("v_and_b32 v9, 31, v1")
    a(f"v_mul_u32_u24 v9, {RS}, v9")
    a("v_lshrrev_b32 v10, 5, v1")
    a("v_lshl_add_u32 v9, v10, 4, v9")
    a("v_add_u32 v9, s37, v9")
    a("s_nop 7")
    for nt in range(2):
        for mt in range(2):
            c = ACC + 16 * (2 * nt + mt)
            for q in range(4):
                a(f"ds_write_b128 v9, {vq(c+4*q)} offset:{mt*32*RS + (32*nt + 8*q)*4}")
    a("s_waitcnt lgkmcnt(0)")
    a("s_barrier")
    a("v_lshrrev_b32 v9, 3, v1")
    a(f"v_mul_u32_u24 v9, {RS}, v9")
    a("v_lshl_add_u32 v9, v7, 5, v9")
    a(f"s_mul_i32 s37, s3, {16*RS}")
    a("v_add_u32 v9, s37, v9")
    for it in range(2):
        for p in range(4):
            for hh in range(2):
                a(f"ds_read_b128 {vq(64 + 32*it + 8*p + 4*hh)}, v9 offset:{p*PT + it*8*RS + hh*16}")
    a("s_waitcnt vmcnt(0)")
    for d in range(4):
        a(f"v_lshlrev_b32 v{28+2*d}, 16, v{24+d}")
        a(f"v_and_b32 v{29+2*d}, 0xffff0000, v{24+d}")
    a("s_waitcnt lgkmcnt(0)")
    for it in range(2):
        b = 64 + 32 * it
        for e in range(4):
            a(f"v_pk_add_f32 {vp(b+2*e)}, {vp(b+2*e)}, {vp(b+8+2*e)}")
            a(f"v_pk_add_f32 {vp(b+16+2*e)}, {vp(b+16+2*e)}, {vp(b+24+2*e)}")
        for e in range(4):
            a(f"v_pk_add_f32 {vp(b+2*e)}, {vp(b+2*e)}, {vp(b+16+2*e)}")
        for e in range(4):
            round_pair(a, b + 2 * e, 36 + e)
        for e in range(4):
            a(f"v_pk_add_f32 {vp(b+2*e)}, {vp(b+2*e)}, {vp(28+2*e)}")
        for e in range(4):
            round_pair(a, b + 2 * e, 36 + e)
        for e in range(4):
            a(f"v_lshlrev_b32 v{b+8+2*e}, 16, v{16+4*it+e}")
            a(f"v_and_b32 v{b+9+2*e}, 0xffff0000, v{16+4*it+e}")
        for e in range(4):
            a(f"v_pk_add_f32 {vp(b+2*e)}, {vp(b+2*e)}, {vp(b+8+2*e)}")
        for e in range(4):
            a(f"v_cvt_pk_bf16_f32 v{40+4*it+e}, v{b+2*e}, v{b+2*e+1}")
    a(f"buffer_store_dwordx4 v[40:43], v6, s[44:47], s34 offen")
    a(f"buffer_store_dwordx4 v[44:47], v6, s[44:47], s36 offen")
    if fz is not None:
        return 160
    stamp(a, 4)
    a("s_waitcnt vmcnt(0)")
    stamp(a, 5)
    stamp_real(a, 7)
    stamp_dump(a, 8, 8, 4)
    a.label(Lend)
    a("s_endpgm")
    return 160
```

```python
import sys
from common import *
from fft_kernels import *
from gemm_kernels import *
from gemm1_8w import *
from chain import *

def build(extra_triv=0):
    a = Asm()
    descs = []
    launches = []
    def K(name, fn, grid, lds, block=256):
        v = fn()
        descs.append(kernel_desc(name, v))
        return (name, grid, block, lds)
    k1a = K("k1a_kernel", lambda: gen_k1(a, "k1a_kernel", KA_X, 0, True), 256 + WT_WGS + PF_WGS, k1_lds(True))
    if OPT.get("chain", 1):
        k2 = K("k2_kernel", lambda: gen_k2(a, "k2_kernel"), KF, 2 * K2_BUF)
        ca = K("cha_kernel", lambda: gen_chain(a, "cha_kernel", 0), 256, CHAIN_LDS, 512)
        cb = K("chb_kernel", lambda: gen_chain(a, "chb_kernel", 1), 256, CHAIN_LDS, 512)
        return finish(a, descs, [k1a, k2, ca, k2, cb], extra_triv)
    k1b = K("k1b_kernel", lambda: gen_k1(a, "k1b_kernel", KA_WS, X2_OFF, False), 256, k1_lds(False))
    k2 = K("k2_kernel", lambda: gen_k2(a, "k2_kernel"), KF, 2 * K2_BUF)
    k3a = K("k3a_kernel", lambda: gen_k3(a, "k3a_kernel", KA_X, 0, X1_OFF), 256, 4 * WAVE_LDS)
    k3b = K("k3b_kernel", lambda: gen_k3(a, "k3b_kernel", KA_WS, X2_OFF, X3_OFF), 256, 4 * WAVE_LDS)
    if OPT.get("g1_8w", 1):
        g1 = K("g1_kernel", lambda: gen_g1_8w(a, "g1_kernel"), G1_WGS, G1_LDS, 512)
    else:
        g1 = K("g1_kernel", lambda: gen_g1(a, "g1_kernel"), G1_WGS, G1_LDS)
    g2a = K("g2a_kernel", lambda: gen_g2(a, "g2a_kernel", X1_OFF, KA_WS, X2_OFF), 256, G2_LDS)
    g2b = K("g2b_kernel", lambda: gen_g2(a, "g2b_kernel", X3_OFF, KA_OUT, 0), 256, G2_LDS)
    launches = [k1a, k2, k3a, g1, g2a, k1b, k2, k3b, g1, g2b]
    return finish(a, descs, launches, extra_triv)


def finish(a, descs, launches, extra_triv):
    if extra_triv:
        kernel_header(a, "triv_kernel")
        a("s_endpgm")
        descs.append(kernel_desc("triv_kernel", 8, 16))
        launches += [("triv_kernel", 256, 256, 0)] * extra_triv
    emit_tables(a)
    a.label("code_end")
    hdr = []
    for (n, g, b, l) in launches:
        hdr.append(f"; @launch kernel={n} grid=({g},1,1) block=({b},1,1) lds={l}")
    out = "\n".join(hdr) + "\n"
    out += '.amdgcn_target "amdgcn-amd-amdhsa--gfx950"\n.text\n.p2align 8\ncode_start:\n'
    body = a.text()
    sf = OPT.get("stflag", "sc1")
    if sf:
        import re
        body = re.sub(r"(buffer_store_dword\S* [^\n]*)", lambda m: m.group(1) + " " + sf.replace("+", " "), body)
    out += body
    out += '.section .rodata,"a"\n' + "".join(descs)
    return out

if __name__ == "__main__":
    path = sys.argv[1] if len(sys.argv) > 1 else f"cdna_kernels/{NAME}.s"
    extra = int(sys.argv[2]) if len(sys.argv) > 2 else 0
    if len(sys.argv) > 3 and sys.argv[3] == "instr":
        INSTR["on"] = True
    for kv in sys.argv[4:]:
        k, v = kv.split("=")
        OPT[k] = int(v) if v.isdigit() else v
    open(path, "w").write(build(extra))
    print("wrote", path)
```

```python
from common import *

TAB512A = "tab_tw512a"
TAB64 = "tab_tw64"
TAB2048A = "tab_tw2048a"
TAB256 = "tab_tw256"
TAB32 = "tab_tw32"


def emit_tables(a):
    emit_table(a, TAB2048A, tw_table1(2048, 256))


WAVE_LDS = 4768


def fft512_core(a, z, t, tw1, tw2, s_c, sgn, vA_w, vA_r, vB_w, vB_r):
    radix8(a, z, t, s_c, sgn)
    for k in range(1, 8):
        cmul_tw(a, z[k], z[k], tw1 + 2 * k, t[k & 7], sgn)
    for k in range(8):
        a(f"ds_write_b64 v{vA_w}, {vp(z[k])} offset:{72*8*k}")
    a("s_waitcnt lgkmcnt(0)")
    for b in range(8):
        a(f"ds_read_b64 {vp(z[b])}, v{vA_r} offset:{64*b}")
    a("s_waitcnt lgkmcnt(0)")
    radix8(a, z, t, s_c, sgn)
    for k in range(1, 8):
        cmul_tw(a, z[k], z[k], tw2 + 2 * k, t[k & 7], sgn)
    for k in range(8):
        a(f"ds_write_b64 v{vB_w}, {vp(z[k])} offset:{64*k}")
    a("s_waitcnt lgkmcnt(0)")
    for c in range(8):
        a(f"ds_read_b64 {vp(z[c])}, v{vB_r} offset:{66*8*c}")
    a("s_waitcnt lgkmcnt(0)")
    radix8(a, z, t, s_c, sgn)


def fft512_addr(a, vlane, sbase, vA_w, vA_r, vB_w, tmp):
    a(f"v_lshlrev_b32 v{vA_w}, 3, v{vlane}")
    a(f"v_add_u32 v{vA_w}, s{sbase}, v{vA_w}")
    a(f"v_lshrrev_b32 v{tmp}, 3, v{vlane}")
    a(f"v_mul_u32_u24 v{vA_r}, 72, v{tmp}")
    a(f"v_and_b32 v{tmp+1}, 7, v{vlane}")
    a(f"v_add_u32 v{vA_r}, v{vA_r}, v{tmp+1}")
    a(f"v_lshlrev_b32 v{vA_r}, 3, v{vA_r}")
    a(f"v_add_u32 v{vA_r}, s{sbase}, v{vA_r}")
    a(f"v_mul_u32_u24 v{vB_w}, 66, v{tmp+1}")
    a(f"v_add_u32 v{vB_w}, v{vB_w}, v{tmp}")
    a(f"v_lshlrev_b32 v{vB_w}, 3, v{vB_w}")
    a(f"v_add_u32 v{vB_w}, s{sbase}, v{vB_w}")


WT_ROWS = 32
WT_WGS = S // WT_ROWS
PF_WGS = 64


def gen_k1(a, name, src_ka, src_off, with_wt, fz=None):
    Lend = a.newlabel("Lend")
    Lwt = a.newlabel("Lwt")
    if fz is None:
        kernel_header(a, name, "LN + row rFFT")
        nwg = 256 + (WT_WGS + PF_WGS if with_wt else 0)
        a(f"s_cmp_ge_u32 s2, {nwg}")
        a(f"s_cbranch_scc1 {Lend}")
        stamp(a, 0)
        stamp_real(a, 6)
        a(f"s_load_dwordx2 s[4:5], s[0:1], {src_ka}")
        a(f"s_load_dwordx2 s[6:7], s[0:1], {KA_WS}")
        if with_wt:
            a(f"s_load_dwordx4 s[24:27], s[0:1], {KA_WR}")
        a("v_and_b32 v1, 63, v0")
        a("v_lshrrev_b32 v2, 6, v0")
        a("s_nop 0")
        a("v_readfirstlane_b32 s3, v2")
    make_tab_srd(a, 16, TAB2048A, 2048)
    a(f"s_mov_b32 s20, 0x{f2u(math.sqrt(0.5)):08x}")
    a("s_mov_b32 s21, s20")
    a(f"s_mov_b32 s22, 0x{f2u(1.0/512):08x}")
    a("s_mov_b32 s23, s22")
    a("s_waitcnt lgkmcnt(0)")
    if fz is not None:
        a(f"s_mov_b64 s[4:5], {sp(fz['ptr'](src_ka))}")
        a(f"s_mov_b64 s[6:7], {sp(fz['ptr'](KA_WS))}")
    if src_off:
        make_srd_off(a, 8, 4, src_off, S * D * 2)
    else:
        make_srd(a, 8, 4, S * D * 2)
    make_srd(a, 12, 6, WS_BYTES)
    if with_wt:
        a("s_cmp_ge_u32 s2, 256")
        a(f"s_cbranch_scc1 {Lwt}")
    Z = [10 + 2 * j for j in range(8)]
    T = [26 + 2 * j for j in range(8)]
    RA, RB = 42, 46
    TW1, TW2 = 50, 66
    ST = [82, 83, 84, 85]
    TMP = list(range(86, 96))
    vA_w, vA_r, vB_w, vX = 96, 97, 98, 99
    vI_w0, vI_r = 100, 101
    a("s_lshl_b32 s28, s2, 13")
    a("s_lshl_b32 s29, s3, 11")
    a("s_add_u32 s28, s28, s29")
    a("v_lshlrev_b32 v3, 4, v1")
    a("v_add_u32 v3, s28, v3")
    if fz is not None:
        fz['poll'](a)
    else:
        a(f"buffer_load_dwordx4 {vq(RA)}, v3, s[8:11], 0 offen")
        a(f"buffer_load_dwordx4 {vq(RB)}, v3, s[8:11], 0 offen offset:1024")
    a("v_lshlrev_b32 v4, 5, v1")
    a(f"buffer_load_dwordx2 {vp(TW1+2)}, v4, s[16:19], 0 offen")
    a("v_and_b32 v5, 7, v1")
    a("v_lshlrev_b32 v5, 8, v5")
    a(f"buffer_load_dwordx2 {vp(TW2+2)}, v5, s[16:19], 0 offen")
    if fz is not None:
        a("s_barrier")
        a(f"buffer_load_dwordx4 {vq(RA)}, v3, s[8:11], 0 offen sc1")
        a(f"buffer_load_dwordx4 {vq(RB)}, v3, s[8:11], 0 offen offset:1024 sc1")
    a(f"s_mul_i32 s30, s3, {WAVE_LDS}")
    fft512_addr(a, 1, 30, vA_w, vA_r, vB_w, TMP[0])
    a(f"v_lshrrev_b32 v{TMP[0]}, 1, v1")
    a(f"v_lshlrev_b32 v{TMP[1]}, 6, v1")
    a(f"v_add_u32 v{TMP[1]}, s30, v{TMP[1]}")
    for c in range(4):
        a(f"v_add_u32 v{TMP[2]}, {c}, v{TMP[0]}")
        a(f"v_and_b32 v{TMP[2]}, 3, v{TMP[2]}")
        a(f"v_lshlrev_b32 v{TMP[2]}, 4, v{TMP[2]}")
        a(f"v_add_u32 v{102+c}, v{TMP[1]}, v{TMP[2]}")
    a(f"v_lshrrev_b32 v{TMP[0]}, 3, v1")
    a(f"v_lshlrev_b32 v{TMP[0]}, 6, v{TMP[0]}")
    a(f"v_bfe_u32 v{TMP[1]}, v1, 1, 2")
    a(f"v_lshrrev_b32 v{TMP[2]}, 4, v1")
    a(f"v_add_u32 v{TMP[1]}, v{TMP[1]}, v{TMP[2]}")
    a(f"v_and_b32 v{TMP[1]}, 3, v{TMP[1]}")
    a(f"v_lshlrev_b32 v{TMP[1]}, 4, v{TMP[1]}")
    a(f"v_and_b32 v{TMP[2]}, 1, v1")
    a(f"v_lshlrev_b32 v{TMP[2]}, 3, v{TMP[2]}")
    a(f"v_add3_u32 v{vI_r}, v{TMP[0]}, v{TMP[1]}, v{TMP[2]}")
    a(f"v_add_u32 v{vI_r}, s30, v{vI_r}")
    stamp(a, 8)
    a("s_waitcnt vmcnt(0)")
    stamp(a, 1)
    tw_powers(a, TW1, T[0])
    tw_powers(a, TW2, T[0])
    for j in range(8):
        if j & 1:
            a(f"v_and_b32 v{Z[j]}, 0xffff0000, v{RA + (j >> 1)}")
            a(f"v_and_b32 v{Z[j]+1}, 0xffff0000, v{RB + (j >> 1)}")
        else:
            a(f"v_lshlrev_b32 v{Z[j]}, 16, v{RA + (j >> 1)}")
            a(f"v_lshlrev_b32 v{Z[j]+1}, 16, v{RB + (j >> 1)}")
    layernorm_pairs(a, Z, TMP, ST, 22, 44)
    for c in range(4):
        a(f"ds_write_b128 v{102+c}, {vq(Z[2*c])}")
    a("s_waitcnt lgkmcnt(0)")
    for j in range(8):
        a(f"ds_read_b64 {vp(Z[j])}, v{vI_r} offset:{512*j}")
    a("s_waitcnt vmcnt(0) lgkmcnt(0)")
    stamp(a, 2)
    fft512_core(a, Z, T, TW1, TW2, 20, +1, vA_w, vA_r, vB_w, vA_w)
    stamp(a, 3)
    for k in range(8):
        a(f"ds_write_b64 v{vA_w}, {vp(Z[k])} offset:{512*k}")
    a("v_cmp_eq_u32 vcc, 0, v1")
    a("s_and_saveexec_b64 s[34:35], vcc")
    a(f"ds_write_b64 v{vA_w}, {vp(Z[0])} offset:{512*8}")
    a("s_mov_b64 exec, s[34:35]")
    a(f"v_sub_u32 v{vX}, 256, v1")
    a(f"v_lshlrev_b32 v{vX}, 3, v{vX}")
    a(f"v_add_u32 v{vX}, s30, v{vX}")
    a("s_waitcnt lgkmcnt(0)")
    for k in range(5):
        a(f"ds_read_b64 {vp(T[k])}, v{vX} offset:{(256-64*k)*8}")
    STG = 4 * WAVE_LDS
    a("v_and_b32 v3, 3, v1")
    a("v_xor_b32 v3, s3, v3")
    a("v_lshlrev_b32 v3, 4, v3")
    a("v_lshl_add_u32 v3, v1, 6, v3")
    a("s_waitcnt lgkmcnt(0)")
    O = [TW1 + 4 * k for k in range(5)]
    for k in range(5):
        a(f"v_pk_add_f32 {vp(O[k])}, {vp(Z[k])}, {vp(T[k])} neg_hi:[0,1]")
        a(f"v_pk_add_f32 {vp(O[k]+2)}, {vp(Z[k])}, {vp(T[k])} op_sel:[1,1] op_sel_hi:[0,0] neg_hi:[1,0]")
    for k in range(4):
        a(f"ds_write_b128 v3, {vq(O[k])} offset:{STG + 4096*k}")
    a("s_and_saveexec_b64 s[34:35], vcc")
    a(f"ds_write_b128 v3, {vq(O[4])} offset:{STG + 4096*4}")
    a("s_mov_b64 exec, s[34:35]")
    a("v_lshlrev_b32 v4, 4, v0")
    a("v_lshrrev_b32 v5, 2, v0")
    a("v_xor_b32 v6, v5, v0")
    a("v_and_b32 v6, 3, v6")
    a("v_lshlrev_b32 v6, 4, v6")
    a(f"v_mul_u32_u24 v5, {T1_PITCH}, v5")
    a("v_add_u32 v6, v5, v6")
    a("s_lshl_b32 s28, s2, 6")
    a("s_waitcnt lgkmcnt(0)")
    a("s_barrier")
    for k in range(4):
        a(f"ds_read_b128 {vq(Z[2*k])}, v4 offset:{STG + 4096*k}")
    a("v_cmp_gt_u32 vcc, 4, v0")
    a("s_and_saveexec_b64 s[34:35], vcc")
    a(f"ds_read_b128 {vq(T[0])}, v4 offset:{STG + 4096*4}")
    a("s_mov_b64 exec, s[34:35]")
    for k in range(4):
        a(f"s_add_u32 s29, s28, 0x{T1_OFF + k*64*T1_PITCH:x}")
        a(f"s_waitcnt lgkmcnt({4-k})")
        a(f"buffer_store_dwordx4 {vq(Z[2*k])}, v6, s[12:15], s29 offen")
    a("s_waitcnt lgkmcnt(0)")
    a("s_mov_b64 exec, vcc")
    Lsk = a.newlabel("Lsk")
    a(f"s_cbranch_execz {Lsk}")
    a(f"s_add_u32 s29, s28, 0x{T1_OFF + 4*64*T1_PITCH:x}")
    a(f"buffer_store_dwordx4 {vq(T[0])}, v6, s[12:15], s29 offen")
    a.label(Lsk)
    if fz is not None:
        a("s_mov_b64 exec, -1")
        return 106
    stamp(a, 4)
    if INSTR["on"]:
        a("s_waitcnt vmcnt(0)")
    stamp(a, 5)
    stamp_real(a, 7)
    stamp_dump(a, 12, 6, 0 if with_wt else 5)
    a("s_endpgm")
    if with_wt:
        a.label(Lwt)
        gen_wt(a)
    a.label(Lend)
    a("s_endpgm")
    return 106


def gen_wt(a):
    nb = WT_ROWS * KF * 2
    nch = nb // 16
    assert nb % 16 == 0
    Lnpf = a.newlabel("Lnpf")
    a(f"s_cmp_lt_u32 s2, {256 + WT_WGS}")
    a(f"s_cbranch_scc1 {Lnpf}")
    a(f"s_load_dwordx2 s[36:37], s[0:1], {KA_W1}")
    a(f"s_load_dwordx2 s[40:41], s[0:1], {KA_W2}")
    a(f"s_sub_u32 s28, s2, {256 + WT_WGS}")
    per = D * F * 2 // PF_WGS
    a(f"s_mul_i32 s29, s28, {per}")
    a("v_lshlrev_b32 v3, 4, v0")
    a("s_waitcnt lgkmcnt(0)")
    make_srd(a, 36, 36, D * F * 2)
    make_srd(a, 40, 40, D * F * 2)
    for r in range(per // 4096):
        a(f"buffer_load_dwordx4 {vq(10+8*r)}, v3, s[36:39], s29 offen")
        a(f"buffer_load_dwordx4 {vq(14+8*r)}, v3, s[40:43], s29 offen")
        a("s_add_u32 s29, s29, 4096")
    a("s_waitcnt vmcnt(0)")
    a("s_endpgm")
    a.label(Lnpf)
    make_srd(a, 36, 24, S * KF * 2)
    make_srd(a, 40, 26, S * KF * 2)
    a("s_sub_u32 s28, s2, 256")
    Lz = a.newlabel("Lz")
    a("s_cmp_lg_u32 s28, 0")
    a(f"s_cbranch_scc1 {Lz}")
    a("v_cmp_gt_u32 vcc, 128, v0")
    a("s_and_saveexec_b64 s[34:35], vcc")
    a(f"s_cbranch_execz {Lz}r")
    a("v_lshlrev_b32 v3, 8, v0")
    a("v_mov_b32 v4, 0")
    a(f"s_mov_b32 s29, 0x{CNT_OFF:x}")
    a("buffer_store_dword v4, v3, s[12:15], s29 offen")
    a.label(Lz + "r")
    a("s_mov_b64 exec, s[34:35]")
    a.label(Lz)
    a(f"s_mul_i32 s29, s28, {nb}")
    a("v_lshlrev_b32 v3, 4, v0")
    nr = (nch + 255) // 256
    LB = ((nb + 4096 + 15) // 16) * 16
    for r in range(nr):
        a(f"buffer_load_dwordx4 {vq(10+8*r)}, v3, s[36:39], s29 offen offset:{0}")
        a(f"buffer_load_dwordx4 {vq(14+8*r)}, v3, s[40:43], s29 offen offset:{0}")
        a(f"s_add_u32 s29, s29, 4096")
    for r in range(nr):
        a(f"s_waitcnt vmcnt({2*(nr-1-r)})")
        a(f"ds_write_b128 v3, {vq(10+8*r)} offset:{4096*r}")
        a(f"ds_write_b128 v3, {vq(14+8*r)} offset:{LB+4096*r}")
    a("s_waitcnt lgkmcnt(0)")
    a("s_barrier")
    a("v_and_b32 v4, 31, v0")
    a("v_lshrrev_b32 v5, 5, v0")
    a(f"v_mul_u32_u24 v6, {KF*2}, v4")
    a("v_lshl_add_u32 v6, v5, 1, v6")
    a("v_lshlrev_b32 v7, 13, v5")
    a("v_lshl_add_u32 v7, v4, 2, v7")
    a(f"s_lshl_b32 s29, s28, {int(math.log2(WT_ROWS*4))}")
    a(f"s_add_u32 s29, s29, 0x{WT_OFF:x}")
    n_i = 33
    G = 11
    for i0 in range(0, n_i, G):
        for i in range(i0, min(i0 + G, n_i)):
            r = 10 + 2 * (i - i0)
            a(f"ds_read_u16 v{r}, v6 offset:{16*i}")
            a(f"ds_read_u16 v{r+1}, v6 offset:{LB+16*i}")
        a("s_waitcnt lgkmcnt(0)")
        for i in range(i0, min(i0 + G, n_i)):
            r = 10 + 2 * (i - i0)
            a(f"v_lshl_or_b32 v{r}, v{r+1}, 16, v{r}")
            if i == 32:
                a("v_cmp_gt_u32 vcc, 32, v0")
                a("s_and_saveexec_b64 s[34:35], vcc")
            a(f"buffer_store_dword v{r}, v7, s[12:15], s29 offen")
            a(f"s_add_u32 s29, s29, {8*8192}")
    a("s_endpgm")
    return LB + nb + 4096


def k1_lds(with_wt):
    nb = WT_ROWS * KF * 2
    LB = ((nb + 4096 + 15) // 16) * 16
    w = LB + 5 * 4096
    return max(4 * WAVE_LDS + 257 * 64, w if with_wt else 0)


K2_BUF = 18432


def gen_k2(a, name):
    kernel_header(a, name, "column FFT * W, inverse column FFT")
    Lend = a.newlabel("Lend")
    a(f"s_cmp_ge_u32 s2, {KF}")
    a(f"s_cbranch_scc1 {Lend}")
    stamp(a, 0)
    stamp_real(a, 6)
    a(f"s_load_dwordx2 s[6:7], s[0:1], {KA_WS}")
    make_tab_srd(a, 16, TAB2048A, 2048)
    a(f"s_mov_b32 s20, 0x{f2u(math.sqrt(0.5)):08x}")
    a("s_mov_b32 s21, s20")
    a("s_waitcnt lgkmcnt(0)")
    make_srd(a, 12, 6, WS_BYTES)
    Z = [10 + 2 * j for j in range(8)]
    T = [26 + 2 * j for j in range(8)]
    TW1, TW2, TW3 = 42, 58, 74
    WV = 90
    v1w, v1r, v2w, v2r, v3w, v3r = 98, 99, 100, 101, 102, 103
    a(f"s_mul_i32 s28, s2, {T1_PITCH}")
    a(f"s_add_u32 s28, s28, 0x{T1_OFF:x}")
    a("v_lshlrev_b32 v3, 3, v0")
    for jj in range(4):
        a(f"s_add_u32 s{36+jj}, s28, {4096*jj}")
    for j in range(8):
        a(f"buffer_load_dwordx2 {vp(Z[j])}, v3, s[12:15], s{36+(j>>1)} offen offset:{2048*(j&1)}")
    a(f"buffer_load_dwordx2 {vp(TW1+2)}, v3, s[16:19], 0 offen")
    a("v_and_b32 v5, 31, v0")
    a("v_lshlrev_b32 v5, 6, v5")
    a(f"buffer_load_dwordx2 {vp(TW2+2)}, v5, s[16:19], 0 offen")
    a("v_and_b32 v5, 3, v0")
    a("v_lshlrev_b32 v5, 9, v5")
    a(f"buffer_load_dwordx2 {vp(TW3+2)}, v5, s[16:19], 0 offen")
    a("s_lshl_b32 s29, s2, 13")
    a(f"s_add_u32 s29, s29, 0x{WT_OFF:x}")
    a("v_lshlrev_b32 v6, 2, v0")
    a("s_add_u32 s30, s29, 4096")
    for j in range(8):
        a(f"buffer_load_dword v{WV+j}, v6, s[12:15], s{29+(j>>2)} offen offset:{1024*(j&3)}")
    a(f"v_lshlrev_b32 v{v1w}, 3, v0")
    a("v_lshrrev_b32 v7, 5, v0")
    a("v_and_b32 v8, 31, v0")
    a("v_lshl_add_u32 v9, v7, 8, v8")
    a(f"v_lshlrev_b32 v{v1r}, 3, v9")
    a("v_mul_u32_u24 v9, 288, v7")
    a("v_add_u32 v8, v9, v8")
    a(f"v_lshlrev_b32 v{v2w}, 3, v8")
    a("v_bfe_u32 v8, v0, 2, 3")
    a("v_mul_u32_u24 v8, 36, v8")
    a("v_add_u32 v9, v9, v8")
    a("v_and_b32 v8, 3, v0")
    a("v_add_u32 v9, v9, v8")
    a(f"v_lshlrev_b32 v{v2r}, 3, v9")
    a("v_lshlrev_b32 v9, 2, v7")
    a("v_bfe_u32 v7, v0, 2, 2")
    a("v_add_u32 v9, v9, v7")
    a("v_bfe_u32 v7, v0, 4, 1")
    a("v_lshl_add_u32 v9, v7, 5, v9")
    a("v_mul_u32_u24 v8, 68, v8")
    a("v_add_u32 v9, v9, v8")
    a(f"v_lshlrev_b32 v{v3w}, 3, v9")
    a("v_and_b32 v7, 7, v0")
    a("v_lshlrev_b32 v9, 2, v7")
    a("v_bfe_u32 v7, v0, 3, 2")
    a("v_add_u32 v9, v9, v7")
    a("v_bfe_u32 v7, v0, 5, 1")
    a("v_lshl_add_u32 v9, v7, 5, v9")
    a("v_lshrrev_b32 v7, 6, v0")
    a("v_mul_u32_u24 v7, 272, v7")
    a("v_add_u32 v9, v9, v7")
    a(f"v_lshlrev_b32 v{v3r}, 3, v9")

    bufsel = [0]

    def fft2048(sgn, first):
        def nb():
            b = bufsel[0] * K2_BUF
            bufsel[0] ^= 1
            return b
        radix8(a, Z, T, 20, sgn)
        for k in range(1, 8):
            cmul_tw(a, Z[k], Z[k], TW1 + 2 * k, T[k], sgn)
        b = nb()
        for k in range(8):
            a(f"ds_write_b64 v{v1w}, {vp(Z[k])} offset:{b + 2048*k}")
        a("s_waitcnt lgkmcnt(0)")
        a("s_barrier")
        for j in range(8):
            a(f"ds_read_b64 {vp(Z[j])}, v{v1r} offset:{b + 256*j}")
        a("s_waitcnt lgkmcnt(0)")
        radix8(a, Z, T, 20, sgn)
        for k in range(1, 8):
            cmul_tw(a, Z[k], Z[k], TW2 + 2 * k, T[k], sgn)
        b = nb()
        for k in range(8):
            a(f"ds_write_b64 v{v2w}, {vp(Z[k])} offset:{b + 36*8*k}")
        a("s_waitcnt lgkmcnt(0)")
        a("s_barrier")
        for c in range(8):
            a(f"ds_read_b64 {vp(Z[c])}, v{v2r} offset:{b + 32*c}")
        a("s_waitcnt lgkmcnt(0)")
        radix8(a, Z, T, 20, sgn)
        for k in range(1, 8):
            cmul_tw(a, Z[k], Z[k], TW3 + 2 * k, T[k], sgn)
        b = nb()
        for k in range(8):
            a(f"ds_write_b64 v{v3w}, {vp(Z[k])} offset:{b + 272*8*k}")
        a("s_waitcnt lgkmcnt(0)")
        a("s_barrier")
        for hi in range(2):
            for n in range(4):
                a(f"ds_read_b64 {vp(Z[hi + 2*n])}, v{v3r} offset:{b + (68*n + 272*4*hi)*8}")
        a("s_waitcnt lgkmcnt(0)")
        radix4(a, [Z[0], Z[2], Z[4], Z[6]], T[0:4], sgn)
        radix4(a, [Z[1], Z[3], Z[5], Z[7]], T[4:8], sgn)

    stamp(a, 8)
    a("s_waitcnt vmcnt(8)")
    tw_powers(a, TW1, T[0])
    tw_powers(a, TW2, T[0])
    tw_powers(a, TW3, T[0])
    stamp(a, 1)
    fft2048(+1, True)
    stamp(a, 2)
    a("s_waitcnt vmcnt(0)")
    for j in range(8):
        w = T[j ^ 1]
        a(f"v_lshlrev_b32 v{w}, 16, v{WV+j}")
        a(f"v_and_b32 v{w+1}, 0xffff0000, v{WV+j}")
        cmul_tw(a, Z[j], Z[j], w, T[j], +1)
    fft2048(-1, False)
    stamp(a, 3)
    a("v_lshrrev_b32 v4, 3, v0")
    a(f"v_mul_u32_u24 v4, {T2_PITCH}, v4")
    a("v_and_b32 v5, 7, v0")
    a("v_lshl_add_u32 v4, v5, 3, v4")
    a("s_lshl_b32 s28, s2, 6")
    for j in range(8):
        a(f"s_add_u32 s29, s28, 0x{T2_OFF + 32*j*T2_PITCH:x}")
        a(f"buffer_store_dwordx2 {vp(Z[j])}, v4, s[12:15], s29 offen")
    stamp(a, 4)
    if INSTR["on"]:
        a("s_waitcnt vmcnt(0)")
    stamp(a, 5)
    stamp_real(a, 7)
    stamp_dump(a, 12, 6, 1)
    a.label(Lend)
    a("s_endpgm")
    return 104


def gen_k3(a, name, res_ka, res_off, x_out_off, fz=None, xn_off=XN_OFF):
    Lend = a.newlabel("Lend")
    if fz is None:
        kernel_header(a, name, "row irFFT + residual + LN")
        a("s_cmp_ge_u32 s2, 256")
        a(f"s_cbranch_scc1 {Lend}")
        stamp(a, 0)
        stamp_real(a, 6)
        a(f"s_load_dwordx2 s[4:5], s[0:1], {res_ka}")
        a(f"s_load_dwordx2 s[6:7], s[0:1], {KA_WS}")
        a("v_and_b32 v1, 63, v0")
        a("v_lshrrev_b32 v2, 6, v0")
        a("s_nop 0")
        a("v_readfirstlane_b32 s3, v2")
    make_tab_srd(a, 16, TAB2048A, 2048)
    a(f"s_mov_b32 s20, 0x{f2u(math.sqrt(0.5)):08x}")
    a("s_mov_b32 s21, s20")
    a(f"s_mov_b32 s22, 0x{f2u(1.0/512):08x}")
    a("s_mov_b32 s23, s22")
    a(f"s_mov_b32 s24, 0x{f2u(1.0/(2*2048*512)):08x}")
    a("s_mov_b32 s25, s24")
    a("s_waitcnt lgkmcnt(0)")
    if fz is not None:
        a(f"s_mov_b64 s[4:5], {sp(fz['ptr'](res_ka))}")
        a(f"s_mov_b64 s[6:7], {sp(fz['ptr'](KA_WS))}")
    if res_off:
        make_srd_off(a, 8, 4, res_off, S * D * 2)
    else:
        make_srd(a, 8, 4, S * D * 2)
    make_srd(a, 12, 6, WS_BYTES)
    Z = [10 + 2 * j for j in range(8)]
    T = [26 + 2 * j for j in range(8)]
    RA, RB = 42, 46
    TW1, TW2 = 50, 66
    ST = [82, 83, 84, 85]
    TMP = list(range(86, 96))
    vA_w, vA_r, vB_w, vX = 96, 97, 98, 99
    IN = [104 + 4 * q for q in range(5)]
    a("v_lshrrev_b32 v7, 2, v0")
    a("v_and_b32 v8, 3, v0")
    a("v_lshlrev_b32 v3, 4, v0")
    a(f"s_mul_i32 s28, s2, {T2_PITCH}")
    for q in range(4):
        a(f"s_add_u32 s29, s28, 0x{T2_OFF + q*4096:x}")
        a(f"buffer_load_dwordx4 {vq(IN[q])}, v3, s[12:15], s29 offen")
    a("v_cmp_gt_u32 vcc, 4, v0")
    a("s_and_saveexec_b64 s[34:35], vcc")
    a(f"s_add_u32 s29, s28, 0x{T2_OFF + 4*4096:x}")
    a(f"buffer_load_dwordx4 {vq(IN[4])}, v3, s[12:15], s29 offen")
    a("s_mov_b64 exec, s[34:35]")
    a("v_lshlrev_b32 v4, 5, v1")
    a(f"buffer_load_dwordx2 {vp(TW1+2)}, v4, s[16:19], 0 offen")
    a("v_and_b32 v5, 7, v1")
    a("v_lshlrev_b32 v5, 8, v5")
    a(f"buffer_load_dwordx2 {vp(TW2+2)}, v5, s[16:19], 0 offen")
    a("s_lshl_b32 s28, s2, 13")
    a("s_lshl_b32 s29, s3, 11")
    a("s_add_u32 s28, s28, s29")
    a("v_lshlrev_b32 v6, 4, v1")
    a("v_add_u32 v6, s28, v6")
    a(f"buffer_load_dwordx4 {vq(RA)}, v6, s[8:11], 0 offen")
    a(f"buffer_load_dwordx4 {vq(RB)}, v6, s[8:11], 0 offen offset:1024")
    a(f"s_mul_i32 s30, s3, {WAVE_LDS}")
    fft512_addr(a, 1, 30, vA_w, vA_r, vB_w, TMP[0])
    a(f"v_mul_u32_u24 v8, {WAVE_LDS}, v8")
    a("v_lshl_add_u32 v9, v7, 3, v8")
    a("v_sub_u32 v7, 256, v7")
    a(f"v_lshl_add_u32 v{vX}, v7, 3, v8")
    stamp(a, 8)
    a("s_waitcnt vmcnt(2)")
    stamp(a, 1)
    tw_powers(a, TW1, T[6])
    tw_powers(a, TW2, T[6])
    a("s_mov_b64 exec, vcc")
    for q in (0, 4):
        a(f"v_mov_b32 v{IN[q]+1}, 0")
        a(f"v_mov_b32 v{IN[q]+3}, 0")
    a(f"v_pk_add_f32 {vp(T[4])}, {vp(IN[4])}, {vp(IN[4]+2)} op_sel:[0,1] op_sel_hi:[1,0] neg_lo:[0,1]")
    a(f"ds_write_b64 v9, {vp(T[4])} offset:2048")
    a("s_mov_b64 exec, s[34:35]")
    for q in range(4):
        a(f"v_pk_add_f32 {vp(Z[q])}, {vp(IN[q])}, {vp(IN[q]+2)} op_sel:[0,1] op_sel_hi:[1,0] neg_lo:[0,1]")
        a(f"v_pk_add_f32 {vp(T[q])}, {vp(IN[q])}, {vp(IN[q]+2)} op_sel:[0,1] op_sel_hi:[1,0] neg_hi:[1,0]")
        a(f"ds_write_b64 v9, {vp(Z[q])} offset:{512*q}")
        a(f"ds_write_b64 v{vX}, {vp(T[q])} offset:{(256-64*q)*8}")
    a("s_waitcnt lgkmcnt(0)")
    a("s_barrier")
    for j in range(8):
        a(f"ds_read_b64 {vp(Z[j])}, v{vA_w} offset:{512*j}")
    a("s_waitcnt lgkmcnt(0)")
    stamp(a, 2)
    fft512_core(a, Z, T, TW1, TW2, 20, -1, vA_w, vA_r, vB_w, vA_w)
    stamp(a, 3)
    for par in range(2):
        a(f"v_bfe_u32 v{TMP[0]}, v1, 1, 2")
        a(f"v_lshrrev_b32 v{TMP[1]}, 5, v1")
        a(f"v_add3_u32 v{TMP[0]}, v{TMP[0]}, v{TMP[1]}, {2*par}")
        a(f"v_and_b32 v{TMP[0]}, 3, v{TMP[0]}")
        a(f"v_lshlrev_b32 v{TMP[0]}, 4, v{TMP[0]}")
        a(f"v_lshrrev_b32 v{TMP[1]}, 3, v1")
        a(f"v_lshl_add_u32 v{TMP[0]}, v{TMP[1]}, 6, v{TMP[0]}")
        a(f"v_and_b32 v{TMP[1]}, 1, v1")
        a(f"v_lshl_add_u32 v{TMP[0]}, v{TMP[1]}, 3, v{TMP[0]}")
        a(f"v_add_u32 v{100+par}, s30, v{TMP[0]}")
    for j in range(8):
        a(f"ds_write_b64 v{100+(j&1)}, {vp(Z[j])} offset:{512*j}")
    a(f"v_lshrrev_b32 v{TMP[0]}, 2, v1")
    a(f"v_lshlrev_b32 v{TMP[1]}, 6, v1")
    a(f"v_add_u32 v{TMP[1]}, s30, v{TMP[1]}")
    for c in range(4):
        a(f"v_add_u32 v{TMP[2]}, {c}, v{TMP[0]}")
        a(f"v_and_b32 v{TMP[2]}, 3, v{TMP[2]}")
        a(f"v_lshlrev_b32 v{TMP[2]}, 4, v{TMP[2]}")
        a(f"v_add_u32 v{T[c]}, v{TMP[1]}, v{TMP[2]}")
    a("s_waitcnt lgkmcnt(0)")
    for c in range(4):
        a(f"ds_read_b128 {vq(Z[2*c])}, v{T[c]}")
    a("s_waitcnt vmcnt(0) lgkmcnt(0)")
    for j in range(8):
        a(f"v_pk_mul_f32 {vp(Z[j])}, {vp(Z[j])}, s[24:25]")
    for j in range(8):
        a(f"v_cvt_pk_bf16_f32 v{TMP[j]}, v{Z[j]}, v{Z[j]+1}")
    for j in range(8):
        a(f"v_lshlrev_b32 v{Z[j]}, 16, v{TMP[j]}")
        a(f"v_and_b32 v{Z[j]+1}, 0xffff0000, v{TMP[j]}")
    for j in range(8):
        if j & 1:
            a(f"v_and_b32 v{T[j]}, 0xffff0000, v{RA + (j >> 1)}")
            a(f"v_and_b32 v{T[j]+1}, 0xffff0000, v{RB + (j >> 1)}")
        else:
            a(f"v_lshlrev_b32 v{T[j]}, 16, v{RA + (j >> 1)}")
            a(f"v_lshlrev_b32 v{T[j]+1}, 16, v{RB + (j >> 1)}")
    for j in range(8):
        a(f"v_pk_add_f32 {vp(Z[j])}, {vp(Z[j])}, {vp(T[j])}")
    for jj in range(4):
        a(f"v_cvt_pk_bf16_f32 v{RA+jj}, v{Z[2*jj]}, v{Z[2*jj+1]}")
        a(f"v_cvt_pk_bf16_f32 v{RB+jj}, v{Z[2*jj]+1}, v{Z[2*jj+1]+1}")
    a(f"s_mov_b32 s29, 0x{x_out_off:x}")
    a(f"buffer_store_dwordx4 {vq(RA)}, v6, s[12:15], s29 offen")
    a(f"buffer_store_dwordx4 {vq(RB)}, v6, s[12:15], s29 offen offset:1024")
    for j in range(8):
        if j & 1:
            a(f"v_and_b32 v{Z[j]}, 0xffff0000, v{RA + (j >> 1)}")
            a(f"v_and_b32 v{Z[j]+1}, 0xffff0000, v{RB + (j >> 1)}")
        else:
            a(f"v_lshlrev_b32 v{Z[j]}, 16, v{RA + (j >> 1)}")
            a(f"v_lshlrev_b32 v{Z[j]+1}, 16, v{RB + (j >> 1)}")
    layernorm_pairs(a, Z, TMP, ST, 22, 44)
    O1, O2 = T[0], T[2]
    for jj in range(4):
        a(f"v_cvt_pk_bf16_f32 v{O1+jj}, v{Z[2*jj]}, v{Z[2*jj+1]}")
        a(f"v_cvt_pk_bf16_f32 v{O2+jj}, v{Z[2*jj]+1}, v{Z[2*jj+1]+1}")
    a(f"s_mov_b32 s29, 0x{xn_off:x}")
    a(f"buffer_store_dwordx4 {vq(O1)}, v6, s[12:15], s29 offen")
    a(f"buffer_store_dwordx4 {vq(O2)}, v6, s[12:15], s29 offen offset:1024")
    if fz is not None:
        return 124
    stamp(a, 4)
    if INSTR["on"]:
        a("s_waitcnt vmcnt(0)")
    stamp(a, 5)
    stamp_real(a, 7)
    stamp_dump(a, 12, 6, 2)
    a.label(Lend)
    a("s_endpgm")
    return 124
```

```python
from common import *

TAB512A = "tab_tw512a"
TAB64 = "tab_tw64"
TAB2048A = "tab_tw2048a"
TAB256 = "tab_tw256"
TAB32 = "tab_tw32"


def emit_tables(a):
    emit_table(a, TAB2048A, tw_table1(2048, 256))


WAVE_LDS = 4768


def fft512_core(a, z, t, tw1, tw2, s_c, sgn, vA_w, vA_r, vB_w, vB_r):
    radix8(a, z, t, s_c, sgn)
    for k in range(1, 8):
        cmul_tw(a, z[k], z[k], tw1 + 2 * k, t[k & 7], sgn)
    for k in range(8):
        a(f"ds_write_b64 v{vA_w}, {vp(z[k])} offset:{72*8*k}")
    a("s_waitcnt lgkmcnt(0)")
    for b in range(8):
        a(f"ds_read_b64 {vp(z[b])}, v{vA_r} offset:{64*b}")
    a("s_waitcnt lgkmcnt(0)")
    radix8(a, z, t, s_c, sgn)
    for k in range(1, 8):
        cmul_tw(a, z[k], z[k], tw2 + 2 * k, t[k & 7], sgn)
    for k in range(8):
        a(f"ds_write_b64 v{vB_w}, {vp(z[k])} offset:{64*k}")
    a("s_waitcnt lgkmcnt(0)")
    for c in range(8):
        a(f"ds_read_b64 {vp(z[c])}, v{vB_r} offset:{66*8*c}")
    a("s_waitcnt lgkmcnt(0)")
    radix8(a, z, t, s_c, sgn)


def fft512_addr(a, vlane, sbase, vA_w, vA_r, vB_w, tmp):
    a(f"v_lshlrev_b32 v{vA_w}, 3, v{vlane}")
    a(f"v_add_u32 v{vA_w}, s{sbase}, v{vA_w}")
    a(f"v_lshrrev_b32 v{tmp}, 3, v{vlane}")
    a(f"v_mul_u32_u24 v{vA_r}, 72, v{tmp}")
    a(f"v_and_b32 v{tmp+1}, 7, v{vlane}")
    a(f"v_add_u32 v{vA_r}, v{vA_r}, v{tmp+1}")
    a(f"v_lshlrev_b32 v{vA_r}, 3, v{vA_r}")
    a(f"v_add_u32 v{vA_r}, s{sbase}, v{vA_r}")
    a(f"v_mul_u32_u24 v{vB_w}, 66, v{tmp+1}")
    a(f"v_add_u32 v{vB_w}, v{vB_w}, v{tmp}")
    a(f"v_lshlrev_b32 v{vB_w}, 3, v{vB_w}")
    a(f"v_add_u32 v{vB_w}, s{sbase}, v{vB_w}")


WT_ROWS = 32
WT_WGS = S // WT_ROWS
PF_WGS = 64


def gen_k1(a, name, src_ka, src_off, with_wt, fz=None):
    Lend = a.newlabel("Lend")
    Lwt = a.newlabel("Lwt")
    if fz is None:
        kernel_header(a, name, "LN + row rFFT")
        nwg = 256 + (WT_WGS + PF_WGS if with_wt else 0)
        a(f"s_cmp_ge_u32 s2, {nwg}")
        a(f"s_cbranch_scc1 {Lend}")
        stamp(a, 0)
        stamp_real(a, 6)
        a(f"s_load_dwordx2 s[4:5], s[0:1], {src_ka}")
        a(f"s_load_dwordx2 s[6:7], s[0:1], {KA_WS}")
        if with_wt:
            a(f"s_load_dwordx4 s[24:27], s[0:1], {KA_WR}")
        a("v_and_b32 v1, 63, v0")
        a("v_lshrrev_b32 v2, 6, v0")
        a("s_nop 0")
        a("v_readfirstlane_b32 s3, v2")
    make_tab_srd(a, 16, TAB2048A, 2048)
    a(f"s_mov_b32 s20, 0x{f2u(math.sqrt(0.5)):08x}")
    a("s_mov_b32 s21, s20")
    a(f"s_mov_b32 s22, 0x{f2u(1.0/512):08x}")
    a("s_mov_b32 s23, s22")
    a("s_waitcnt lgkmcnt(0)")
    if fz is not None:
        a(f"s_mov_b64 s[4:5], {sp(fz['ptr'](src_ka))}")
        a(f"s_mov_b64 s[6:7], {sp(fz['ptr'](KA_WS))}")
    if src_off:
        make_srd_off(a, 8, 4, src_off, S * D * 2)
    else:
        make_srd(a, 8, 4, S * D * 2)
    make_srd(a, 12, 6, WS_BYTES)
    if with_wt:
        a("s_cmp_ge_u32 s2, 256")
        a(f"s_cbranch_scc1 {Lwt}")
    Z = [10 + 2 * j for j in range(8)]
    T = [26 + 2 * j for j in range(8)]
    RA, RB = 42, 46
    TW1, TW2 = 50, 66
    ST = [82, 83, 84, 85]
    TMP = list(range(86, 96))
    vA_w, vA_r, vB_w, vX = 96, 97, 98, 99
    vI_w0, vI_r = 100, 101
    a("s_lshl_b32 s28, s2, 13")
    a("s_lshl_b32 s29, s3, 11")
    a("s_add_u32 s28, s28, s29")
    a("v_lshlrev_b32 v3, 4, v1")
    a("v_add_u32 v3, s28, v3")
    if fz is not None:
        fz['poll'](a)
    else:
        a(f"buffer_load_dwordx4 {vq(RA)}, v3, s[8:11], 0 offen")
        a(f"buffer_load_dwordx4 {vq(RB)}, v3, s[8:11], 0 offen offset:1024")
    a("v_lshlrev_b32 v4, 5, v1")
    a(f"buffer_load_dwordx2 {vp(TW1+2)}, v4, s[16:19], 0 offen")
    a("v_and_b32 v5, 7, v1")
    a("v_lshlrev_b32 v5, 8, v5")
    a(f"buffer_load_dwordx2 {vp(TW2+2)}, v5, s[16:19], 0 offen")
    if fz is not None:
        a("s_barrier")
        a(f"buffer_load_dwordx4 {vq(RA)}, v3, s[8:11], 0 offen sc1")
        a(f"buffer_load_dwordx4 {vq(RB)}, v3, s[8:11], 0 offen offset:1024 sc1")
    a(f"s_mul_i32 s30, s3, {WAVE_LDS}")
    fft512_addr(a, 1, 30, vA_w, vA_r, vB_w, TMP[0])
    a(f"v_lshrrev_b32 v{TMP[0]}, 1, v1")
    a(f"v_lshlrev_b32 v{TMP[1]}, 6, v1")
    a(f"v_add_u32 v{TMP[1]}, s30, v{TMP[1]}")
    for c in range(4):
        a(f"v_add_u32 v{TMP[2]}, {c}, v{TMP[0]}")
        a(f"v_and_b32 v{TMP[2]}, 3, v{TMP[2]}")
        a(f"v_lshlrev_b32 v{TMP[2]}, 4, v{TMP[2]}")
        a(f"v_add_u32 v{102+c}, v{TMP[1]}, v{TMP[2]}")
    a(f"v_lshrrev_b32 v{TMP[0]}, 3, v1")
    a(f"v_lshlrev_b32 v{TMP[0]}, 6, v{TMP[0]}")
    a(f"v_bfe_u32 v{TMP[1]}, v1, 1, 2")
    a(f"v_lshrrev_b32 v{TMP[2]}, 4, v1")
    a(f"v_add_u32 v{TMP[1]}, v{TMP[1]}, v{TMP[2]}")
    a(f"v_and_b32 v{TMP[1]}, 3, v{TMP[1]}")
    a(f"v_lshlrev_b32 v{TMP[1]}, 4, v{TMP[1]}")
    a(f"v_and_b32 v{TMP[2]}, 1, v1")
    a(f"v_lshlrev_b32 v{TMP[2]}, 3, v{TMP[2]}")
    a(f"v_add3_u32 v{vI_r}, v{TMP[0]}, v{TMP[1]}, v{TMP[2]}")
    a(f"v_add_u32 v{vI_r}, s30, v{vI_r}")
    stamp(a, 8)
    a("s_waitcnt vmcnt(0)")
    stamp(a, 1)
    tw_powers(a, TW1, T[0])
    tw_powers(a, TW2, T[0])
    for j in range(8):
        if j & 1:
            a(f"v_and_b32 v{Z[j]}, 0xffff0000, v{RA + (j >> 1)}")
            a(f"v_and_b32 v{Z[j]+1}, 0xffff0000, v{RB + (j >> 1)}")
        else:
            a(f"v_lshlrev_b32 v{Z[j]}, 16, v{RA + (j >> 1)}")
            a(f"v_lshlrev_b32 v{Z[j]+1}, 16, v{RB + (j >> 1)}")
    layernorm_pairs(a, Z, TMP, ST, 22, 44)
    for c in range(4):
        a(f"ds_write_b128 v{102+c}, {vq(Z[2*c])}")
    a("s_waitcnt lgkmcnt(0)")
    for j in range(8):
        a(f"ds_read_b64 {vp(Z[j])}, v{vI_r} offset:{512*j}")
    a("s_waitcnt vmcnt(0) lgkmcnt(0)")
    stamp(a, 2)
    fft512_core(a, Z, T, TW1, TW2, 20, +1, vA_w, vA_r, vB_w, vA_w)
    stamp(a, 3)
    for k in range(8):
        a(f"ds_write_b64 v{vA_w}, {vp(Z[k])} offset:{512*k}")
    a("v_cmp_eq_u32 vcc, 0, v1")
    a("s_and_saveexec_b64 s[34:35], vcc")
    a(f"ds_write_b64 v{vA_w}, {vp(Z[0])} offset:{512*8}")
    a("s_mov_b64 exec, s[34:35]")
    a(f"v_sub_u32 v{vX}, 256, v1")
    a(f"v_lshlrev_b32 v{vX}, 3, v{vX}")
    a(f"v_add_u32 v{vX}, s30, v{vX}")
    a("s_waitcnt lgkmcnt(0)")
    for k in range(5):
        a(f"ds_read_b64 {vp(T[k])}, v{vX} offset:{(256-64*k)*8}")
    STG = 4 * WAVE_LDS
    a("v_and_b32 v3, 3, v1")
    a("v_xor_b32 v3, s3, v3")
    a("v_lshlrev_b32 v3, 4, v3")
    a("v_lshl_add_u32 v3, v1, 6, v3")
    a("s_waitcnt lgkmcnt(0)")
    O = [TW1 + 4 * k for k in range(5)]
    for k in range(5):
        a(f"v_pk_add_f32 {vp(O[k])}, {vp(Z[k])}, {vp(T[k])} neg_hi:[0,1]")
        a(f"v_pk_add_f32 {vp(O[k]+2)}, {vp(Z[k])}, {vp(T[k])} op_sel:[1,1] op_sel_hi:[0,0] neg_hi:[1,0]")
    for k in range(4):
        a(f"ds_write_b128 v3, {vq(O[k])} offset:{STG + 4096*k}")
    a("s_and_saveexec_b64 s[34:35], vcc")
    a(f"ds_write_b128 v3, {vq(O[4])} offset:{STG + 4096*4}")
    a("s_mov_b64 exec, s[34:35]")
    a("v_lshlrev_b32 v4, 4, v0")
    a("v_lshrrev_b32 v5, 2, v0")
    a("v_xor_b32 v6, v5, v0")
    a("v_and_b32 v6, 3, v6")
    a("v_lshlrev_b32 v6, 4, v6")
    a(f"v_mul_u32_u24 v5, {T1_PITCH}, v5")
    a("v_add_u32 v6, v5, v6")
    a("s_lshl_b32 s28, s2, 6")
    a("s_waitcnt lgkmcnt(0)")
    a("s_barrier")
    for k in range(4):
        a(f"ds_read_b128 {vq(Z[2*k])}, v4 offset:{STG + 4096*k}")
    a("v_cmp_gt_u32 vcc, 4, v0")
    a("s_and_saveexec_b64 s[34:35], vcc")
    a(f"ds_read_b128 {vq(T[0])}, v4 offset:{STG + 4096*4}")
    a("s_mov_b64 exec, s[34:35]")
    for k in range(4):
        a(f"s_add_u32 s29, s28, 0x{T1_OFF + k*64*T1_PITCH:x}")
        a(f"s_waitcnt lgkmcnt({4-k})")
        a(f"buffer_store_dwordx4 {vq(Z[2*k])}, v6, s[12:15], s29 offen")
    a("s_waitcnt lgkmcnt(0)")
    a("s_mov_b64 exec, vcc")
    Lsk = a.newlabel("Lsk")
    a(f"s_cbranch_execz {Lsk}")
    a(f"s_add_u32 s29, s28, 0x{T1_OFF + 4*64*T1_PITCH:x}")
    a(f"buffer_store_dwordx4 {vq(T[0])}, v6, s[12:15], s29 offen")
    a.label(Lsk)
    if fz is not None:
        a("s_mov_b64 exec, -1")
        return 106
    stamp(a, 4)
    if INSTR["on"]:
        a("s_waitcnt vmcnt(0)")
    stamp(a, 5)
    stamp_real(a, 7)
    stamp_dump(a, 12, 6, 0 if with_wt else 5)
    a("s_endpgm")
    if with_wt:
        a.label(Lwt)
        gen_wt(a)
    a.label(Lend)
    a("s_endpgm")
    return 106


def gen_wt(a):
    nb = WT_ROWS * KF * 2
    nch = nb // 16
    assert nb % 16 == 0
    Lnpf = a.newlabel("Lnpf")
    a(f"s_cmp_lt_u32 s2, {256 + WT_WGS}")
    a(f"s_cbranch_scc1 {Lnpf}")
    a(f"s_load_dwordx2 s[36:37], s[0:1], {KA_W1}")
    a(f"s_load_dwordx2 s[40:41], s[0:1], {KA_W2}")
    a(f"s_sub_u32 s28, s2, {256 + WT_WGS}")
    per = D * F * 2 // PF_WGS
    a(f"s_mul_i32 s29, s28, {per}")
    a("v_lshlrev_b32 v3, 4, v0")
    a("s_waitcnt lgkmcnt(0)")
    make_srd(a, 36, 36, D * F * 2)
    make_srd(a, 40, 40, D * F * 2)
    for r in range(per // 4096):
        a(f"buffer_load_dwordx4 {vq(10+8*r)}, v3, s[36:39], s29 offen")
        a(f"buffer_load_dwordx4 {vq(14+8*r)}, v3, s[40:43], s29 offen")
        a("s_add_u32 s29, s29, 4096")
    if OPT.get("pfcode", 1):
        l = a.newlabel("Lpc")
        a("s_getpc_b64 s[44:45]")
        a.label(l)
        a(f"s_sub_u32 s44, s44, {l}-code_start")
        a("s_subb_u32 s45, s45, 0")
        a("s_and_b32 s45, s45, 0xffff")
        a("s_mov_b32 s46, code_end-code_start")
        a("s_mov_b32 s47, 0x00020000")
        a("s_lshl_b32 s29, s28, 11")
        a("v_lshlrev_b32 v3, 3, v0")
        a("buffer_load_dwordx2 v[4:5], v3, s[44:47], s29 offen")
    a("s_waitcnt vmcnt(0)")
    a("s_endpgm")
    a.label(Lnpf)
    make_srd(a, 36, 24, S * KF * 2)
    make_srd(a, 40, 26, S * KF * 2)
    a("s_sub_u32 s28, s2, 256")
    Lz = a.newlabel("Lz")
    a("s_cmp_lg_u32 s28, 0")
    a(f"s_cbranch_scc1 {Lz}")
    a("v_cmp_gt_u32 vcc, 128, v0")
    a("s_and_saveexec_b64 s[34:35], vcc")
    a(f"s_cbranch_execz {Lz}r")
    a("v_lshlrev_b32 v3, 8, v0")
    a("v_mov_b32 v4, 0")
    a(f"s_mov_b32 s29, 0x{CNT_OFF:x}")
    a("buffer_store_dword v4, v3, s[12:15], s29 offen")
    a.label(Lz + "r")
    a("s_mov_b64 exec, s[34:35]")
    a.label(Lz)
    a(f"s_mul_i32 s29, s28, {nb}")
    a("v_lshlrev_b32 v3, 4, v0")
    nr = (nch + 255) // 256
    LB = ((nb + 4096 + 15) // 16) * 16
    for r in range(nr):
        a(f"buffer_load_dwordx4 {vq(10+8*r)}, v3, s[36:39], s29 offen offset:{0}")
        a(f"buffer_load_dwordx4 {vq(14+8*r)}, v3, s[40:43], s29 offen offset:{0}")
        a(f"s_add_u32 s29, s29, 4096")
    for r in range(nr):
        a(f"s_waitcnt vmcnt({2*(nr-1-r)})")
        a(f"ds_write_b128 v3, {vq(10+8*r)} offset:{4096*r}")
        a(f"ds_write_b128 v3, {vq(14+8*r)} offset:{LB+4096*r}")
    a("s_waitcnt lgkmcnt(0)")
    a("s_barrier")
    a("v_and_b32 v4, 31, v0")
    a("v_lshrrev_b32 v5, 5, v0")
    a(f"v_mul_u32_u24 v6, {KF*2}, v4")
    a("v_lshl_add_u32 v6, v5, 1, v6")
    a("v_lshlrev_b32 v7, 13, v5")
    a("v_lshl_add_u32 v7, v4, 2, v7")
    a(f"s_lshl_b32 s29, s28, {int(math.log2(WT_ROWS*4))}")
    a(f"s_add_u32 s29, s29, 0x{WT_OFF:x}")
    n_i = 33
    G = 11
    for i0 in range(0, n_i, G):
        for i in range(i0, min(i0 + G, n_i)):
            r = 10 + 2 * (i - i0)
            a(f"ds_read_u16 v{r}, v6 offset:{16*i}")
            a(f"ds_read_u16 v{r+1}, v6 offset:{LB+16*i}")
        a("s_waitcnt lgkmcnt(0)")
        for i in range(i0, min(i0 + G, n_i)):
            r = 10 + 2 * (i - i0)
            a(f"v_lshl_or_b32 v{r}, v{r+1}, 16, v{r}")
            if i == 32:
                a("v_cmp_gt_u32 vcc, 32, v0")
                a("s_and_saveexec_b64 s[34:35], vcc")
            a(f"buffer_store_dword v{r}, v7, s[12:15], s29 offen")
            a(f"s_add_u32 s29, s29, {8*8192}")
    a("s_endpgm")
    return LB + nb + 4096


def k1_lds(with_wt):
    nb = WT_ROWS * KF * 2
    LB = ((nb + 4096 + 15) // 16) * 16
    w = LB + 5 * 4096
    return max(4 * WAVE_LDS + 257 * 64, w if with_wt else 0)


K2_BUF = 18432


def gen_k2(a, name):
    kernel_header(a, name, "column FFT * W, inverse column FFT")
    Lend = a.newlabel("Lend")
    a(f"s_cmp_ge_u32 s2, {KF}")
    a(f"s_cbranch_scc1 {Lend}")
    stamp(a, 0)
    stamp_real(a, 6)
    a(f"s_load_dwordx2 s[6:7], s[0:1], {KA_WS}")
    make_tab_srd(a, 16, TAB2048A, 2048)
    a(f"s_mov_b32 s20, 0x{f2u(math.sqrt(0.5)):08x}")
    a("s_mov_b32 s21, s20")
    a("s_waitcnt lgkmcnt(0)")
    make_srd(a, 12, 6, WS_BYTES)
    Z = [10 + 2 * j for j in range(8)]
    T = [26 + 2 * j for j in range(8)]
    TW1, TW2, TW3 = 42, 58, 74
    WV = 90
    v1w, v1r, v2w, v2r, v3w, v3r = 98, 99, 100, 101, 102, 103
    a(f"s_mul_i32 s28, s2, {T1_PITCH}")
    a(f"s_add_u32 s28, s28, 0x{T1_OFF:x}")
    a("v_lshlrev_b32 v3, 3, v0")
    for jj in range(4):
        a(f"s_add_u32 s{36+jj}, s28, {4096*jj}")
    for j in range(8):
        a(f"buffer_load_dwordx2 {vp(Z[j])}, v3, s[12:15], s{36+(j>>1)} offen offset:{2048*(j&1)}")
    a(f"buffer_load_dwordx2 {vp(TW1+2)}, v3, s[16:19], 0 offen")
    a("v_and_b32 v5, 31, v0")
    a("v_lshlrev_b32 v5, 6, v5")
    a(f"buffer_load_dwordx2 {vp(TW2+2)}, v5, s[16:19], 0 offen")
    a("v_and_b32 v5, 3, v0")
    a("v_lshlrev_b32 v5, 9, v5")
    a(f"buffer_load_dwordx2 {vp(TW3+2)}, v5, s[16:19], 0 offen")
    a("s_lshl_b32 s29, s2, 13")
    a(f"s_add_u32 s29, s29, 0x{WT_OFF:x}")
    a("v_lshlrev_b32 v6, 2, v0")
    a("s_add_u32 s30, s29, 4096")
    for j in range(8):
        a(f"buffer_load_dword v{WV+j}, v6, s[12:15], s{29+(j>>2)} offen offset:{1024*(j&3)}")
    a(f"v_lshlrev_b32 v{v1w}, 3, v0")
    a("v_lshrrev_b32 v7, 5, v0")
    a("v_and_b32 v8, 31, v0")
    a("v_lshl_add_u32 v9, v7, 8, v8")
    a(f"v_lshlrev_b32 v{v1r}, 3, v9")
    a("v_mul_u32_u24 v9, 288, v7")
    a("v_add_u32 v8, v9, v8")
    a(f"v_lshlrev_b32 v{v2w}, 3, v8")
    a("v_bfe_u32 v8, v0, 2, 3")
    a("v_mul_u32_u24 v8, 36, v8")
    a("v_add_u32 v9, v9, v8")
    a("v_and_b32 v8, 3, v0")
    a("v_add_u32 v9, v9, v8")
    a(f"v_lshlrev_b32 v{v2r}, 3, v9")
    a("v_lshlrev_b32 v9, 2, v7")
    a("v_bfe_u32 v7, v0, 2, 2")
    a("v_add_u32 v9, v9, v7")
    a("v_bfe_u32 v7, v0, 4, 1")
    a("v_lshl_add_u32 v9, v7, 5, v9")
    a("v_mul_u32_u24 v8, 68, v8")
    a("v_add_u32 v9, v9, v8")
    a(f"v_lshlrev_b32 v{v3w}, 3, v9")
    a("v_and_b32 v7, 7, v0")
    a("v_lshlrev_b32 v9, 2, v7")
    a("v_bfe_u32 v7, v0, 3, 2")
    a("v_add_u32 v9, v9, v7")
    a("v_bfe_u32 v7, v0, 5, 1")
    a("v_lshl_add_u32 v9, v7, 5, v9")
    a("v_lshrrev_b32 v7, 6, v0")
    a("v_mul_u32_u24 v7, 272, v7")
    a("v_add_u32 v9, v9, v7")
    a(f"v_lshlrev_b32 v{v3r}, 3, v9")

    bufsel = [0]

    def fft2048(sgn, first):
        def nb():
            b = bufsel[0] * K2_BUF
            bufsel[0] ^= 1
            return b
        radix8(a, Z, T, 20, sgn)
        for k in range(1, 8):
            cmul_tw(a, Z[k], Z[k], TW1 + 2 * k, T[k], sgn)
        b = nb()
        for k in range(8):
            a(f"ds_write_b64 v{v1w}, {vp(Z[k])} offset:{b + 2048*k}")
        a("s_waitcnt lgkmcnt(0)")
        a("s_barrier")
        for j in range(8):
            a(f"ds_read_b64 {vp(Z[j])}, v{v1r} offset:{b + 256*j}")
        a("s_waitcnt lgkmcnt(0)")
        radix8(a, Z, T, 20, sgn)
        for k in range(1, 8):
            cmul_tw(a, Z[k], Z[k], TW2 + 2 * k, T[k], sgn)
        b = nb()
        for k in range(8):
            a(f"ds_write_b64 v{v2w}, {vp(Z[k])} offset:{b + 36*8*k}")
        a("s_waitcnt lgkmcnt(0)")
        a("s_barrier")
        for c in range(8):
            a(f"ds_read_b64 {vp(Z[c])}, v{v2r} offset:{b + 32*c}")
        a("s_waitcnt lgkmcnt(0)")
        radix8(a, Z, T, 20, sgn)
        for k in range(1, 8):
            cmul_tw(a, Z[k], Z[k], TW3 + 2 * k, T[k], sgn)
        b = nb()
        for k in range(8):
            a(f"ds_write_b64 v{v3w}, {vp(Z[k])} offset:{b + 272*8*k}")
        a("s_waitcnt lgkmcnt(0)")
        a("s_barrier")
        for hi in range(2):
            for n in range(4):
                a(f"ds_read_b64 {vp(Z[hi + 2*n])}, v{v3r} offset:{b + (68*n + 272*4*hi)*8}")
        a("s_waitcnt lgkmcnt(0)")
        radix4(a, [Z[0], Z[2], Z[4], Z[6]], T[0:4], sgn)
        radix4(a, [Z[1], Z[3], Z[5], Z[7]], T[4:8], sgn)

    stamp(a, 8)
    a("s_waitcnt vmcnt(8)")
    tw_powers(a, TW1, T[0])
    tw_powers(a, TW2, T[0])
    tw_powers(a, TW3, T[0])
    stamp(a, 1)
    fft2048(+1, True)
    stamp(a, 2)
    a("s_waitcnt vmcnt(0)")
    for j in range(8):
        w = T[j ^ 1]
        a(f"v_lshlrev_b32 v{w}, 16, v{WV+j}")
        a(f"v_and_b32 v{w+1}, 0xffff0000, v{WV+j}")
        cmul_tw(a, Z[j], Z[j], w, T[j], +1)
    fft2048(-1, False)
    stamp(a, 3)
    a("v_lshrrev_b32 v4, 3, v0")
    a(f"v_mul_u32_u24 v4, {T2_PITCH}, v4")
    a("v_and_b32 v5, 7, v0")
    a("v_lshl_add_u32 v4, v5, 3, v4")
    a("s_lshl_b32 s28, s2, 6")
    for j in range(8):
        a(f"s_add_u32 s29, s28, 0x{T2_OFF + 32*j*T2_PITCH:x}")
        a(f"buffer_store_dwordx2 {vp(Z[j])}, v4, s[12:15], s29 offen")
    stamp(a, 4)
    if INSTR["on"]:
        a("s_waitcnt vmcnt(0)")
    stamp(a, 5)
    stamp_real(a, 7)
    stamp_dump(a, 12, 6, 1)
    a.label(Lend)
    a("s_endpgm")
    return 104


def gen_k3(a, name, res_ka, res_off, x_out_off, fz=None, xn_off=XN_OFF):
    Lend = a.newlabel("Lend")
    if fz is None:
        kernel_header(a, name, "row irFFT + residual + LN")
        a("s_cmp_ge_u32 s2, 256")
        a(f"s_cbranch_scc1 {Lend}")
        stamp(a, 0)
        stamp_real(a, 6)
        a(f"s_load_dwordx2 s[4:5], s[0:1], {res_ka}")
        a(f"s_load_dwordx2 s[6:7], s[0:1], {KA_WS}")
        a("v_and_b32 v1, 63, v0")
        a("v_lshrrev_b32 v2, 6, v0")
        a("s_nop 0")
        a("v_readfirstlane_b32 s3, v2")
    make_tab_srd(a, 16, TAB2048A, 2048)
    a(f"s_mov_b32 s20, 0x{f2u(math.sqrt(0.5)):08x}")
    a("s_mov_b32 s21, s20")
    a(f"s_mov_b32 s22, 0x{f2u(1.0/512):08x}")
    a("s_mov_b32 s23, s22")
    a(f"s_mov_b32 s24, 0x{f2u(1.0/(2*2048*512)):08x}")
    a("s_mov_b32 s25, s24")
    a("s_waitcnt lgkmcnt(0)")
    if fz is not None:
        a(f"s_mov_b64 s[4:5], {sp(fz['ptr'](res_ka))}")
        a(f"s_mov_b64 s[6:7], {sp(fz['ptr'](KA_WS))}")
    if res_off:
        make_srd_off(a, 8, 4, res_off, S * D * 2)
    else:
        make_srd(a, 8, 4, S * D * 2)
    make_srd(a, 12, 6, WS_BYTES)
    Z = [10 + 2 * j for j in range(8)]
    T = [26 + 2 * j for j in range(8)]
    RA, RB = 42, 46
    TW1, TW2 = 50, 66
    ST = [82, 83, 84, 85]
    TMP = list(range(86, 96))
    vA_w, vA_r, vB_w, vX = 96, 97, 98, 99
    IN = [104 + 4 * q for q in range(5)]
    a("v_lshrrev_b32 v7, 2, v0")
    a("v_and_b32 v8, 3, v0")
    a("v_lshlrev_b32 v3, 4, v0")
    a(f"s_mul_i32 s28, s2, {T2_PITCH}")
    for q in range(4):
        a(f"s_add_u32 s29, s28, 0x{T2_OFF + q*4096:x}")
        a(f"buffer_load_dwordx4 {vq(IN[q])}, v3, s[12:15], s29 offen")
    a("v_cmp_gt_u32 vcc, 4, v0")
    a("s_and_saveexec_b64 s[34:35], vcc")
    a(f"s_add_u32 s29, s28, 0x{T2_OFF + 4*4096:x}")
    a(f"buffer_load_dwordx4 {vq(IN[4])}, v3, s[12:15], s29 offen")
    a("s_mov_b64 exec, s[34:35]")
    a("v_lshlrev_b32 v4, 5, v1")
    a(f"buffer_load_dwordx2 {vp(TW1+2)}, v4, s[16:19], 0 offen")
    a("v_and_b32 v5, 7, v1")
    a("v_lshlrev_b32 v5, 8, v5")
    a(f"buffer_load_dwordx2 {vp(TW2+2)}, v5, s[16:19], 0 offen")
    a("s_lshl_b32 s28, s2, 13")
    a("s_lshl_b32 s29, s3, 11")
    a("s_add_u32 s28, s28, s29")
    a("v_lshlrev_b32 v6, 4, v1")
    a("v_add_u32 v6, s28, v6")
    a(f"buffer_load_dwordx4 {vq(RA)}, v6, s[8:11], 0 offen")
    a(f"buffer_load_dwordx4 {vq(RB)}, v6, s[8:11], 0 offen offset:1024")
    a(f"s_mul_i32 s30, s3, {WAVE_LDS}")
    fft512_addr(a, 1, 30, vA_w, vA_r, vB_w, TMP[0])
    a(f"v_mul_u32_u24 v8, {WAVE_LDS}, v8")
    a("v_lshl_add_u32 v9, v7, 3, v8")
    a("v_sub_u32 v7, 256, v7")
    a(f"v_lshl_add_u32 v{vX}, v7, 3, v8")
    stamp(a, 8)
    a("s_waitcnt vmcnt(2)")
    stamp(a, 1)
    tw_powers(a, TW1, T[6])
    tw_powers(a, TW2, T[6])
    a("s_mov_b64 exec, vcc")
    for q in (0, 4):
        a(f"v_mov_b32 v{IN[q]+1}, 0")
        a(f"v_mov_b32 v{IN[q]+3}, 0")
    a(f"v_pk_add_f32 {vp(T[4])}, {vp(IN[4])}, {vp(IN[4]+2)} op_sel:[0,1] op_sel_hi:[1,0] neg_lo:[0,1]")
    a(f"ds_write_b64 v9, {vp(T[4])} offset:2048")
    a("s_mov_b64 exec, s[34:35]")
    for q in range(4):
        a(f"v_pk_add_f32 {vp(Z[q])}, {vp(IN[q])}, {vp(IN[q]+2)} op_sel:[0,1] op_sel_hi:[1,0] neg_lo:[0,1]")
        a(f"v_pk_add_f32 {vp(T[q])}, {vp(IN[q])}, {vp(IN[q]+2)} op_sel:[0,1] op_sel_hi:[1,0] neg_hi:[1,0]")
        a(f"ds_write_b64 v9, {vp(Z[q])} offset:{512*q}")
        a(f"ds_write_b64 v{vX}, {vp(T[q])} offset:{(256-64*q)*8}")
    a("s_waitcnt lgkmcnt(0)")
    a("s_barrier")
    for j in range(8):
        a(f"ds_read_b64 {vp(Z[j])}, v{vA_w} offset:{512*j}")
    a("s_waitcnt lgkmcnt(0)")
    stamp(a, 2)
    fft512_core(a, Z, T, TW1, TW2, 20, -1, vA_w, vA_r, vB_w, vA_w)
    stamp(a, 3)
    for par in range(2):
        a(f"v_bfe_u32 v{TMP[0]}, v1, 1, 2")
        a(f"v_lshrrev_b32 v{TMP[1]}, 5, v1")
        a(f"v_add3_u32 v{TMP[0]}, v{TMP[0]}, v{TMP[1]}, {2*par}")
        a(f"v_and_b32 v{TMP[0]}, 3, v{TMP[0]}")
        a(f"v_lshlrev_b32 v{TMP[0]}, 4, v{TMP[0]}")
        a(f"v_lshrrev_b32 v{TMP[1]}, 3, v1")
        a(f"v_lshl_add_u32 v{TMP[0]}, v{TMP[1]}, 6, v{TMP[0]}")
        a(f"v_and_b32 v{TMP[1]}, 1, v1")
        a(f"v_lshl_add_u32 v{TMP[0]}, v{TMP[1]}, 3, v{TMP[0]}")
        a(f"v_add_u32 v{100+par}, s30, v{TMP[0]}")
    for j in range(8):
        a(f"ds_write_b64 v{100+(j&1)}, {vp(Z[j])} offset:{512*j}")
    a(f"v_lshrrev_b32 v{TMP[0]}, 2, v1")
    a(f"v_lshlrev_b32 v{TMP[1]}, 6, v1")
    a(f"v_add_u32 v{TMP[1]}, s30, v{TMP[1]}")
    for c in range(4):
        a(f"v_add_u32 v{TMP[2]}, {c}, v{TMP[0]}")
        a(f"v_and_b32 v{TMP[2]}, 3, v{TMP[2]}")
        a(f"v_lshlrev_b32 v{TMP[2]}, 4, v{TMP[2]}")
        a(f"v_add_u32 v{T[c]}, v{TMP[1]}, v{TMP[2]}")
    a("s_waitcnt lgkmcnt(0)")
    for c in range(4):
        a(f"ds_read_b128 {vq(Z[2*c])}, v{T[c]}")
    a("s_waitcnt vmcnt(0) lgkmcnt(0)")
    for j in range(8):
        a(f"v_pk_mul_f32 {vp(Z[j])}, {vp(Z[j])}, s[24:25]")
    for j in range(8):
        a(f"v_cvt_pk_bf16_f32 v{TMP[j]}, v{Z[j]}, v{Z[j]+1}")
    for j in range(8):
        a(f"v_lshlrev_b32 v{Z[j]}, 16, v{TMP[j]}")
        a(f"v_and_b32 v{Z[j]+1}, 0xffff0000, v{TMP[j]}")
    for j in range(8):
        if j & 1:
            a(f"v_and_b32 v{T[j]}, 0xffff0000, v{RA + (j >> 1)}")
            a(f"v_and_b32 v{T[j]+1}, 0xffff0000, v{RB + (j >> 1)}")
        else:
            a(f"v_lshlrev_b32 v{T[j]}, 16, v{RA + (j >> 1)}")
            a(f"v_lshlrev_b32 v{T[j]+1}, 16, v{RB + (j >> 1)}")
    for j in range(8):
        a(f"v_pk_add_f32 {vp(Z[j])}, {vp(Z[j])}, {vp(T[j])}")
    for jj in range(4):
        a(f"v_cvt_pk_bf16_f32 v{RA+jj}, v{Z[2*jj]}, v{Z[2*jj+1]}")
        a(f"v_cvt_pk_bf16_f32 v{RB+jj}, v{Z[2*jj]+1}, v{Z[2*jj+1]+1}")
    a(f"s_mov_b32 s29, 0x{x_out_off:x}")
    a(f"buffer_store_dwordx4 {vq(RA)}, v6, s[12:15], s29 offen")
    a(f"buffer_store_dwordx4 {vq(RB)}, v6, s[12:15], s29 offen offset:1024")
    for j in range(8):
        if j & 1:
            a(f"v_and_b32 v{Z[j]}, 0xffff0000, v{RA + (j >> 1)}")
            a(f"v_and_b32 v{Z[j]+1}, 0xffff0000, v{RB + (j >> 1)}")
        else:
            a(f"v_lshlrev_b32 v{Z[j]}, 16, v{RA + (j >> 1)}")
            a(f"v_lshlrev_b32 v{Z[j]+1}, 16, v{RB + (j >> 1)}")
    layernorm_pairs(a, Z, TMP, ST, 22, 44)
    O1, O2 = T[0], T[2]
    for jj in range(4):
        a(f"v_cvt_pk_bf16_f32 v{O1+jj}, v{Z[2*jj]}, v{Z[2*jj+1]}")
        a(f"v_cvt_pk_bf16_f32 v{O2+jj}, v{Z[2*jj]+1}, v{Z[2*jj+1]+1}")
    a(f"s_mov_b32 s29, 0x{xn_off:x}")
    a(f"buffer_store_dwordx4 {vq(O1)}, v6, s[12:15], s29 offen")
    a(f"buffer_store_dwordx4 {vq(O2)}, v6, s[12:15], s29 offen offset:1024")
    if fz is not None:
        return 124
    stamp(a, 4)
    if INSTR["on"]:
        a("s_waitcnt vmcnt(0)")
    stamp(a, 5)
    stamp_real(a, 7)
    stamp_dump(a, 12, 6, 2)
    a.label(Lend)
    a("s_endpgm")
    return 124
```

```python
from common import *

TAB512A = "tab_tw512a"
TAB64 = "tab_tw64"
TAB2048A = "tab_tw2048a"
TAB256 = "tab_tw256"
TAB32 = "tab_tw32"


def emit_tables(a):
    emit_table(a, TAB2048A, tw_table1(2048, 256))


WAVE_LDS = 4768


def fft512_core(a, z, t, tw1, tw2, s_c, sgn, vA_w, vA_r, vB_w, vB_r):
    radix8(a, z, t, s_c, sgn)
    for k in range(1, 8):
        cmul_tw(a, z[k], z[k], tw1 + 2 * k, t[k & 7], sgn)
    for k in range(8):
        a(f"ds_write_b64 v{vA_w}, {vp(z[k])} offset:{72*8*k}")
    for b in range(8):
        a(f"ds_read_b64 {vp(z[b])}, v{vA_r} offset:{64*b}")
    a("s_waitcnt lgkmcnt(0)")
    radix8(a, z, t, s_c, sgn)
    for k in range(1, 8):
        cmul_tw(a, z[k], z[k], tw2 + 2 * k, t[k & 7], sgn)
    for k in range(8):
        a(f"ds_write_b64 v{vB_w}, {vp(z[k])} offset:{64*k}")
    for c in range(8):
        a(f"ds_read_b64 {vp(z[c])}, v{vB_r} offset:{66*8*c}")
    a("s_waitcnt lgkmcnt(0)")
    radix8(a, z, t, s_c, sgn)


def fft512_addr(a, vlane, sbase, vA_w, vA_r, vB_w, tmp):
    a(f"v_lshlrev_b32 v{vA_w}, 3, v{vlane}")
    a(f"v_add_u32 v{vA_w}, s{sbase}, v{vA_w}")
    a(f"v_lshrrev_b32 v{tmp}, 3, v{vlane}")
    a(f"v_mul_u32_u24 v{vA_r}, 72, v{tmp}")
    a(f"v_and_b32 v{tmp+1}, 7, v{vlane}")
    a(f"v_add_u32 v{vA_r}, v{vA_r}, v{tmp+1}")
    a(f"v_lshlrev_b32 v{vA_r}, 3, v{vA_r}")
    a(f"v_add_u32 v{vA_r}, s{sbase}, v{vA_r}")
    a(f"v_mul_u32_u24 v{vB_w}, 66, v{tmp+1}")
    a(f"v_add_u32 v{vB_w}, v{vB_w}, v{tmp}")
    a(f"v_lshlrev_b32 v{vB_w}, 3, v{vB_w}")
    a(f"v_add_u32 v{vB_w}, s{sbase}, v{vB_w}")


WT_ROWS = 32
WT_WGS = S // WT_ROWS
PF_WGS = 64


def gen_k1(a, name, src_ka, src_off, with_wt, fz=None):
    Lend = a.newlabel("Lend")
    Lwt = a.newlabel("Lwt")
    if fz is None:
        kernel_header(a, name, "LN + row rFFT")
        nwg = 256 + (WT_WGS + PF_WGS if with_wt else 0)
        a(f"s_cmp_ge_u32 s2, {nwg}")
        a(f"s_cbranch_scc1 {Lend}")
        stamp(a, 0)
        stamp_real(a, 6)
        a(f"s_load_dwordx2 s[4:5], s[0:1], {src_ka}")
        a(f"s_load_dwordx2 s[6:7], s[0:1], {KA_WS}")
        if with_wt:
            a(f"s_load_dwordx4 s[24:27], s[0:1], {KA_WR}")
        a("v_and_b32 v1, 63, v0")
        a("v_lshrrev_b32 v2, 6, v0")
        a("s_nop 0")
        a("v_readfirstlane_b32 s3, v2")
    make_tab_srd(a, 16, TAB2048A, 2048)
    a(f"s_mov_b32 s20, 0x{f2u(math.sqrt(0.5)):08x}")
    a("s_mov_b32 s21, s20")
    a(f"s_mov_b32 s22, 0x{f2u(1.0/512):08x}")
    a("s_mov_b32 s23, s22")
    a("s_waitcnt lgkmcnt(0)")
    if fz is not None:
        a(f"s_mov_b64 s[4:5], {sp(fz['ptr'](src_ka))}")
        a(f"s_mov_b64 s[6:7], {sp(fz['ptr'](KA_WS))}")
    if src_off:
        make_srd_off(a, 8, 4, src_off, S * D * 2)
    else:
        make_srd(a, 8, 4, S * D * 2)
    make_srd(a, 12, 6, WS_BYTES)
    if with_wt:
        a("s_cmp_ge_u32 s2, 256")
        a(f"s_cbranch_scc1 {Lwt}")
    Z = [10 + 2 * j for j in range(8)]
    T = [26 + 2 * j for j in range(8)]
    RA, RB = 42, 46
    TW1, TW2 = 50, 66
    ST = [82, 83, 84, 85]
    TMP = list(range(86, 96))
    vA_w, vA_r, vB_w, vX = 96, 97, 98, 99
    vI_w0, vI_r = 100, 101
    a("s_lshl_b32 s28, s2, 13")
    a("s_lshl_b32 s29, s3, 11")
    a("s_add_u32 s28, s28, s29")
    a("v_lshlrev_b32 v3, 4, v1")
    a("v_add_u32 v3, s28, v3")
    if fz is not None:
        fz['poll'](a)
    else:
        a(f"buffer_load_dwordx4 {vq(RA)}, v3, s[8:11], 0 offen")
        a(f"buffer_load_dwordx4 {vq(RB)}, v3, s[8:11], 0 offen offset:1024")
    a("v_lshlrev_b32 v4, 5, v1")
    a(f"buffer_load_dwordx2 {vp(TW1+2)}, v4, s[16:19], 0 offen")
    a("v_and_b32 v5, 7, v1")
    a("v_lshlrev_b32 v5, 8, v5")
    a(f"buffer_load_dwordx2 {vp(TW2+2)}, v5, s[16:19], 0 offen")
    if fz is not None:
        a("s_barrier")
        a(f"buffer_load_dwordx4 {vq(RA)}, v3, s[8:11], 0 offen sc1")
        a(f"buffer_load_dwordx4 {vq(RB)}, v3, s[8:11], 0 offen offset:1024 sc1")
    a(f"s_mul_i32 s30, s3, {WAVE_LDS}")
    fft512_addr(a, 1, 30, vA_w, vA_r, vB_w, TMP[0])
    a(f"v_lshrrev_b32 v{TMP[0]}, 1, v1")
    a(f"v_lshlrev_b32 v{TMP[1]}, 6, v1")
    a(f"v_add_u32 v{TMP[1]}, s30, v{TMP[1]}")
    for c in range(4):
        a(f"v_add_u32 v{TMP[2]}, {c}, v{TMP[0]}")
        a(f"v_and_b32 v{TMP[2]}, 3, v{TMP[2]}")
        a(f"v_lshlrev_b32 v{TMP[2]}, 4, v{TMP[2]}")
        a(f"v_add_u32 v{102+c}, v{TMP[1]}, v{TMP[2]}")
    a(f"v_lshrrev_b32 v{TMP[0]}, 3, v1")
    a(f"v_lshlrev_b32 v{TMP[0]}, 6, v{TMP[0]}")
    a(f"v_bfe_u32 v{TMP[1]}, v1, 1, 2")
    a(f"v_lshrrev_b32 v{TMP[2]}, 4, v1")
    a(f"v_add_u32 v{TMP[1]}, v{TMP[1]}, v{TMP[2]}")
    a(f"v_and_b32 v{TMP[1]}, 3, v{TMP[1]}")
    a(f"v_lshlrev_b32 v{TMP[1]}, 4, v{TMP[1]}")
    a(f"v_and_b32 v{TMP[2]}, 1, v1")
    a(f"v_lshlrev_b32 v{TMP[2]}, 3, v{TMP[2]}")
    a(f"v_add3_u32 v{vI_r}, v{TMP[0]}, v{TMP[1]}, v{TMP[2]}")
    a(f"v_add_u32 v{vI_r}, s30, v{vI_r}")
    stamp(a, 8)
    a("s_waitcnt vmcnt(0)")
    stamp(a, 1)
    tw_powers(a, TW1, T[0])
    tw_powers(a, TW2, T[0])
    for j in range(8):
        if j & 1:
            a(f"v_and_b32 v{Z[j]}, 0xffff0000, v{RA + (j >> 1)}")
            a(f"v_and_b32 v{Z[j]+1}, 0xffff0000, v{RB + (j >> 1)}")
        else:
            a(f"v_lshlrev_b32 v{Z[j]}, 16, v{RA + (j >> 1)}")
            a(f"v_lshlrev_b32 v{Z[j]+1}, 16, v{RB + (j >> 1)}")
    layernorm_pairs(a, Z, TMP, ST, 22, 44)
    for c in range(4):
        a(f"ds_write_b128 v{102+c}, {vq(Z[2*c])}")
    for j in range(8):
        a(f"ds_read_b64 {vp(Z[j])}, v{vI_r} offset:{512*j}")
    a("s_waitcnt vmcnt(0) lgkmcnt(0)")
    stamp(a, 2)
    fft512_core(a, Z, T, TW1, TW2, 20, +1, vA_w, vA_r, vB_w, vA_w)
    stamp(a, 3)
    for k in range(8):
        a(f"ds_write_b64 v{vA_w}, {vp(Z[k])} offset:{512*k}")
    a("v_cmp_eq_u32 vcc, 0, v1")
    a("s_and_saveexec_b64 s[34:35], vcc")
    a(f"ds_write_b64 v{vA_w}, {vp(Z[0])} offset:{512*8}")
    a("s_mov_b64 exec, s[34:35]")
    a("v_lshrrev_b32 v5, 2, v0")
    a("v_and_b32 v6, 3, v0")
    a(f"v_mul_u32_u24 v4, {WAVE_LDS}, v6")
    a("v_lshl_add_u32 v3, v5, 3, v4")
    a("v_sub_u32 v7, 256, v5")
    a(f"v_lshl_add_u32 v{vX}, v7, 3, v4")
    a("v_lshlrev_b32 v6, 4, v6")
    a(f"v_mul_u32_u24 v5, {T1_PITCH}, v5")
    a("v_add_u32 v6, v5, v6")
    a("s_lshl_b32 s28, s2, 6")
    a("s_waitcnt lgkmcnt(0)")
    a("s_barrier")
    for k in range(5):
        a(f"ds_read_b64 {vp(Z[k])}, v3 offset:{512*k}")
        a(f"ds_read_b64 {vp(T[k])}, v{vX} offset:{(256-64*k)*8}")
    a("v_cmp_gt_u32 vcc, 4, v0")
    O = [TW1 + 4 * k for k in range(5)]
    for k in range(5):
        a(f"s_waitcnt lgkmcnt({8-2*k})")
        a(f"v_pk_add_f32 {vp(O[k])}, {vp(Z[k])}, {vp(T[k])} neg_hi:[0,1]")
        a(f"v_pk_add_f32 {vp(O[k]+2)}, {vp(Z[k])}, {vp(T[k])} op_sel:[1,1] op_sel_hi:[0,0] neg_hi:[1,0]")
        if k < 4:
            a(f"s_add_u32 s29, s28, 0x{T1_OFF + k*64*T1_PITCH:x}")
            a(f"buffer_store_dwordx4 {vq(O[k])}, v6, s[12:15], s29 offen")
    a("s_mov_b64 exec, vcc")
    Lsk = a.newlabel("Lsk")
    a(f"s_cbranch_execz {Lsk}")
    a(f"s_add_u32 s29, s28, 0x{T1_OFF + 4*64*T1_PITCH:x}")
    a(f"buffer_store_dwordx4 {vq(O[4])}, v6, s[12:15], s29 offen")
    a.label(Lsk)
    if fz is not None:
        a("s_mov_b64 exec, -1")
        return 106
    stamp(a, 4)
    if INSTR["on"]:
        a("s_waitcnt vmcnt(0)")
    stamp(a, 5)
    stamp_real(a, 7)
    stamp_dump(a, 12, 6, 0 if with_wt else 5)
    a("s_endpgm")
    if with_wt:
        a.label(Lwt)
        gen_wt(a)
    a.label(Lend)
    a("s_endpgm")
    return 106


def gen_wt(a):
    nb = WT_ROWS * KF * 2
    nch = nb // 16
    assert nb % 16 == 0
    Lnpf = a.newlabel("Lnpf")
    a(f"s_cmp_lt_u32 s2, {256 + WT_WGS}")
    a(f"s_cbranch_scc1 {Lnpf}")
    a(f"s_load_dwordx2 s[36:37], s[0:1], {KA_W1}")
    a(f"s_load_dwordx2 s[40:41], s[0:1], {KA_W2}")
    a(f"s_sub_u32 s28, s2, {256 + WT_WGS}")
    per = D * F * 2 // PF_WGS
    a(f"s_mul_i32 s29, s28, {per}")
    a("v_lshlrev_b32 v3, 4, v0")
    a("s_waitcnt lgkmcnt(0)")
    make_srd(a, 36, 36, D * F * 2)
    make_srd(a, 40, 40, D * F * 2)
    for r in range(per // 4096):
        a(f"buffer_load_dwordx4 {vq(10+8*r)}, v3, s[36:39], s29 offen")
        a(f"buffer_load_dwordx4 {vq(14+8*r)}, v3, s[40:43], s29 offen")
        a("s_add_u32 s29, s29, 4096")
    if OPT.get("pfcode", 1):
        l = a.newlabel("Lpc")
        a("s_getpc_b64 s[44:45]")
        a.label(l)
        a(f"s_sub_u32 s44, s44, {l}-code_start")
        a("s_subb_u32 s45, s45, 0")
        a("s_and_b32 s45, s45, 0xffff")
        a("s_mov_b32 s46, code_end-code_start")
        a("s_mov_b32 s47, 0x00020000")
        a("s_lshl_b32 s29, s28, 11")
        a("v_lshlrev_b32 v3, 3, v0")
        a("buffer_load_dwordx2 v[4:5], v3, s[44:47], s29 offen")
    a("s_waitcnt vmcnt(0)")
    a("s_endpgm")
    a.label(Lnpf)
    make_srd(a, 36, 24, S * KF * 2)
    make_srd(a, 40, 26, S * KF * 2)
    a("s_sub_u32 s28, s2, 256")
    Lz = a.newlabel("Lz")
    a("s_cmp_lg_u32 s28, 0")
    a(f"s_cbranch_scc1 {Lz}")
    a("v_cmp_gt_u32 vcc, 128, v0")
    a("s_and_saveexec_b64 s[34:35], vcc")
    a(f"s_cbranch_execz {Lz}r")
    a("v_lshlrev_b32 v3, 8, v0")
    a("v_mov_b32 v4, 0")
    a(f"s_mov_b32 s29, 0x{CNT_OFF:x}")
    a("buffer_store_dword v4, v3, s[12:15], s29 offen")
    a.label(Lz + "r")
    a("s_mov_b64 exec, s[34:35]")
    a.label(Lz)
    a(f"s_mul_i32 s29, s28, {nb}")
    a("v_lshlrev_b32 v3, 4, v0")
    nr = (nch + 255) // 256
    LB = ((nb + 4096 + 15) // 16) * 16
    for r in range(nr):
        a(f"buffer_load_dwordx4 {vq(10+8*r)}, v3, s[36:39], s29 offen offset:{0}")
        a(f"buffer_load_dwordx4 {vq(14+8*r)}, v3, s[40:43], s29 offen offset:{0}")
        a(f"s_add_u32 s29, s29, 4096")
    for r in range(nr):
        a(f"s_waitcnt vmcnt({2*(nr-1-r)})")
        a(f"ds_write_b128 v3, {vq(10+8*r)} offset:{4096*r}")
        a(f"ds_write_b128 v3, {vq(14+8*r)} offset:{LB+4096*r}")
    a("s_waitcnt lgkmcnt(0)")
    a("s_barrier")
    a("v_and_b32 v4, 31, v0")
    a("v_lshrrev_b32 v5, 5, v0")
    a(f"v_mul_u32_u24 v6, {KF*2}, v4")
    a("v_lshl_add_u32 v6, v5, 1, v6")
    a("v_lshlrev_b32 v7, 13, v5")
    a("v_lshl_add_u32 v7, v4, 2, v7")
    a(f"s_lshl_b32 s29, s28, {int(math.log2(WT_ROWS*4))}")
    a(f"s_add_u32 s29, s29, 0x{WT_OFF:x}")
    n_i = 33
    G = 11
    for i0 in range(0, n_i, G):
        for i in range(i0, min(i0 + G, n_i)):
            r = 10 + 2 * (i - i0)
            a(f"ds_read_u16 v{r}, v6 offset:{16*i}")
            a(f"ds_read_u16 v{r+1}, v6 offset:{LB+16*i}")
        a("s_waitcnt lgkmcnt(0)")
        for i in range(i0, min(i0 + G, n_i)):
            r = 10 + 2 * (i - i0)
            a(f"v_lshl_or_b32 v{r}, v{r+1}, 16, v{r}")
            if i == 32:
                a("v_cmp_gt_u32 vcc, 32, v0")
                a("s_and_saveexec_b64 s[34:35], vcc")
            a(f"buffer_store_dword v{r}, v7, s[12:15], s29 offen")
            a(f"s_add_u32 s29, s29, {8*8192}")
    a("s_endpgm")
    return LB + nb + 4096


def k1_lds(with_wt):
    nb = WT_ROWS * KF * 2
    LB = ((nb + 4096 + 15) // 16) * 16
    w = LB + 5 * 4096
    return max(4 * WAVE_LDS, w if with_wt else 0)


K2_BUF = 18432


def gen_k2(a, name):
    kernel_header(a, name, "column FFT * W, inverse column FFT")
    Lend = a.newlabel("Lend")
    a(f"s_cmp_ge_u32 s2, {KF}")
    a(f"s_cbranch_scc1 {Lend}")
    stamp(a, 0)
    stamp_real(a, 6)
    a(f"s_load_dwordx2 s[6:7], s[0:1], {KA_WS}")
    make_tab_srd(a, 16, TAB2048A, 2048)
    a(f"s_mov_b32 s20, 0x{f2u(math.sqrt(0.5)):08x}")
    a("s_mov_b32 s21, s20")
    a("s_waitcnt lgkmcnt(0)")
    make_srd(a, 12, 6, WS_BYTES)
    Z = [10 + 2 * j for j in range(8)]
    T = [26 + 2 * j for j in range(8)]
    TW1, TW2, TW3 = 42, 58, 74
    WV = 90
    v1w, v1r, v2w, v2r, v3w, v3r = 98, 99, 100, 101, 102, 103
    a(f"s_mul_i32 s28, s2, {T1_PITCH}")
    a(f"s_add_u32 s28, s28, 0x{T1_OFF:x}")
    a("v_lshlrev_b32 v3, 3, v0")
    for jj in range(4):
        a(f"s_add_u32 s{36+jj}, s28, {4096*jj}")
    for j in range(8):
        a(f"buffer_load_dwordx2 {vp(Z[j])}, v3, s[12:15], s{36+(j>>1)} offen offset:{2048*(j&1)}")
    a(f"buffer_load_dwordx2 {vp(TW1+2)}, v3, s[16:19], 0 offen")
    a("v_and_b32 v5, 31, v0")
    a("v_lshlrev_b32 v5, 6, v5")
    a(f"buffer_load_dwordx2 {vp(TW2+2)}, v5, s[16:19], 0 offen")
    a("v_and_b32 v5, 3, v0")
    a("v_lshlrev_b32 v5, 9, v5")
    a(f"buffer_load_dwordx2 {vp(TW3+2)}, v5, s[16:19], 0 offen")
    a("s_lshl_b32 s29, s2, 13")
    a(f"s_add_u32 s29, s29, 0x{WT_OFF:x}")
    a("v_lshlrev_b32 v6, 2, v0")
    a("s_add_u32 s30, s29, 4096")
    for j in range(8):
        a(f"buffer_load_dword v{WV+j}, v6, s[12:15], s{29+(j>>2)} offen offset:{1024*(j&3)}")
    a(f"v_lshlrev_b32 v{v1w}, 3, v0")
    a("v_lshrrev_b32 v7, 5, v0")
    a("v_and_b32 v8, 31, v0")
    a("v_lshl_add_u32 v9, v7, 8, v8")
    a(f"v_lshlrev_b32 v{v1r}, 3, v9")
    a("v_mul_u32_u24 v9, 288, v7")
    a("v_add_u32 v8, v9, v8")
    a(f"v_lshlrev_b32 v{v2w}, 3, v8")
    a("v_bfe_u32 v8, v0, 2, 3")
    a("v_mul_u32_u24 v8, 36, v8")
    a("v_add_u32 v9, v9, v8")
    a("v_and_b32 v8, 3, v0")
    a("v_add_u32 v9, v9, v8")
    a(f"v_lshlrev_b32 v{v2r}, 3, v9")
    a("v_lshlrev_b32 v9, 2, v7")
    a("v_bfe_u32 v7, v0, 2, 2")
    a("v_add_u32 v9, v9, v7")
    a("v_bfe_u32 v7, v0, 4, 1")
    a("v_lshl_add_u32 v9, v7, 5, v9")
    a("v_mul_u32_u24 v8, 68, v8")
    a("v_add_u32 v9, v9, v8")
    a(f"v_lshlrev_b32 v{v3w}, 3, v9")
    a("v_and_b32 v7, 7, v0")
    a("v_lshlrev_b32 v9, 2, v7")
    a("v_bfe_u32 v7, v0, 3, 2")
    a("v_add_u32 v9, v9, v7")
    a("v_bfe_u32 v7, v0, 5, 1")
    a("v_lshl_add_u32 v9, v7, 5, v9")
    a("v_lshrrev_b32 v7, 6, v0")
    a("v_mul_u32_u24 v7, 272, v7")
    a("v_add_u32 v9, v9, v7")
    a(f"v_lshlrev_b32 v{v3r}, 3, v9")

    bufsel = [0]

    def fft2048(sgn, first):
        def nb():
            b = bufsel[0] * K2_BUF
            bufsel[0] ^= 1
            return b
        radix8(a, Z, T, 20, sgn)
        for k in range(1, 8):
            cmul_tw(a, Z[k], Z[k], TW1 + 2 * k, T[k], sgn)
        b = nb()
        for k in range(8):
            a(f"ds_write_b64 v{v1w}, {vp(Z[k])} offset:{b + 2048*k}")
        a("s_waitcnt lgkmcnt(0)")
        a("s_barrier")
        for j in range(8):
            a(f"ds_read_b64 {vp(Z[j])}, v{v1r} offset:{b + 256*j}")
        a("s_waitcnt lgkmcnt(0)")
        radix8(a, Z, T, 20, sgn)
        for k in range(1, 8):
            cmul_tw(a, Z[k], Z[k], TW2 + 2 * k, T[k], sgn)
        b = nb()
        for k in range(8):
            a(f"ds_write_b64 v{v2w}, {vp(Z[k])} offset:{b + 36*8*k}")
        a("s_waitcnt lgkmcnt(0)")
        a("s_barrier")
        for c in range(8):
            a(f"ds_read_b64 {vp(Z[c])}, v{v2r} offset:{b + 32*c}")
        a("s_waitcnt lgkmcnt(0)")
        radix8(a, Z, T, 20, sgn)
        for k in range(1, 8):
            cmul_tw(a, Z[k], Z[k], TW3 + 2 * k, T[k], sgn)
        b = nb()
        for k in range(8):
            a(f"ds_write_b64 v{v3w}, {vp(Z[k])} offset:{b + 272*8*k}")
        a("s_waitcnt lgkmcnt(0)")
        a("s_barrier")
        for hi in range(2):
            for n in range(4):
                a(f"ds_read_b64 {vp(Z[hi + 2*n])}, v{v3r} offset:{b + (68*n + 272*4*hi)*8}")
        a("s_waitcnt lgkmcnt(0)")
        radix4(a, [Z[0], Z[2], Z[4], Z[6]], T[0:4], sgn)
        radix4(a, [Z[1], Z[3], Z[5], Z[7]], T[4:8], sgn)

    stamp(a, 8)
    a("s_waitcnt vmcnt(8)")
    tw_powers(a, TW1, T[0])
    tw_powers(a, TW2, T[0])
    tw_powers(a, TW3, T[0])
    stamp(a, 1)
    fft2048(+1, True)
    stamp(a, 2)
    a("s_waitcnt vmcnt(0)")
    for j in range(8):
        w = T[j ^ 1]
        a(f"v_lshlrev_b32 v{w}, 16, v{WV+j}")
        a(f"v_and_b32 v{w+1}, 0xffff0000, v{WV+j}")
        cmul_tw(a, Z[j], Z[j], w, T[j], +1)
    fft2048(-1, False)
    stamp(a, 3)
    a("v_lshrrev_b32 v4, 3, v0")
    a(f"v_mul_u32_u24 v4, {T2_PITCH}, v4")
    a("v_and_b32 v5, 7, v0")
    a("v_lshl_add_u32 v4, v5, 3, v4")
    a("s_lshl_b32 s28, s2, 6")
    for j in range(8):
        a(f"s_add_u32 s29, s28, 0x{T2_OFF + 32*j*T2_PITCH:x}")
        a(f"buffer_store_dwordx2 {vp(Z[j])}, v4, s[12:15], s29 offen")
    stamp(a, 4)
    if INSTR["on"]:
        a("s_waitcnt vmcnt(0)")
    stamp(a, 5)
    stamp_real(a, 7)
    stamp_dump(a, 12, 6, 1)
    a.label(Lend)
    a("s_endpgm")
    return 104


def gen_k3(a, name, res_ka, res_off, x_out_off, fz=None, xn_off=XN_OFF):
    Lend = a.newlabel("Lend")
    if fz is None:
        kernel_header(a, name, "row irFFT + residual + LN")
        a("s_cmp_ge_u32 s2, 256")
        a(f"s_cbranch_scc1 {Lend}")
        stamp(a, 0)
        stamp_real(a, 6)
        a(f"s_load_dwordx2 s[4:5], s[0:1], {res_ka}")
        a(f"s_load_dwordx2 s[6:7], s[0:1], {KA_WS}")
        a("v_and_b32 v1, 63, v0")
        a("v_lshrrev_b32 v2, 6, v0")
        a("s_nop 0")
        a("v_readfirstlane_b32 s3, v2")
    make_tab_srd(a, 16, TAB2048A, 2048)
    a(f"s_mov_b32 s20, 0x{f2u(math.sqrt(0.5)):08x}")
    a("s_mov_b32 s21, s20")
    a(f"s_mov_b32 s22, 0x{f2u(1.0/512):08x}")
    a("s_mov_b32 s23, s22")
    a(f"s_mov_b32 s24, 0x{f2u(1.0/(2*2048*512)):08x}")
    a("s_mov_b32 s25, s24")
    a("s_waitcnt lgkmcnt(0)")
    if fz is not None:
        a(f"s_mov_b64 s[4:5], {sp(fz['ptr'](res_ka))}")
        a(f"s_mov_b64 s[6:7], {sp(fz['ptr'](KA_WS))}")
    if res_off:
        make_srd_off(a, 8, 4, res_off, S * D * 2)
    else:
        make_srd(a, 8, 4, S * D * 2)
    make_srd(a, 12, 6, WS_BYTES)
    Z = [10 + 2 * j for j in range(8)]
    T = [26 + 2 * j for j in range(8)]
    RA, RB = 42, 46
    TW1, TW2 = 50, 66
    ST = [82, 83, 84, 85]
    TMP = list(range(86, 96))
    vA_w, vA_r, vB_w, vX = 96, 97, 98, 99
    IN = [104 + 4 * q for q in range(5)]
    a("v_lshrrev_b32 v7, 2, v0")
    a("v_and_b32 v8, 3, v0")
    a("v_lshlrev_b32 v3, 4, v0")
    a(f"s_mul_i32 s28, s2, {T2_PITCH}")
    for q in range(4):
        a(f"s_add_u32 s29, s28, 0x{T2_OFF + q*4096:x}")
        a(f"buffer_load_dwordx4 {vq(IN[q])}, v3, s[12:15], s29 offen")
    a("v_cmp_gt_u32 vcc, 4, v0")
    a("s_and_saveexec_b64 s[34:35], vcc")
    a(f"s_add_u32 s29, s28, 0x{T2_OFF + 4*4096:x}")
    a(f"buffer_load_dwordx4 {vq(IN[4])}, v3, s[12:15], s29 offen")
    a("s_mov_b64 exec, s[34:35]")
    a("v_lshlrev_b32 v4, 5, v1")
    a(f"buffer_load_dwordx2 {vp(TW1+2)}, v4, s[16:19], 0 offen")
    a("v_and_b32 v5, 7, v1")
    a("v_lshlrev_b32 v5, 8, v5")
    a(f"buffer_load_dwordx2 {vp(TW2+2)}, v5, s[16:19], 0 offen")
    a("s_lshl_b32 s28, s2, 13")
    a("s_lshl_b32 s29, s3, 11")
    a("s_add_u32 s28, s28, s29")
    a("v_lshlrev_b32 v6, 4, v1")
    a("v_add_u32 v6, s28, v6")
    a(f"buffer_load_dwordx4 {vq(RA)}, v6, s[8:11], 0 offen")
    a(f"buffer_load_dwordx4 {vq(RB)}, v6, s[8:11], 0 offen offset:1024")
    a(f"s_mul_i32 s30, s3, {WAVE_LDS}")
    fft512_addr(a, 1, 30, vA_w, vA_r, vB_w, TMP[0])
    a(f"v_mul_u32_u24 v8, {WAVE_LDS}, v8")
    a("v_lshl_add_u32 v9, v7, 3, v8")
    a("v_sub_u32 v7, 256, v7")
    a(f"v_lshl_add_u32 v{vX}, v7, 3, v8")
    stamp(a, 8)
    a("s_waitcnt vmcnt(2)")
    stamp(a, 1)
    tw_powers(a, TW1, T[6])
    tw_powers(a, TW2, T[6])
    a("s_mov_b64 exec, vcc")
    for q in (0, 4):
        a(f"v_mov_b32 v{IN[q]+1}, 0")
        a(f"v_mov_b32 v{IN[q]+3}, 0")
    a(f"v_pk_add_f32 {vp(T[4])}, {vp(IN[4])}, {vp(IN[4]+2)} op_sel:[0,1] op_sel_hi:[1,0] neg_lo:[0,1]")
    a(f"ds_write_b64 v9, {vp(T[4])} offset:2048")
    a("s_mov_b64 exec, s[34:35]")
    for q in range(4):
        a(f"v_pk_add_f32 {vp(Z[q])}, {vp(IN[q])}, {vp(IN[q]+2)} op_sel:[0,1] op_sel_hi:[1,0] neg_lo:[0,1]")
        a(f"v_pk_add_f32 {vp(T[q])}, {vp(IN[q])}, {vp(IN[q]+2)} op_sel:[0,1] op_sel_hi:[1,0] neg_hi:[1,0]")
        a(f"ds_write_b64 v9, {vp(Z[q])} offset:{512*q}")
        a(f"ds_write_b64 v{vX}, {vp(T[q])} offset:{(256-64*q)*8}")
    a("s_waitcnt lgkmcnt(0)")
    a("s_barrier")
    for j in range(8):
        a(f"ds_read_b64 {vp(Z[j])}, v{vA_w} offset:{512*j}")
    a("s_waitcnt lgkmcnt(0)")
    stamp(a, 2)
    fft512_core(a, Z, T, TW1, TW2, 20, -1, vA_w, vA_r, vB_w, vA_w)
    stamp(a, 3)
    for par in range(2):
        a(f"v_bfe_u32 v{TMP[0]}, v1, 1, 2")
        a(f"v_lshrrev_b32 v{TMP[1]}, 5, v1")
        a(f"v_add3_u32 v{TMP[0]}, v{TMP[0]}, v{TMP[1]}, {2*par}")
        a(f"v_and_b32 v{TMP[0]}, 3, v{TMP[0]}")
        a(f"v_lshlrev_b32 v{TMP[0]}, 4, v{TMP[0]}")
        a(f"v_lshrrev_b32 v{TMP[1]}, 3, v1")
        a(f"v_lshl_add_u32 v{TMP[0]}, v{TMP[1]}, 6, v{TMP[0]}")
        a(f"v_and_b32 v{TMP[1]}, 1, v1")
        a(f"v_lshl_add_u32 v{TMP[0]}, v{TMP[1]}, 3, v{TMP[0]}")
        a(f"v_add_u32 v{100+par}, s30, v{TMP[0]}")
    for j in range(8):
        a(f"ds_write_b64 v{100+(j&1)}, {vp(Z[j])} offset:{512*j}")
    a(f"v_lshrrev_b32 v{TMP[0]}, 2, v1")
    a(f"v_lshlrev_b32 v{TMP[1]}, 6, v1")
    a(f"v_add_u32 v{TMP[1]}, s30, v{TMP[1]}")
    for c in range(4):
        a(f"v_add_u32 v{TMP[2]}, {c}, v{TMP[0]}")
        a(f"v_and_b32 v{TMP[2]}, 3, v{TMP[2]}")
        a(f"v_lshlrev_b32 v{TMP[2]}, 4, v{TMP[2]}")
        a(f"v_add_u32 v{T[c]}, v{TMP[1]}, v{TMP[2]}")
    for c in range(4):
        a(f"ds_read_b128 {vq(Z[2*c])}, v{T[c]}")
    a("s_waitcnt vmcnt(0) lgkmcnt(0)")
    for j in range(8):
        a(f"v_pk_mul_f32 {vp(Z[j])}, {vp(Z[j])}, s[24:25]")
    for j in range(8):
        a(f"v_cvt_pk_bf16_f32 v{TMP[j]}, v{Z[j]}, v{Z[j]+1}")
    for j in range(8):
        a(f"v_lshlrev_b32 v{Z[j]}, 16, v{TMP[j]}")
        a(f"v_and_b32 v{Z[j]+1}, 0xffff0000, v{TMP[j]}")
    for j in range(8):
        if j & 1:
            a(f"v_and_b32 v{T[j]}, 0xffff0000, v{RA + (j >> 1)}")
            a(f"v_and_b32 v{T[j]+1}, 0xffff0000, v{RB + (j >> 1)}")
        else:
            a(f"v_lshlrev_b32 v{T[j]}, 16, v{RA + (j >> 1)}")
            a(f"v_lshlrev_b32 v{T[j]+1}, 16, v{RB + (j >> 1)}")
    for j in range(8):
        a(f"v_pk_add_f32 {vp(Z[j])}, {vp(Z[j])}, {vp(T[j])}")
    for jj in range(4):
        a(f"v_cvt_pk_bf16_f32 v{RA+jj}, v{Z[2*jj]}, v{Z[2*jj+1]}")
        a(f"v_cvt_pk_bf16_f32 v{RB+jj}, v{Z[2*jj]+1}, v{Z[2*jj+1]+1}")
    a(f"s_mov_b32 s29, 0x{x_out_off:x}")
    a(f"buffer_store_dwordx4 {vq(RA)}, v6, s[12:15], s29 offen")
    a(f"buffer_store_dwordx4 {vq(RB)}, v6, s[12:15], s29 offen offset:1024")
    for j in range(8):
        if j & 1:
            a(f"v_and_b32 v{Z[j]}, 0xffff0000, v{RA + (j >> 1)}")
            a(f"v_and_b32 v{Z[j]+1}, 0xffff0000, v{RB + (j >> 1)}")
        else:
            a(f"v_lshlrev_b32 v{Z[j]}, 16, v{RA + (j >> 1)}")
            a(f"v_lshlrev_b32 v{Z[j]+1}, 16, v{RB + (j >> 1)}")
    layernorm_pairs(a, Z, TMP, ST, 22, 44)
    O1, O2 = T[0], T[2]
    for jj in range(4):
        a(f"v_cvt_pk_bf16_f32 v{O1+jj}, v{Z[2*jj]}, v{Z[2*jj+1]}")
        a(f"v_cvt_pk_bf16_f32 v{O2+jj}, v{Z[2*jj]+1}, v{Z[2*jj+1]+1}")
    a(f"s_mov_b32 s29, 0x{xn_off:x}")
    a(f"buffer_store_dwordx4 {vq(O1)}, v6, s[12:15], s29 offen")
    a(f"buffer_store_dwordx4 {vq(O2)}, v6, s[12:15], s29 offen offset:1024")
    if fz is not None:
        return 124
    stamp(a, 4)
    if INSTR["on"]:
        a("s_waitcnt vmcnt(0)")
    stamp(a, 5)
    stamp_real(a, 7)
    stamp_dump(a, 12, 6, 2)
    a.label(Lend)
    a("s_endpgm")
    return 124
```

```python
from common import *

TAB512A = "tab_tw512a"
TAB64 = "tab_tw64"
TAB2048A = "tab_tw2048a"
TAB256 = "tab_tw256"
TAB32 = "tab_tw32"


def emit_tables(a):
    emit_table(a, TAB2048A, tw_table1(2048, 256))


WAVE_LDS = 4768


def fft512_core(a, z, t, tw1, tw2, s_c, sgn, vA_w, vA_r, vB_w, vB_r):
    radix8(a, z, t, s_c, sgn)
    for k in range(1, 8):
        cmul_tw(a, z[k], z[k], tw1 + 2 * k, t[k & 7], sgn)
    for k in range(8):
        a(f"ds_write_b64 v{vA_w}, {vp(z[k])} offset:{72*8*k}")
    for b in range(8):
        a(f"ds_read_b64 {vp(z[b])}, v{vA_r} offset:{64*b}")
    a("s_waitcnt lgkmcnt(0)")
    radix8(a, z, t, s_c, sgn)
    for k in range(1, 8):
        cmul_tw(a, z[k], z[k], tw2 + 2 * k, t[k & 7], sgn)
    for k in range(8):
        a(f"ds_write_b64 v{vB_w}, {vp(z[k])} offset:{64*k}")
    for c in range(8):
        a(f"ds_read_b64 {vp(z[c])}, v{vB_r} offset:{66*8*c}")
    a("s_waitcnt lgkmcnt(0)")
    radix8(a, z, t, s_c, sgn)


def fft512_addr(a, vlane, sbase, vA_w, vA_r, vB_w, tmp):
    a(f"v_lshlrev_b32 v{vA_w}, 3, v{vlane}")
    a(f"v_add_u32 v{vA_w}, s{sbase}, v{vA_w}")
    a(f"v_lshrrev_b32 v{tmp}, 3, v{vlane}")
    a(f"v_mul_u32_u24 v{vA_r}, 72, v{tmp}")
    a(f"v_and_b32 v{tmp+1}, 7, v{vlane}")
    a(f"v_add_u32 v{vA_r}, v{vA_r}, v{tmp+1}")
    a(f"v_lshlrev_b32 v{vA_r}, 3, v{vA_r}")
    a(f"v_add_u32 v{vA_r}, s{sbase}, v{vA_r}")
    a(f"v_mul_u32_u24 v{vB_w}, 66, v{tmp+1}")
    a(f"v_add_u32 v{vB_w}, v{vB_w}, v{tmp}")
    a(f"v_lshlrev_b32 v{vB_w}, 3, v{vB_w}")
    a(f"v_add_u32 v{vB_w}, s{sbase}, v{vB_w}")


WT_ROWS = 32
WT_WGS = S // WT_ROWS
PF_WGS = 64


def gen_k1(a, name, src_ka, src_off, with_wt, fz=None, t1_off=T1_OFF):
    Lend = a.newlabel("Lend")
    Lwt = a.newlabel("Lwt")
    if fz is None:
        kernel_header(a, name, "LN + row rFFT")
        nwg = 256 + (WT_WGS + PF_WGS if with_wt else 0)
        a(f"s_cmp_ge_u32 s2, {nwg}")
        a(f"s_cbranch_scc1 {Lend}")
        stamp(a, 0)
        stamp_real(a, 6)
        a(f"s_load_dwordx2 s[4:5], s[0:1], {src_ka}")
        a(f"s_load_dwordx2 s[6:7], s[0:1], {KA_WS}")
        if with_wt:
            a(f"s_load_dwordx4 s[24:27], s[0:1], {KA_WR}")
        a("v_and_b32 v1, 63, v0")
        a("v_lshrrev_b32 v2, 6, v0")
        a("s_nop 0")
        a("v_readfirstlane_b32 s3, v2")
    make_tab_srd(a, 16, TAB2048A, 2048)
    a(f"s_mov_b32 s20, 0x{f2u(math.sqrt(0.5)):08x}")
    a("s_mov_b32 s21, s20")
    a(f"s_mov_b32 s22, 0x{f2u(1.0/512):08x}")
    a("s_mov_b32 s23, s22")
    a("s_waitcnt lgkmcnt(0)")
    if fz is not None:
        a(f"s_mov_b64 s[4:5], {sp(fz['ptr'](src_ka))}")
        a(f"s_mov_b64 s[6:7], {sp(fz['ptr'](KA_WS))}")
    if src_off:
        make_srd_off(a, 8, 4, src_off, S * D * 2)
    else:
        make_srd(a, 8, 4, S * D * 2)
    make_srd(a, 12, 6, WS_BYTES)
    if with_wt:
        a("s_cmp_ge_u32 s2, 256")
        a(f"s_cbranch_scc1 {Lwt}")
    Z = [10 + 2 * j for j in range(8)]
    T = [26 + 2 * j for j in range(8)]
    RA, RB = 42, 46
    TW1, TW2 = 50, 66
    ST = [82, 83, 84, 85]
    TMP = list(range(86, 96))
    vA_w, vA_r, vB_w, vX = 96, 97, 98, 99
    vI_w0, vI_r = 100, 101
    a("s_lshl_b32 s28, s2, 13")
    a("s_lshl_b32 s29, s3, 11")
    a("s_add_u32 s28, s28, s29")
    a("v_lshlrev_b32 v3, 4, v1")
    a("v_add_u32 v3, s28, v3")
    if fz is not None and fz.get('poll'):
        fz['poll'](a)
    else:
        a(f"buffer_load_dwordx4 {vq(RA)}, v3, s[8:11], 0 offen")
        a(f"buffer_load_dwordx4 {vq(RB)}, v3, s[8:11], 0 offen offset:1024")
    a("v_lshlrev_b32 v4, 5, v1")
    a(f"buffer_load_dwordx2 {vp(TW1+2)}, v4, s[16:19], 0 offen")
    a("v_and_b32 v5, 7, v1")
    a("v_lshlrev_b32 v5, 8, v5")
    a(f"buffer_load_dwordx2 {vp(TW2+2)}, v5, s[16:19], 0 offen")
    if fz is not None and fz.get('poll'):
        a("s_barrier")
        a(f"buffer_load_dwordx4 {vq(RA)}, v3, s[8:11], 0 offen sc1")
        a(f"buffer_load_dwordx4 {vq(RB)}, v3, s[8:11], 0 offen offset:1024 sc1")
    a(f"s_mul_i32 s30, s3, {WAVE_LDS}")
    fft512_addr(a, 1, 30, vA_w, vA_r, vB_w, TMP[0])
    a(f"v_lshrrev_b32 v{TMP[0]}, 1, v1")
    a(f"v_lshlrev_b32 v{TMP[1]}, 6, v1")
    a(f"v_add_u32 v{TMP[1]}, s30, v{TMP[1]}")
    for c in range(4):
        a(f"v_add_u32 v{TMP[2]}, {c}, v{TMP[0]}")
        a(f"v_and_b32 v{TMP[2]}, 3, v{TMP[2]}")
        a(f"v_lshlrev_b32 v{TMP[2]}, 4, v{TMP[2]}")
        a(f"v_add_u32 v{102+c}, v{TMP[1]}, v{TMP[2]}")
    a(f"v_lshrrev_b32 v{TMP[0]}, 3, v1")
    a(f"v_lshlrev_b32 v{TMP[0]}, 6, v{TMP[0]}")
    a(f"v_bfe_u32 v{TMP[1]}, v1, 1, 2")
    a(f"v_lshrrev_b32 v{TMP[2]}, 4, v1")
    a(f"v_add_u32 v{TMP[1]}, v{TMP[1]}, v{TMP[2]}")
    a(f"v_and_b32 v{TMP[1]}, 3, v{TMP[1]}")
    a(f"v_lshlrev_b32 v{TMP[1]}, 4, v{TMP[1]}")
    a(f"v_and_b32 v{TMP[2]}, 1, v1")
    a(f"v_lshlrev_b32 v{TMP[2]}, 3, v{TMP[2]}")
    a(f"v_add3_u32 v{vI_r}, v{TMP[0]}, v{TMP[1]}, v{TMP[2]}")
    a(f"v_add_u32 v{vI_r}, s30, v{vI_r}")
    stamp(a, 8)
    a("s_waitcnt vmcnt(0)")
    stamp(a, 1)
    tw_powers(a, TW1, T[0])
    tw_powers(a, TW2, T[0])
    for j in range(8):
        if j & 1:
            a(f"v_and_b32 v{Z[j]}, 0xffff0000, v{RA + (j >> 1)}")
            a(f"v_and_b32 v{Z[j]+1}, 0xffff0000, v{RB + (j >> 1)}")
        else:
            a(f"v_lshlrev_b32 v{Z[j]}, 16, v{RA + (j >> 1)}")
            a(f"v_lshlrev_b32 v{Z[j]+1}, 16, v{RB + (j >> 1)}")
    layernorm_pairs(a, Z, TMP, ST, 22, 44)
    for c in range(4):
        a(f"ds_write_b128 v{102+c}, {vq(Z[2*c])}")
    for j in range(8):
        a(f"ds_read_b64 {vp(Z[j])}, v{vI_r} offset:{512*j}")
    a("s_waitcnt vmcnt(0) lgkmcnt(0)")
    stamp(a, 2)
    fft512_core(a, Z, T, TW1, TW2, 20, +1, vA_w, vA_r, vB_w, vA_w)
    stamp(a, 3)
    for k in range(8):
        a(f"ds_write_b64 v{vA_w}, {vp(Z[k])} offset:{512*k}")
    a("v_cmp_eq_u32 vcc, 0, v1")
    a("s_and_saveexec_b64 s[34:35], vcc")
    a(f"ds_write_b64 v{vA_w}, {vp(Z[0])} offset:{512*8}")
    a("s_mov_b64 exec, s[34:35]")
    a("v_lshrrev_b32 v5, 2, v0")
    a("v_and_b32 v6, 3, v0")
    a(f"v_mul_u32_u24 v4, {WAVE_LDS}, v6")
    a("v_lshl_add_u32 v3, v5, 3, v4")
    a("v_sub_u32 v7, 256, v5")
    a(f"v_lshl_add_u32 v{vX}, v7, 3, v4")
    a("v_lshlrev_b32 v6, 4, v6")
    a(f"v_mul_u32_u24 v5, {T1_PITCH}, v5")
    a("v_add_u32 v6, v5, v6")
    a("s_lshl_b32 s28, s2, 6")
    a("s_waitcnt lgkmcnt(0)")
    a("s_barrier")
    for k in range(5):
        a(f"ds_read_b64 {vp(Z[k])}, v3 offset:{512*k}")
        a(f"ds_read_b64 {vp(T[k])}, v{vX} offset:{(256-64*k)*8}")
    a("v_cmp_gt_u32 vcc, 4, v0")
    O = [TW1 + 4 * k for k in range(5)]
    Lsk = a.newlabel("Lsk")
    if fz is not None and fz.get("packed"):
        a("s_waitcnt lgkmcnt(0)")
        for k in range(5):
            a(f"v_pk_add_f32 {vp(O[k])}, {vp(Z[k])}, {vp(T[k])} neg_hi:[0,1]")
            a(f"v_pk_add_f32 {vp(O[k]+2)}, {vp(Z[k])}, {vp(T[k])} op_sel:[1,1] op_sel_hi:[0,0] neg_hi:[1,0]")
            if k in (1, 2, 3):
                a(f"s_add_u32 s29, s28, 0x{t1_off + k*64*T1_PITCH:x}")
                a(f"buffer_store_dwordx4 {vq(O[k])}, v6, s[12:15], s29 offen")
        a(f"v_cndmask_b32 v{O[0]+1}, v{O[0]+1}, v{O[4]}, vcc")
        a(f"v_cndmask_b32 v{O[0]+3}, v{O[0]+3}, v{O[4]+2}, vcc")
        a(f"s_add_u32 s29, s28, 0x{t1_off:x}")
        a(f"buffer_store_dwordx4 {vq(O[0])}, v6, s[12:15], s29 offen")
    else:
        for k in range(5):
            a(f"s_waitcnt lgkmcnt({8-2*k})")
            a(f"v_pk_add_f32 {vp(O[k])}, {vp(Z[k])}, {vp(T[k])} neg_hi:[0,1]")
            a(f"v_pk_add_f32 {vp(O[k]+2)}, {vp(Z[k])}, {vp(T[k])} op_sel:[1,1] op_sel_hi:[0,0] neg_hi:[1,0]")
            if k < 4:
                a(f"s_add_u32 s29, s28, 0x{t1_off + k*64*T1_PITCH:x}")
                a(f"buffer_store_dwordx4 {vq(O[k])}, v6, s[12:15], s29 offen")
        a("s_mov_b64 exec, vcc")
        a(f"s_cbranch_execz {Lsk}")
        a(f"s_add_u32 s29, s28, 0x{t1_off + 4*64*T1_PITCH:x}")
        a(f"buffer_store_dwordx4 {vq(O[4])}, v6, s[12:15], s29 offen")
    a.label(Lsk)
    if fz is not None:
        a("s_mov_b64 exec, -1")
        return 106
    stamp(a, 4)
    if INSTR["on"]:
        a("s_waitcnt vmcnt(0)")
    stamp(a, 5)
    stamp_real(a, 7)
    stamp_dump(a, 12, 6, 0 if with_wt else 5)
    a("s_endpgm")
    if with_wt:
        a.label(Lwt)
        gen_wt(a)
    a.label(Lend)
    a("s_endpgm")
    return 106


def gen_wt(a, fused=False, lb0=0, R=WT_ROWS):
    nb = R * KF * 2
    nch = nb // 16
    assert nb % 16 == 0
    if not fused:
        Lnpf = a.newlabel("Lnpf")
        a(f"s_cmp_lt_u32 s2, {256 + WT_WGS}")
        a(f"s_cbranch_scc1 {Lnpf}")
        a(f"s_load_dwordx2 s[36:37], s[0:1], {KA_W1}")
        a(f"s_load_dwordx2 s[40:41], s[0:1], {KA_W2}")
        a(f"s_sub_u32 s28, s2, {256 + WT_WGS}")
        per = D * F * 2 // PF_WGS
        a(f"s_mul_i32 s29, s28, {per}")
        a("v_lshlrev_b32 v3, 4, v0")
        a("s_waitcnt lgkmcnt(0)")
        make_srd(a, 36, 36, D * F * 2)
        make_srd(a, 40, 40, D * F * 2)
        for r in range(per // 4096):
            a(f"buffer_load_dwordx4 {vq(10+8*r)}, v3, s[36:39], s29 offen")
            a(f"buffer_load_dwordx4 {vq(14+8*r)}, v3, s[40:43], s29 offen")
            a("s_add_u32 s29, s29, 4096")
        if OPT.get("pfcode", 1):
            l = a.newlabel("Lpc")
            a("s_getpc_b64 s[44:45]")
            a.label(l)
            a(f"s_sub_u32 s44, s44, {l}-code_start")
            a("s_subb_u32 s45, s45, 0")
            a("s_and_b32 s45, s45, 0xffff")
            a("s_mov_b32 s46, code_end-code_start")
            a("s_mov_b32 s47, 0x00020000")
            a("s_lshl_b32 s29, s28, 11")
            a("v_lshlrev_b32 v3, 3, v0")
            a("buffer_load_dwordx2 v[4:5], v3, s[44:47], s29 offen")
        a("s_waitcnt vmcnt(0)")
        a("s_endpgm")
        a.label(Lnpf)
    make_srd(a, 36, 24, S * KF * 2)
    make_srd(a, 40, 26, S * KF * 2)
    if fused:
        a("s_mov_b32 s28, s2")
    else:
        a("s_sub_u32 s28, s2, 256")
    Lz = a.newlabel("Lz")
    if fused:
        a(f"s_branch {Lz}")
    a("s_cmp_lg_u32 s28, 0")
    a(f"s_cbranch_scc1 {Lz}")
    a("v_cmp_gt_u32 vcc, 128, v0")
    a("s_and_saveexec_b64 s[34:35], vcc")
    a(f"s_cbranch_execz {Lz}r")
    a("v_lshlrev_b32 v3, 8, v0")
    a("v_mov_b32 v4, 0")
    a(f"s_mov_b32 s29, 0x{CNT_OFF:x}")
    a("buffer_store_dword v4, v3, s[12:15], s29 offen")
    a.label(Lz + "r")
    a("s_mov_b64 exec, s[34:35]")
    a.label(Lz)
    a(f"s_mul_i32 s29, s28, {nb}")
    a("v_lshlrev_b32 v3, 4, v0")
    nr = (nch + 255) // 256
    LB = ((nb + 4096 + 15) // 16) * 16
    for r in range(nr):
        a(f"buffer_load_dwordx4 {vq(10+8*r)}, v3, s[36:39], s29 offen offset:{0}")
        a(f"buffer_load_dwordx4 {vq(14+8*r)}, v3, s[40:43], s29 offen offset:{0}")
        a(f"s_add_u32 s29, s29, 4096")
    for r in range(nr):
        a(f"s_waitcnt vmcnt({2*(nr-1-r)})")
        a(f"ds_write_b128 v3, {vq(10+8*r)} offset:{lb0+4096*r}")
        a(f"ds_write_b128 v3, {vq(14+8*r)} offset:{lb0+LB+4096*r}")
    a("s_waitcnt lgkmcnt(0)")
    a("s_barrier")
    lr = int(math.log2(R))
    KST = 256 // R
    a(f"v_and_b32 v4, {R-1}, v0")
    a(f"v_lshrrev_b32 v5, {lr}, v0")
    a(f"v_mul_u32_u24 v6, {KF*2}, v4")
    a("v_lshl_add_u32 v6, v5, 1, v6")
    a("v_lshlrev_b32 v7, 13, v5")
    a("v_lshl_add_u32 v7, v4, 2, v7")
    a(f"s_lshl_b32 s29, s28, {lr+2}")
    a(f"s_add_u32 s29, s29, 0x{WT_OFF:x}")
    n_i = R + 1
    G = 11
    for i0 in range(0, n_i, G):
        for i in range(i0, min(i0 + G, n_i)):
            r = 10 + 2 * (i - i0)
            a(f"ds_read_u16 v{r}, v6 offset:{lb0+2*KST*i}")
            a(f"ds_read_u16 v{r+1}, v6 offset:{lb0+LB+2*KST*i}")
        a("s_waitcnt lgkmcnt(0)")
        for i in range(i0, min(i0 + G, n_i)):
            r = 10 + 2 * (i - i0)
            a(f"v_lshl_or_b32 v{r}, v{r+1}, 16, v{r}")
            if i == R:
                a(f"v_cmp_gt_u32 vcc, {R}, v0")
                a("s_and_saveexec_b64 s[34:35], vcc")
            a(f"buffer_store_dword v{r}, v7, s[12:15], s29 offen")
            a(f"s_add_u32 s29, s29, {KST*8192}")
    if fused:
        a("s_mov_b64 exec, -1")
    else:
        a("s_endpgm")
    return LB + nb + 4096


def k1_lds(with_wt):
    nb = WT_ROWS * KF * 2
    LB = ((nb + 4096 + 15) // 16) * 16
    w = LB + 5 * 4096
    return max(4 * WAVE_LDS, w if with_wt else 0)


K2_BUF = 18432


def gen_k2(a, name):
    kernel_header(a, name, "column FFT * W, inverse column FFT")
    Lend = a.newlabel("Lend")
    a(f"s_cmp_ge_u32 s2, {KF}")
    a(f"s_cbranch_scc1 {Lend}")
    stamp(a, 0)
    stamp_real(a, 6)
    a(f"s_load_dwordx2 s[6:7], s[0:1], {KA_WS}")
    make_tab_srd(a, 16, TAB2048A, 2048)
    a(f"s_mov_b32 s20, 0x{f2u(math.sqrt(0.5)):08x}")
    a("s_mov_b32 s21, s20")
    a("s_waitcnt lgkmcnt(0)")
    make_srd(a, 12, 6, WS_BYTES)
    Z = [10 + 2 * j for j in range(8)]
    T = [26 + 2 * j for j in range(8)]
    TW1, TW2, TW3 = 42, 58, 74
    WV = 90
    v1w, v1r, v2w, v2r, v3w, v3r = 98, 99, 100, 101, 102, 103
    a(f"s_mul_i32 s28, s2, {T1_PITCH}")
    a(f"s_add_u32 s28, s28, 0x{T1_OFF:x}")
    a("v_lshlrev_b32 v3, 3, v0")
    for jj in range(4):
        a(f"s_add_u32 s{36+jj}, s28, {4096*jj}")
    for j in range(8):
        a(f"buffer_load_dwordx2 {vp(Z[j])}, v3, s[12:15], s{36+(j>>1)} offen offset:{2048*(j&1)}")
    a(f"buffer_load_dwordx2 {vp(TW1+2)}, v3, s[16:19], 0 offen")
    a("v_and_b32 v5, 31, v0")
    a("v_lshlrev_b32 v5, 6, v5")
    a(f"buffer_load_dwordx2 {vp(TW2+2)}, v5, s[16:19], 0 offen")
    a("v_and_b32 v5, 3, v0")
    a("v_lshlrev_b32 v5, 9, v5")
    a(f"buffer_load_dwordx2 {vp(TW3+2)}, v5, s[16:19], 0 offen")
    a("s_lshl_b32 s29, s2, 13")
    a(f"s_add_u32 s29, s29, 0x{WT_OFF:x}")
    a("v_lshlrev_b32 v6, 2, v0")
    a("s_add_u32 s30, s29, 4096")
    for j in range(8):
        a(f"buffer_load_dword v{WV+j}, v6, s[12:15], s{29+(j>>2)} offen offset:{1024*(j&3)}")
    a(f"v_lshlrev_b32 v{v1w}, 3, v0")
    a("v_lshrrev_b32 v7, 5, v0")
    a("v_and_b32 v8, 31, v0")
    a("v_lshl_add_u32 v9, v7, 8, v8")
    a(f"v_lshlrev_b32 v{v1r}, 3, v9")
    a("v_mul_u32_u24 v9, 288, v7")
    a("v_add_u32 v8, v9, v8")
    a(f"v_lshlrev_b32 v{v2w}, 3, v8")
    a("v_bfe_u32 v8, v0, 2, 3")
    a("v_mul_u32_u24 v8, 36, v8")
    a("v_add_u32 v9, v9, v8")
    a("v_and_b32 v8, 3, v0")
    a("v_add_u32 v9, v9, v8")
    a(f"v_lshlrev_b32 v{v2r}, 3, v9")
    a("v_lshlrev_b32 v9, 2, v7")
    a("v_bfe_u32 v7, v0, 2, 2")
    a("v_add_u32 v9, v9, v7")
    a("v_bfe_u32 v7, v0, 4, 1")
    a("v_lshl_add_u32 v9, v7, 5, v9")
    a("v_mul_u32_u24 v8, 68, v8")
    a("v_add_u32 v9, v9, v8")
    a(f"v_lshlrev_b32 v{v3w}, 3, v9")
    a("v_and_b32 v7, 7, v0")
    a("v_lshlrev_b32 v9, 2, v7")
    a("v_bfe_u32 v7, v0, 3, 2")
    a("v_add_u32 v9, v9, v7")
    a("v_bfe_u32 v7, v0, 5, 1")
    a("v_lshl_add_u32 v9, v7, 5, v9")
    a("v_lshrrev_b32 v7, 6, v0")
    a("v_mul_u32_u24 v7, 272, v7")
    a("v_add_u32 v9, v9, v7")
    a(f"v_lshlrev_b32 v{v3r}, 3, v9")

    bufsel = [0]

    def fft2048(sgn, first):
        def nb():
            b = bufsel[0] * K2_BUF
            bufsel[0] ^= 1
            return b
        radix8(a, Z, T, 20, sgn)
        for k in range(1, 8):
            cmul_tw(a, Z[k], Z[k], TW1 + 2 * k, T[k], sgn)
        b = nb()
        for k in range(8):
            a(f"ds_write_b64 v{v1w}, {vp(Z[k])} offset:{b + 2048*k}")
        a("s_waitcnt lgkmcnt(0)")
        a("s_barrier")
        for j in range(8):
            a(f"ds_read_b64 {vp(Z[j])}, v{v1r} offset:{b + 256*j}")
        a("s_waitcnt lgkmcnt(0)")
        radix8(a, Z, T, 20, sgn)
        for k in range(1, 8):
            cmul_tw(a, Z[k], Z[k], TW2 + 2 * k, T[k], sgn)
        b = nb()
        for k in range(8):
            a(f"ds_write_b64 v{v2w}, {vp(Z[k])} offset:{b + 36*8*k}")
        a("s_waitcnt lgkmcnt(0)")
        a("s_barrier")
        for c in range(8):
            a(f"ds_read_b64 {vp(Z[c])}, v{v2r} offset:{b + 32*c}")
        a("s_waitcnt lgkmcnt(0)")
        radix8(a, Z, T, 20, sgn)
        for k in range(1, 8):
            cmul_tw(a, Z[k], Z[k], TW3 + 2 * k, T[k], sgn)
        b = nb()
        for k in range(8):
            a(f"ds_write_b64 v{v3w}, {vp(Z[k])} offset:{b + 272*8*k}")
        a("s_waitcnt lgkmcnt(0)")
        a("s_barrier")
        for hi in range(2):
            for n in range(4):
                a(f"ds_read_b64 {vp(Z[hi + 2*n])}, v{v3r} offset:{b + (68*n + 272*4*hi)*8}")
        a("s_waitcnt lgkmcnt(0)")
        radix4(a, [Z[0], Z[2], Z[4], Z[6]], T[0:4], sgn)
        radix4(a, [Z[1], Z[3], Z[5], Z[7]], T[4:8], sgn)

    stamp(a, 8)
    a("s_waitcnt vmcnt(8)")
    tw_powers(a, TW1, T[0])
    tw_powers(a, TW2, T[0])
    tw_powers(a, TW3, T[0])
    stamp(a, 1)
    fft2048(+1, True)
    stamp(a, 2)
    a("s_waitcnt vmcnt(0)")
    for j in range(8):
        w = T[j ^ 1]
        a(f"v_lshlrev_b32 v{w}, 16, v{WV+j}")
        a(f"v_and_b32 v{w+1}, 0xffff0000, v{WV+j}")
        cmul_tw(a, Z[j], Z[j], w, T[j], +1)
    fft2048(-1, False)
    stamp(a, 3)
    a("v_lshrrev_b32 v4, 3, v0")
    a(f"v_mul_u32_u24 v4, {T2_PITCH}, v4")
    a("v_and_b32 v5, 7, v0")
    a("v_lshl_add_u32 v4, v5, 3, v4")
    a("s_lshl_b32 s28, s2, 6")
    for j in range(8):
        a(f"s_add_u32 s29, s28, 0x{T2_OFF + 32*j*T2_PITCH:x}")
        a(f"buffer_store_dwordx2 {vp(Z[j])}, v4, s[12:15], s29 offen")
    stamp(a, 4)
    if INSTR["on"]:
        a("s_waitcnt vmcnt(0)")
    stamp(a, 5)
    stamp_real(a, 7)
    stamp_dump(a, 12, 6, 1)
    a.label(Lend)
    a("s_endpgm")
    return 104


def gen_k3(a, name, res_ka, res_off, x_out_off, fz=None, xn_off=XN_OFF, t2_off=T2_OFF):
    Lend = a.newlabel("Lend")
    if fz is None:
        kernel_header(a, name, "row irFFT + residual + LN")
        a("s_cmp_ge_u32 s2, 256")
        a(f"s_cbranch_scc1 {Lend}")
        stamp(a, 0)
        stamp_real(a, 6)
        a(f"s_load_dwordx2 s[4:5], s[0:1], {res_ka}")
        a(f"s_load_dwordx2 s[6:7], s[0:1], {KA_WS}")
        a("v_and_b32 v1, 63, v0")
        a("v_lshrrev_b32 v2, 6, v0")
        a("s_nop 0")
        a("v_readfirstlane_b32 s3, v2")
    make_tab_srd(a, 16, TAB2048A, 2048)
    a(f"s_mov_b32 s20, 0x{f2u(math.sqrt(0.5)):08x}")
    a("s_mov_b32 s21, s20")
    a(f"s_mov_b32 s22, 0x{f2u(1.0/512):08x}")
    a("s_mov_b32 s23, s22")
    a(f"s_mov_b32 s24, 0x{f2u(1.0/(2*2048*512)):08x}")
    a("s_mov_b32 s25, s24")
    a("s_waitcnt lgkmcnt(0)")
    if fz is not None:
        a(f"s_mov_b64 s[4:5], {sp(fz['ptr'](res_ka))}")
        a(f"s_mov_b64 s[6:7], {sp(fz['ptr'](KA_WS))}")
    if res_off:
        make_srd_off(a, 8, 4, res_off, S * D * 2)
    else:
        make_srd(a, 8, 4, S * D * 2)
    make_srd(a, 12, 6, WS_BYTES)
    Z = [10 + 2 * j for j in range(8)]
    T = [26 + 2 * j for j in range(8)]
    RA, RB = 42, 46
    TW1, TW2 = 50, 66
    ST = [82, 83, 84, 85]
    TMP = list(range(86, 96))
    vA_w, vA_r, vB_w, vX = 96, 97, 98, 99
    IN = [104 + 4 * q for q in range(5)]
    a("v_lshrrev_b32 v7, 2, v0")
    a("v_and_b32 v8, 3, v0")
    def spec_loads():
        a("v_lshlrev_b32 v3, 4, v0")
        a(f"s_mul_i32 s28, s2, {T2_PITCH}")
        for q in range(4):
            a(f"s_add_u32 s29, s28, 0x{t2_off + q*4096:x}")
            a(f"buffer_load_dwordx4 {vq(IN[q])}, v3, s[12:15], s29 offen")
        a("v_cmp_gt_u32 vcc, 4, v0")
        a("s_and_saveexec_b64 s[34:35], vcc")
        if not packed:
            a(f"s_add_u32 s29, s28, 0x{t2_off + 4*4096:x}")
            a(f"buffer_load_dwordx4 {vq(IN[4])}, v3, s[12:15], s29 offen")
        a("s_mov_b64 exec, s[34:35]")
    packed = fz is not None and fz.get("packed")
    polled = fz is not None and fz.get('poll')
    if polled:
        fz['poll'](a)
    else:
        spec_loads()
    a("v_lshlrev_b32 v4, 5, v1")
    a(f"buffer_load_dwordx2 {vp(TW1+2)}, v4, s[16:19], 0 offen")
    a("v_and_b32 v5, 7, v1")
    a("v_lshlrev_b32 v5, 8, v5")
    a(f"buffer_load_dwordx2 {vp(TW2+2)}, v5, s[16:19], 0 offen")
    if polled:
        a("s_barrier")
        spec_loads()
    a("s_lshl_b32 s28, s2, 13")
    a("s_lshl_b32 s29, s3, 11")
    a("s_add_u32 s28, s28, s29")
    a("v_lshlrev_b32 v6, 4, v1")
    a("v_add_u32 v6, s28, v6")
    a(f"buffer_load_dwordx4 {vq(RA)}, v6, s[8:11], 0 offen")
    a(f"buffer_load_dwordx4 {vq(RB)}, v6, s[8:11], 0 offen offset:1024")
    a(f"s_mul_i32 s30, s3, {WAVE_LDS}")
    fft512_addr(a, 1, 30, vA_w, vA_r, vB_w, TMP[0])
    a(f"v_mul_u32_u24 v8, {WAVE_LDS}, v8")
    a("v_lshl_add_u32 v9, v7, 3, v8")
    a("v_sub_u32 v7, 256, v7")
    a(f"v_lshl_add_u32 v{vX}, v7, 3, v8")
    stamp(a, 8)
    a("s_waitcnt vmcnt(2)")
    stamp(a, 1)
    tw_powers(a, TW1, T[6])
    tw_powers(a, TW2, T[6])
    a("s_mov_b64 exec, vcc")
    if packed:
        a(f"v_mov_b32 v{T[4]}, v{IN[0]+1}")
        a(f"v_mov_b32 v{T[4]+1}, v{IN[0]+3}")
        a(f"v_mov_b32 v{IN[0]+1}, 0")
        a(f"v_mov_b32 v{IN[0]+3}, 0")
    else:
        for q in (0, 4):
            a(f"v_mov_b32 v{IN[q]+1}, 0")
            a(f"v_mov_b32 v{IN[q]+3}, 0")
        a(f"v_pk_add_f32 {vp(T[4])}, {vp(IN[4])}, {vp(IN[4]+2)} op_sel:[0,1] op_sel_hi:[1,0] neg_lo:[0,1]")
    a(f"ds_write_b64 v9, {vp(T[4])} offset:2048")
    a("s_mov_b64 exec, s[34:35]")
    for q in range(4):
        a(f"v_pk_add_f32 {vp(Z[q])}, {vp(IN[q])}, {vp(IN[q]+2)} op_sel:[0,1] op_sel_hi:[1,0] neg_lo:[0,1]")
        a(f"v_pk_add_f32 {vp(T[q])}, {vp(IN[q])}, {vp(IN[q]+2)} op_sel:[0,1] op_sel_hi:[1,0] neg_hi:[1,0]")
        a(f"ds_write_b64 v9, {vp(Z[q])} offset:{512*q}")
        a(f"ds_write_b64 v{vX}, {vp(T[q])} offset:{(256-64*q)*8}")
    a("s_waitcnt lgkmcnt(0)")
    a("s_barrier")
    for j in range(8):
        a(f"ds_read_b64 {vp(Z[j])}, v{vA_w} offset:{512*j}")
    a("s_waitcnt lgkmcnt(0)")
    stamp(a, 2)
    fft512_core(a, Z, T, TW1, TW2, 20, -1, vA_w, vA_r, vB_w, vA_w)
    stamp(a, 3)
    for par in range(2):
        a(f"v_bfe_u32 v{TMP[0]}, v1, 1, 2")
        a(f"v_lshrrev_b32 v{TMP[1]}, 5, v1")
        a(f"v_add3_u32 v{TMP[0]}, v{TMP[0]}, v{TMP[1]}, {2*par}")
        a(f"v_and_b32 v{TMP[0]}, 3, v{TMP[0]}")
        a(f"v_lshlrev_b32 v{TMP[0]}, 4, v{TMP[0]}")
        a(f"v_lshrrev_b32 v{TMP[1]}, 3, v1")
        a(f"v_lshl_add_u32 v{TMP[0]}, v{TMP[1]}, 6, v{TMP[0]}")
        a(f"v_and_b32 v{TMP[1]}, 1, v1")
        a(f"v_lshl_add_u32 v{TMP[0]}, v{TMP[1]}, 3, v{TMP[0]}")
        a(f"v_add_u32 v{100+par}, s30, v{TMP[0]}")
    for j in range(8):
        a(f"ds_write_b64 v{100+(j&1)}, {vp(Z[j])} offset:{512*j}")
    a(f"v_lshrrev_b32 v{TMP[0]}, 2, v1")
    a(f"v_lshlrev_b32 v{TMP[1]}, 6, v1")
    a(f"v_add_u32 v{TMP[1]}, s30, v{TMP[1]}")
    for c in range(4):
        a(f"v_add_u32 v{TMP[2]}, {c}, v{TMP[0]}")
        a(f"v_and_b32 v{TMP[2]}, 3, v{TMP[2]}")
        a(f"v_lshlrev_b32 v{TMP[2]}, 4, v{TMP[2]}")
        a(f"v_add_u32 v{T[c]}, v{TMP[1]}, v{TMP[2]}")
    for c in range(4):
        a(f"ds_read_b128 {vq(Z[2*c])}, v{T[c]}")
    a("s_waitcnt vmcnt(0) lgkmcnt(0)")
    for j in range(8):
        a(f"v_pk_mul_f32 {vp(Z[j])}, {vp(Z[j])}, s[24:25]")
    for j in range(8):
        a(f"v_cvt_pk_bf16_f32 v{TMP[j]}, v{Z[j]}, v{Z[j]+1}")
    for j in range(8):
        a(f"v_lshlrev_b32 v{Z[j]}, 16, v{TMP[j]}")
        a(f"v_and_b32 v{Z[j]+1}, 0xffff0000, v{TMP[j]}")
    for j in range(8):
        if j & 1:
            a(f"v_and_b32 v{T[j]}, 0xffff0000, v{RA + (j >> 1)}")
            a(f"v_and_b32 v{T[j]+1}, 0xffff0000, v{RB + (j >> 1)}")
        else:
            a(f"v_lshlrev_b32 v{T[j]}, 16, v{RA + (j >> 1)}")
            a(f"v_lshlrev_b32 v{T[j]+1}, 16, v{RB + (j >> 1)}")
    for j in range(8):
        a(f"v_pk_add_f32 {vp(Z[j])}, {vp(Z[j])}, {vp(T[j])}")
    for jj in range(4):
        a(f"v_cvt_pk_bf16_f32 v{RA+jj}, v{Z[2*jj]}, v{Z[2*jj+1]}")
        a(f"v_cvt_pk_bf16_f32 v{RB+jj}, v{Z[2*jj]+1}, v{Z[2*jj+1]+1}")
    a(f"s_mov_b32 s29, 0x{x_out_off:x}")
    a(f"buffer_store_dwordx4 {vq(RA)}, v6, s[12:15], s29 offen")
    a(f"buffer_store_dwordx4 {vq(RB)}, v6, s[12:15], s29 offen offset:1024")
    for j in range(8):
        if j & 1:
            a(f"v_and_b32 v{Z[j]}, 0xffff0000, v{RA + (j >> 1)}")
            a(f"v_and_b32 v{Z[j]+1}, 0xffff0000, v{RB + (j >> 1)}")
        else:
            a(f"v_lshlrev_b32 v{Z[j]}, 16, v{RA + (j >> 1)}")
            a(f"v_lshlrev_b32 v{Z[j]+1}, 16, v{RB + (j >> 1)}")
    layernorm_pairs(a, Z, TMP, ST, 22, 44)
    O1, O2 = T[0], T[2]
    for jj in range(4):
        a(f"v_cvt_pk_bf16_f32 v{O1+jj}, v{Z[2*jj]}, v{Z[2*jj+1]}")
        a(f"v_cvt_pk_bf16_f32 v{O2+jj}, v{Z[2*jj]+1}, v{Z[2*jj+1]+1}")
    a(f"s_mov_b32 s29, 0x{xn_off:x}")
    a(f"buffer_store_dwordx4 {vq(O1)}, v6, s[12:15], s29 offen")
    a(f"buffer_store_dwordx4 {vq(O2)}, v6, s[12:15], s29 offen offset:1024")
    if fz is not None:
        return 124
    stamp(a, 4)
    if INSTR["on"]:
        a("s_waitcnt vmcnt(0)")
    stamp(a, 5)
    stamp_real(a, 7)
    stamp_dump(a, 12, 6, 2)
    a.label(Lend)
    a("s_endpgm")
    return 124
```

```python
from common import *
from fft_kernels import *
from gemm_kernels import *
from gemm1_8w import *
from chain import XN2_OFF, H2_OFF, PB, CHAIN_LDS

T1B_OFF = 0x2500000
T2B_OFF = 0x2A00000
MCNT_OFF = 0x3000000
NCNT = 384
SPW = 200


def gen_k2f(a, fz, special, t1_off, t2_off, w_early):
    make_tab_srd(a, 16, TAB2048A, 2048)
    a(f"s_mov_b32 s20, 0x{f2u(math.sqrt(0.5)):08x}")
    a("s_mov_b32 s21, s20")
    a(f"s_mov_b64 s[6:7], {sp(fz['ptr'](KA_WS))}")
    make_srd(a, 12, 6, WS_BYTES)
    Z = [10 + 2 * j for j in range(8)]
    T = [26 + 2 * j for j in range(8)]
    TW1, TW2, TW3 = 42, 58, 74
    WV = 90
    v1w, v1r, v2w, v2r, v3w, v3r = 98, 99, 100, 101, 102, 103
    a("v_lshlrev_b32 v3, 3, v0")
    a(f"buffer_load_dwordx2 {vp(TW1+2)}, v3, s[16:19], 0 offen")
    a("v_and_b32 v5, 31, v0")
    a("v_lshlrev_b32 v5, 6, v5")
    a(f"buffer_load_dwordx2 {vp(TW2+2)}, v5, s[16:19], 0 offen")
    a("v_and_b32 v5, 3, v0")
    a("v_lshlrev_b32 v5, 9, v5")
    a(f"buffer_load_dwordx2 {vp(TW3+2)}, v5, s[16:19], 0 offen")

    def w_loads():
        a("v_lshlrev_b32 v6, 2, v0")
        if not special:
            a("s_lshl_b32 s29, s95, 13")
            a(f"s_add_u32 s29, s29, 0x{WT_OFF:x}")
            a("s_add_u32 s30, s29, 4096")
            for j in range(8):
                a(f"buffer_load_dword v{WV+j}, v6, s[12:15], s{29+(j>>2)} offen offset:{1024*(j&3)}")
        else:
            for j in range(8):
                a(f"v_sub_u32 v7, {2048-256*j}, v0")
                a("v_and_b32 v7, 2047, v7")
                a("v_lshlrev_b32 v7, 2, v7")
                a(f"s_mov_b32 s29, 0x{WT_OFF + 1024*j:x}")
                a(f"buffer_load_dword v{104+4*j}, v6, s[12:15], s29 offen")
                a(f"s_mov_b32 s29, 0x{WT_OFF + 256*8192 + 1024*j:x}")
                a(f"buffer_load_dword v{105+4*j}, v6, s[12:15], s29 offen")
                a(f"s_mov_b32 s29, 0x{WT_OFF:x}")
                a(f"buffer_load_dword v{106+4*j}, v7, s[12:15], s29 offen")
                a(f"s_mov_b32 s29, 0x{WT_OFF + 256*8192:x}")
                a(f"buffer_load_dword v{107+4*j}, v7, s[12:15], s29 offen")
    def uv_compute():
        a("s_mov_b32 s22, 0.25")
        a("s_mov_b32 s23, 0.25")
        for j in range(8):
            w0, w6, m0, m6 = T[0], T[1], T[2], T[3]
            for (d, r) in ((w0, 104), (w6, 105), (m0, 106), (m6, 107)):
                a(f"v_lshlrev_b32 v{d}, 16, v{r+4*j}")
                a(f"v_and_b32 v{d+1}, 0xffff0000, v{r+4*j}")
            a(f"v_pk_add_f32 {vp(w0)}, {vp(w0)}, {vp(m0)} neg_hi:[0,1]")
            a(f"v_pk_add_f32 {vp(w6)}, {vp(w6)}, {vp(m6)} neg_hi:[0,1]")
            cadd(a, m0, w0, w6)
            csub(a, m6, w0, w6)
            a(f"v_pk_mul_f32 {vp(104+4*j)}, {vp(m0)}, s[22:23]")
            a(f"v_pk_mul_f32 {vp(106+4*j)}, {vp(m6)}, s[22:23]")
    if w_early:
        w_loads()
        if special:
            a("s_waitcnt vmcnt(0)")
            uv_compute()
    a(f"v_lshlrev_b32 v{v1w}, 3, v0")
    a("v_lshrrev_b32 v7, 5, v0")
    a("v_and_b32 v8, 31, v0")
    a("v_lshl_add_u32 v9, v7, 8, v8")
    a(f"v_lshlrev_b32 v{v1r}, 3, v9")
    a("v_mul_u32_u24 v9, 288, v7")
    a("v_add_u32 v8, v9, v8")
    a(f"v_lshlrev_b32 v{v2w}, 3, v8")
    a("v_bfe_u32 v8, v0, 2, 3")
    a("v_mul_u32_u24 v8, 36, v8")
    a("v_add_u32 v9, v9, v8")
    a("v_and_b32 v8, 3, v0")
    a("v_add_u32 v9, v9, v8")
    a(f"v_lshlrev_b32 v{v2r}, 3, v9")
    a("v_lshlrev_b32 v9, 2, v7")
    a("v_bfe_u32 v7, v0, 2, 2")
    a("v_add_u32 v9, v9, v7")
    a("v_bfe_u32 v7, v0, 4, 1")
    a("v_lshl_add_u32 v9, v7, 5, v9")
    a("v_mul_u32_u24 v8, 68, v8")
    a("v_add_u32 v9, v9, v8")
    a(f"v_lshlrev_b32 v{v3w}, 3, v9")
    a("v_and_b32 v7, 7, v0")
    a("v_lshlrev_b32 v9, 2, v7")
    a("v_bfe_u32 v7, v0, 3, 2")
    a("v_add_u32 v9, v9, v7")
    a("v_bfe_u32 v7, v0, 5, 1")
    a("v_lshl_add_u32 v9, v7, 5, v9")
    a("v_lshrrev_b32 v7, 6, v0")
    a("v_mul_u32_u24 v7, 272, v7")
    a("v_add_u32 v9, v9, v7")
    a(f"v_lshlrev_b32 v{v3r}, 3, v9")
    a("s_waitcnt vmcnt(0)") if False else None
    fz['poll'](a)
    a("s_barrier")
    a(f"s_mul_i32 s28, s95, {T1_PITCH}")
    a(f"s_add_u32 s28, s28, 0x{t1_off:x}")
    for jj in range(4):
        a(f"s_add_u32 s{36+jj}, s28, {4096*jj}")
    for j in range(8):
        a(f"buffer_load_dwordx2 {vp(Z[j])}, v3, s[12:15], s{36+(j>>1)} offen offset:{2048*(j&1)}")
    nw = 0
    if not w_early:
        w_loads()
        nw = 32 if special else 8
    nd = 8
    a(f"s_waitcnt vmcnt({nd + nw})")
    tw_powers(a, TW1, T[0])
    tw_powers(a, TW2, T[0])
    tw_powers(a, TW3, T[0])
    a(f"s_waitcnt vmcnt({nw})")
    B0, B1, B2 = 0, K2_BUF, 2 * K2_BUF

    def fft2048(sgn):
        radix8(a, Z, T, 20, sgn)
        for k in range(1, 8):
            cmul_tw(a, Z[k], Z[k], TW1 + 2 * k, T[k], sgn)
        for k in range(8):
            a(f"ds_write_b64 v{v1w}, {vp(Z[k])} offset:{B0 + 2048*k}")
        a("s_waitcnt lgkmcnt(0)")
        a("s_barrier")
        for j in range(8):
            a(f"ds_read_b64 {vp(Z[j])}, v{v1r} offset:{B0 + 256*j}")
        a("s_waitcnt lgkmcnt(0)")
        radix8(a, Z, T, 20, sgn)
        for k in range(1, 8):
            cmul_tw(a, Z[k], Z[k], TW2 + 2 * k, T[k], sgn)
        for k in range(8):
            a(f"ds_write_b64 v{v2w}, {vp(Z[k])} offset:{B2 + 36*8*k}")
        for c in range(8):
            a(f"ds_read_b64 {vp(Z[c])}, v{v2r} offset:{B2 + 32*c}")
        a("s_waitcnt lgkmcnt(0)")
        radix8(a, Z, T, 20, sgn)
        for k in range(1, 8):
            cmul_tw(a, Z[k], Z[k], TW3 + 2 * k, T[k], sgn)
        for k in range(8):
            a(f"ds_write_b64 v{v3w}, {vp(Z[k])} offset:{B1 + 272*8*k}")
        a("s_waitcnt lgkmcnt(0)")
        a("s_barrier")
        for hi in range(2):
            for n in range(4):
                a(f"ds_read_b64 {vp(Z[hi + 2*n])}, v{v3r} offset:{B1 + (68*n + 272*4*hi)*8}")
        a("s_waitcnt lgkmcnt(0)")
        radix4(a, [Z[0], Z[2], Z[4], Z[6]], T[0:4], sgn)
        radix4(a, [Z[1], Z[3], Z[5], Z[7]], T[4:8], sgn)

    fft2048(+1)
    a("s_waitcnt vmcnt(0)")
    if not special:
        for j in range(8):
            w = T[j ^ 1]
            a(f"v_lshlrev_b32 v{w}, 16, v{WV+j}")
            a(f"v_and_b32 v{w+1}, 0xffff0000, v{WV+j}")
            cmul_tw(a, Z[j], Z[j], w, T[j], +1)
    else:
        B3 = B2
        for j in range(8):
            a(f"ds_write_b64 v3, {vp(Z[j])} offset:{B3 + 2048*j}")
        a("s_waitcnt lgkmcnt(0)")
        a("s_barrier")
        M = [136 + 2 * j for j in range(8)]
        for j in range(8):
            a(f"v_sub_u32 v7, {2048-256*j}, v0")
            a("v_and_b32 v7, 2047, v7")
            a("v_lshlrev_b32 v7, 3, v7")
            a(f"ds_read_b64 {vp(M[j])}, v7 offset:{B3}")
        if not w_early:
            uv_compute()
        a("s_waitcnt lgkmcnt(0)")
        for j in range(8):
            cmul_tw(a, T[4], Z[j], 104 + 4 * j, T[5], +1)
            a(f"v_xor_b32 v{M[j]+1}, 0x80000000, v{M[j]+1}")
            cmul_tw(a, T[6], M[j], 106 + 4 * j, T[7], +1)
            cadd(a, Z[j], T[4], T[6])
    fft2048(-1)
    a("v_lshrrev_b32 v4, 3, v0")
    a(f"v_mul_u32_u24 v4, {T2_PITCH}, v4")
    a("v_and_b32 v5, 7, v0")
    a("v_lshl_add_u32 v4, v5, 3, v4")
    a("s_lshl_b32 s28, s95, 6")
    for j in range(8):
        a(f"s_add_u32 s29, s28, 0x{t2_off + 32*j*T2_PITCH:x}")
        a(f"buffer_store_dwordx2 {vp(Z[j])}, v4, s[12:15], s29 offen")


def gen_mega(a, name):
    kernel_header(a, name, "whole network, one persistent launch")
    Lend = a.newlabel("Lend")
    a("s_cmp_ge_u32 s2, 256")
    a(f"s_cbranch_scc1 {Lend}")
    a(f"s_load_dwordx16 s[{PB}:{PB+15}], s[0:1], 0")
    a(f"s_load_dwordx4 s[{PB+16}:{PB+19}], s[0:1], 64")
    a(f"s_load_dwordx2 s[{PB+20}:{PB+21}], s[0:1], 80")
    a("v_and_b32 v1, 63, v0")
    a("v_lshrrev_b32 v2, 6, v0")
    a("s_nop 0")
    a("v_readfirstlane_b32 s3, v2")
    a("s_waitcnt lgkmcnt(0)")
    ptr = lambda ka: PB + ka // 4
    make_srd_off(a, 96, ptr(KA_WS), MCNT_OFF, NCNT * 256)
    a("s_mov_b32 s95, s2")
    a("s_cmp_eq_u32 s2, 0")
    a(f"s_cselect_b32 s95, {SPW}, s95")
    a(f"s_cmp_eq_u32 s2, {SPW}")
    a("s_cselect_b32 s95, 0, s95")
    inner = INSTR["on"]
    INSTR["on"] = False
    if inner:
        make_srd_off(a, 88, ptr(KA_WS), STAMP_OFF + 6 * 65536, 65536)

    def cstamp(i, real=False):
        if not inner:
            return
        L = a.newlabel("Lcs")
        a("s_cmp_lg_u32 s3, 0")
        a(f"s_cbranch_scc1 {L}")
        a("s_memrealtime s[86:87]" if real else "s_memtime s[86:87]")
        a("s_lshl_b32 s92, s2, 7")
        a("s_waitcnt lgkmcnt(0)")
        a("v_mov_b32 v158, s86")
        a(f"v_mov_b32 v159, {4*i}")
        a("buffer_store_dword v158, v159, s[88:91], s92 offen")
        a.label(L)

    def mk_poll(emit_off, target):
        def poll(a):
            Ld = a.newlabel("Lpd")
            Ll = a.newlabel("Lpl")
            a("s_cmp_lg_u32 s3, 0")
            a(f"s_cbranch_scc1 {Ld}")
            emit_off(a)
            a("v_mov_b32 v159, 0")
            a("s_mov_b32 s93, 0")
            a.label(Ll)
            a("v_mov_b32 v158, 0")
            a("s_mov_b64 exec, 1")
            a("buffer_atomic_add v158, v159, s[96:99], s92 offen sc0 sc1")
            a("s_mov_b64 exec, -1")
            a("s_waitcnt vmcnt(0)")
            a("v_readfirstlane_b32 s94, v158")
            a("s_add_u32 s93, s93, 1")
            a(f"s_cmp_ge_u32 s94, {target}")
            a(f"s_cbranch_scc1 {Ld}")
            a("s_cmp_gt_u32 s93, 0x40000")
            a(f"s_cbranch_scc1 {Ld}")
            a(f"s_sleep {OPT.get('sleep', 2)}")
            a(f"s_branch {Ll}")
            a.label(Ld)
        return poll

    def mk_poll_all(setidx):
        def off(a):
            a("s_lshr_b32 s92, s2, 4")
            a("s_lshl_b32 s92, s92, 8")
            a(f"s_add_u32 s92, s92, {(128 + 64*setidx + 16)*256}")
        return mk_poll(off, 16)

    def publish(emit_off):
        L = a.newlabel("Lpub")
        a("s_waitcnt vmcnt(0)")
        a("s_barrier")
        a("s_cmp_lg_u32 s3, 0")
        a(f"s_cbranch_scc1 {L}")
        emit_off(a)
        a("v_mov_b32 v158, 1")
        a("v_mov_b32 v159, 0")
        a("s_mov_b64 exec, 1")
        a("buffer_atomic_add v158, v159, s[96:99], s92 offen sc1")
        a("s_mov_b64 exec, -1")
        a.label(L)

    def publish_all(setidx):
        L = a.newlabel("Lpub")
        base = (128 + 64 * setidx) * 256
        a("s_waitcnt vmcnt(0)")
        a("s_barrier")
        a("s_cmp_lg_u32 s3, 0")
        a(f"s_cbranch_scc1 {L}")
        a("s_lshr_b32 s92, s2, 4")
        a("s_lshl_b32 s92, s92, 8")
        a(f"s_add_u32 s92, s92, {base}")
        a("v_mov_b32 v158, 1")
        a("v_mov_b32 v159, 0")
        a("s_mov_b64 exec, 1")
        a("buffer_atomic_add v158, v159, s[96:99], s92 offen sc0 sc1")
        a("s_waitcnt vmcnt(0)")
        a("v_readfirstlane_b32 s94, v158")
        a("s_cmp_lg_u32 s94, 15")
        a(f"s_cbranch_scc1 {L}x")
        a("s_mov_b64 exec, 0xffff")
        a("v_mov_b32 v158, 1")
        a("v_lshlrev_b32 v159, 8, v1")
        a(f"s_mov_b32 s92, {base + 16*256}")
        a("buffer_atomic_add v158, v159, s[96:99], s92 offen sc1")
        a.label(L + "x")
        a("s_mov_b64 exec, -1")
        a.label(L)

    def four_wave_phase(fn, alt=None):
        Ls = a.newlabel("Lskip")
        Lj = a.newlabel("Ljoin")
        a("s_cmp_ge_u32 s3, 4")
        a(f"s_cbranch_scc1 {Ls}")
        i0 = len(a.lines)
        fn()
        nb = sum(1 for l in a.lines[i0:] if l.strip() == "s_barrier")
        a(f"s_branch {Lj}")
        a.label(Ls)
        if alt is None:
            for _ in range(nb):
                a("s_barrier")
        else:
            alt(nb, Lj)
        a.label(Lj)

    cstamp(0)
    cstamp(30, True)

    def alt1(nb, Lj):
        assert nb == 1
        La = a.newlabel("Lalt")
        Lb = a.newlabel("Lalt")
        Lc = a.newlabel("Lalt")
        a("v_subrev_u32 v0, 256, v0")
        a(f"s_mov_b64 s[6:7], {sp(ptr(KA_WS))}")
        make_srd(a, 12, 6, WS_BYTES)
        make_srd(a, 44, ptr(KA_DBG), 256)
        a("s_cmp_lg_u32 s2, 255")
        a(f"s_cbranch_scc1 {Lc}")
        a("v_lshlrev_b32 v3, 8, v0")
        a("v_mov_b32 v4, 0")
        a("buffer_store_dword v4, v3, s[96:99], 0 offen")
        a("s_mov_b32 s29, 65536")
        a("buffer_store_dword v4, v3, s[96:99], s29 offen")
        a("s_waitcnt vmcnt(0)")
        a("v_mov_b32 v4, 1")
        a("v_mov_b32 v3, 0")
        a("s_mov_b64 exec, 1")
        a("buffer_atomic_add v4, v3, s[44:47], 0 offen sc1")
        a("s_mov_b64 exec, -1")
        a.label(Lc)
        Lw = a.newlabel("Lw")
        Lwl = a.newlabel("Lwl")
        a("s_cmp_lg_u32 s3, 7")
        a(f"s_cbranch_scc1 {Lw}")
        a("v_mov_b32 v3, 0")
        a("s_mov_b32 s93, 0")
        a.label(Lwl)
        a("buffer_load_dword v4, v3, s[44:47], 0 offen sc0 sc1")
        a("s_waitcnt vmcnt(0)")
        a("v_readfirstlane_b32 s94, v4")
        a("s_add_u32 s93, s93, 1")
        a("s_cmp_ge_u32 s94, 4")
        a(f"s_cbranch_scc1 {Lw}")
        a("s_cmp_gt_u32 s93, 0x40000")
        a(f"s_cbranch_scc1 {Lw}")
        a("s_sleep 8")
        a(f"s_branch {Lwl}")
        a.label(Lw)
        a(f"s_mov_b64 s[24:25], {sp(ptr(KA_WR))}")
        a(f"s_mov_b64 s[26:27], {sp(ptr(KA_WI))}")
        gen_wt(a, fused=True, lb0=0x5000, R=8)
        make_srd(a, 36, ptr(KA_W1), D * F * 2)
        make_srd(a, 40, ptr(KA_W2), D * F * 2)
        per = D * F * 2 // 256
        a(f"s_mul_i32 s29, s2, {per}")
        a("v_lshlrev_b32 v3, 4, v0")
        for r in range((per + 4095) // 4096):
            a(f"buffer_load_dwordx4 {vq(60+8*r)}, v3, s[36:39], s29 offen")
            a(f"buffer_load_dwordx4 {vq(64+8*r)}, v3, s[40:43], s29 offen")
            a("s_add_u32 s29, s29, 4096")
        l = a.newlabel("Lpc")
        a("s_getpc_b64 s[48:49]")
        a.label(l)
        a(f"s_sub_u32 s48, s48, {l}-code_start")
        a("s_subb_u32 s49, s49, 0")
        a("s_and_b32 s49, s49, 0xffff")
        a("s_mov_b32 s50, code_end-code_start")
        a("s_mov_b32 s51, 0x00020000")
        a("s_lshl_b32 s29, s2, 9")
        a("v_lshlrev_b32 v3, 1, v0")
        a("v_and_b32 v3, 0x1fc, v3")
        a("buffer_load_dword v80, v3, s[48:51], s29 offen")
        a("v_add_u32 v0, 256, v0")

    fz = {"ptr": ptr, "packed": True}
    four_wave_phase(lambda: gen_k1(a, None, KA_X, 0, False, fz=fz, t1_off=T1_OFF), alt1)
    cstamp(1)
    publish_all(0)

    for layer in range(2):
        t1 = T1_OFF if layer == 0 else T1B_OFF
        t2 = T2_OFF if layer == 0 else T2B_OFF
        xn_off = XN_OFF if layer == 0 else XN2_OFF
        h_off = H_OFF if layer == 0 else H2_OFF
        cb = (64 * layer) * 256
        sb = 2 + 12 * layer
        cstamp(sb)
        fz = {"ptr": ptr, "poll": mk_poll_all(2 * layer)}
        Lsp = a.newlabel("Lsp")
        Lspj = a.newlabel("Lspj")
        a(f"s_cmp_eq_u32 s2, {SPW}")
        a(f"s_cbranch_scc1 {Lsp}")
        four_wave_phase(lambda: gen_k2f(a, fz, False, t1, t2, layer == 1))
        a(f"s_branch {Lspj}")
        a.label(Lsp)
        four_wave_phase(lambda: gen_k2f(a, fz, True, t1, t2, layer == 1))
        a.label(Lspj)
        cstamp(sb + 1)
        publish_all(2 * layer + 1)
        cstamp(sb + 2)
        fz = {"ptr": ptr, "poll": mk_poll_all(2 * layer + 1), "packed": True}
        if layer == 0:
            four_wave_phase(lambda: gen_k3(a, None, KA_X, 0, X1_OFF, fz=fz, xn_off=xn_off, t2_off=t2))
        else:
            four_wave_phase(lambda: gen_k3(a, None, KA_WS, X2_OFF, X3_OFF, fz=fz, xn_off=xn_off, t2_off=t2))
        cstamp(sb + 3)

        def off_c3_pub(a):
            a("s_lshr_b32 s92, s2, 4")
            a("s_lshl_b32 s92, s92, 8")
            a(f"s_add_u32 s92, s92, {cb}")
        publish(off_c3_pub)
        cstamp(sb + 4)
        Lg1 = a.newlabel("Lg1skip")
        a(f"s_cmp_ge_u32 s2, {G1_WGS}")
        a(f"s_cbranch_scc1 {Lg1}")

        def off_c3_wait(a):
            a("s_lshl_b32 s92, s10, 8")
            a(f"s_add_u32 s92, s92, {cb}")
        fz = {"ptr": ptr, "poll": mk_poll(off_c3_wait, 16), "cst": lambda i: None}
        gen_g1_8w(a, None, fz=fz, xn_off=xn_off, h_off=h_off)
        cstamp(sb + 5)

        def off_c1_pub(a):
            a("s_lshl_b32 s92, s10, 8")
            a(f"s_add_u32 s92, s92, {cb + 4096}")
        publish(off_c1_pub)
        a.label(Lg1)
        cstamp(sb + 6)

        def off_c1_wait(a):
            a("s_lshr_b32 s92, s10, 1")
            a("s_lshl_b32 s92, s92, 8")
            a(f"s_add_u32 s92, s92, {cb + 4096}")
        fz = {"ptr": ptr, "poll": mk_poll(off_c1_wait, 14)}
        if layer == 0:
            four_wave_phase(lambda: gen_g2(a, None, X1_OFF, KA_WS, X2_OFF, fz=fz, h_off=h_off))
        else:
            four_wave_phase(lambda: gen_g2(a, None, X3_OFF, KA_OUT, 0, fz=fz, h_off=h_off))
        cstamp(sb + 7)
        if layer == 0:
            def off_c2_pub(a):
                a("s_lshl_b32 s92, s10, 8")
                a(f"s_add_u32 s92, s92, {cb + 8192}")
            publish(off_c2_pub)
            cstamp(sb + 8)

            def off_c2_wait(a):
                a("s_lshr_b32 s92, s2, 3")
                a("s_lshl_b32 s92, s92, 8")
                a(f"s_add_u32 s92, s92, {cb + 8192}")
            fz = {"ptr": ptr, "poll": mk_poll(off_c2_wait, 8), "packed": True}
            four_wave_phase(lambda: gen_k1(a, None, KA_WS, X2_OFF, False, fz=fz, t1_off=T1B_OFF))
            cstamp(sb + 9)
            publish_all(2)
    if inner:
        a("s_waitcnt vmcnt(0)")
    cstamp(29)
    cstamp(31, True)
    a.label(Lend)
    a("s_endpgm")
    INSTR["on"] = inner
    return 160
```

```python
import sys
from common import *
from fft_kernels import *
from gemm_kernels import *
from gemm1_8w import *
from chain import *
from mega import *

def build(extra_triv=0):
    a = Asm()
    descs = []
    launches = []
    def K(name, fn, grid, lds, block=256):
        v = fn()
        descs.append(kernel_desc(name, v))
        return (name, grid, block, lds)
    if OPT.get("mega", 0):
        mk = K("mega_kernel", lambda: gen_mega(a, "mega_kernel"), 256, CHAIN_LDS, 512)
        return finish(a, descs, [mk], extra_triv)
    k1a = K("k1a_kernel", lambda: gen_k1(a, "k1a_kernel", KA_X, 0, True), 256 + WT_WGS + PF_WGS, k1_lds(True))
    if OPT.get("chain", 1):
        k2 = K("k2_kernel", lambda: gen_k2(a, "k2_kernel"), KF, 2 * K2_BUF)
        ca = K("cha_kernel", lambda: gen_chain(a, "cha_kernel", 0), 256, CHAIN_LDS, 512)
        cb = K("chb_kernel", lambda: gen_chain(a, "chb_kernel", 1), 256, CHAIN_LDS, 512)
        return finish(a, descs, [k1a, k2, ca, k2, cb], extra_triv)
    k1b = K("k1b_kernel", lambda: gen_k1(a, "k1b_kernel", KA_WS, X2_OFF, False), 256, k1_lds(False))
    k2 = K("k2_kernel", lambda: gen_k2(a, "k2_kernel"), KF, 2 * K2_BUF)
    k3a = K("k3a_kernel", lambda: gen_k3(a, "k3a_kernel", KA_X, 0, X1_OFF), 256, 4 * WAVE_LDS)
    k3b = K("k3b_kernel", lambda: gen_k3(a, "k3b_kernel", KA_WS, X2_OFF, X3_OFF), 256, 4 * WAVE_LDS)
    if OPT.get("g1_8w", 1):
        g1 = K("g1_kernel", lambda: gen_g1_8w(a, "g1_kernel"), G1_WGS, G1_LDS, 512)
    else:
        g1 = K("g1_kernel", lambda: gen_g1(a, "g1_kernel"), G1_WGS, G1_LDS)
    g2a = K("g2a_kernel", lambda: gen_g2(a, "g2a_kernel", X1_OFF, KA_WS, X2_OFF), 256, G2_LDS)
    g2b = K("g2b_kernel", lambda: gen_g2(a, "g2b_kernel", X3_OFF, KA_OUT, 0), 256, G2_LDS)
    launches = [k1a, k2, k3a, g1, g2a, k1b, k2, k3b, g1, g2b]
    return finish(a, descs, launches, extra_triv)


def finish(a, descs, launches, extra_triv):
    if extra_triv:
        kernel_header(a, "triv_kernel")
        a("s_endpgm")
        descs.append(kernel_desc("triv_kernel", 8, 16))
        launches += [("triv_kernel", 256, 256, 0)] * extra_triv
    emit_tables(a)
    a.label("code_end")
    hdr = []
    for (n, g, b, l) in launches:
        hdr.append(f"; @launch kernel={n} grid=({g},1,1) block=({b},1,1) lds={l}")
    out = "\n".join(hdr) + "\n"
    out += '.amdgcn_target "amdgcn-amd-amdhsa--gfx950"\n.text\n.p2align 8\ncode_start:\n'
    body = a.text()
    sf = OPT.get("stflag", "sc1")
    if sf:
        import re
        body = re.sub(r"(buffer_store_dword\S* [^\n]*)", lambda m: m.group(1) + " " + sf.replace("+", " "), body)
    out += body
    out += '.section .rodata,"a"\n' + "".join(descs)
    return out

if __name__ == "__main__":
    path = sys.argv[1] if len(sys.argv) > 1 else f"cdna_kernels/{NAME}.s"
    extra = int(sys.argv[2]) if len(sys.argv) > 2 else 0
    if len(sys.argv) > 3 and sys.argv[3] == "instr":
        INSTR["on"] = True
    for kv in sys.argv[4:]:
        k, v = kv.split("=")
        OPT[k] = int(v) if v.isdigit() else v
    open(path, "w").write(build(extra))
    print("wrote", path)
```

```python
from common import *
from fft_kernels import *
from gemm_kernels import *
from gemm1_8w import *
from chain import XN2_OFF, H2_OFF, PB, CHAIN_LDS

T1B_OFF = 0x2500000
T2B_OFF = 0x2A00000
MCNT_OFF = 0x3000000
NCNT = 384
SPW = 200


def gen_k2f(a, fz, special, t1_off, t2_off, w_early):
    make_tab_srd(a, 16, TAB2048A, 2048)
    a(f"s_mov_b32 s20, 0x{f2u(math.sqrt(0.5)):08x}")
    a("s_mov_b32 s21, s20")
    a(f"s_mov_b64 s[6:7], {sp(fz['ptr'](KA_WS))}")
    make_srd(a, 12, 6, WS_BYTES)
    Z = [10 + 2 * j for j in range(8)]
    T = [26 + 2 * j for j in range(8)]
    TW1, TW2, TW3 = 42, 58, 74
    WV = 90
    v1w, v1r, v2w, v2r, v3w, v3r = 98, 99, 100, 101, 102, 103
    a("v_lshlrev_b32 v3, 3, v0")
    a(f"buffer_load_dwordx2 {vp(TW1+2)}, v3, s[16:19], 0 offen")
    a("v_and_b32 v5, 31, v0")
    a("v_lshlrev_b32 v5, 6, v5")
    a(f"buffer_load_dwordx2 {vp(TW2+2)}, v5, s[16:19], 0 offen")
    a("v_and_b32 v5, 3, v0")
    a("v_lshlrev_b32 v5, 9, v5")
    a(f"buffer_load_dwordx2 {vp(TW3+2)}, v5, s[16:19], 0 offen")

    def w_loads():
        a("v_lshlrev_b32 v6, 2, v0")
        if not special:
            a("s_lshl_b32 s29, s95, 13")
            a(f"s_add_u32 s29, s29, 0x{WT_OFF:x}")
            a("s_add_u32 s30, s29, 4096")
            for j in range(8):
                a(f"buffer_load_dword v{WV+j}, v6, s[12:15], s{29+(j>>2)} offen offset:{1024*(j&3)}")
        else:
            for j in range(8):
                a(f"v_sub_u32 v7, {2048-256*j}, v0")
                a("v_and_b32 v7, 2047, v7")
                a("v_lshlrev_b32 v7, 2, v7")
                a(f"s_mov_b32 s29, 0x{WT_OFF + 1024*j:x}")
                a(f"buffer_load_dword v{104+4*j}, v6, s[12:15], s29 offen")
                a(f"s_mov_b32 s29, 0x{WT_OFF + 256*8192 + 1024*j:x}")
                a(f"buffer_load_dword v{105+4*j}, v6, s[12:15], s29 offen")
                a(f"s_mov_b32 s29, 0x{WT_OFF:x}")
                a(f"buffer_load_dword v{106+4*j}, v7, s[12:15], s29 offen")
                a(f"s_mov_b32 s29, 0x{WT_OFF + 256*8192:x}")
                a(f"buffer_load_dword v{107+4*j}, v7, s[12:15], s29 offen")
    def uv_compute():
        a("s_mov_b32 s22, 0.25")
        a("s_mov_b32 s23, 0.25")
        for j in range(8):
            w0, w6, m0, m6 = T[0], T[1], T[2], T[3]
            for (d, r) in ((w0, 104), (w6, 105), (m0, 106), (m6, 107)):
                a(f"v_lshlrev_b32 v{d}, 16, v{r+4*j}")
                a(f"v_and_b32 v{d+1}, 0xffff0000, v{r+4*j}")
            a(f"v_pk_add_f32 {vp(w0)}, {vp(w0)}, {vp(m0)} neg_hi:[0,1]")
            a(f"v_pk_add_f32 {vp(w6)}, {vp(w6)}, {vp(m6)} neg_hi:[0,1]")
            cadd(a, m0, w0, w6)
            csub(a, m6, w0, w6)
            a(f"v_pk_mul_f32 {vp(104+4*j)}, {vp(m0)}, s[22:23]")
            a(f"v_pk_mul_f32 {vp(106+4*j)}, {vp(m6)}, s[22:23]")
    if w_early:
        w_loads()
        if special:
            a("s_waitcnt vmcnt(0)")
            uv_compute()
    a(f"v_lshlrev_b32 v{v1w}, 3, v0")
    a("v_lshrrev_b32 v7, 5, v0")
    a("v_and_b32 v8, 31, v0")
    a("v_lshl_add_u32 v9, v7, 8, v8")
    a(f"v_lshlrev_b32 v{v1r}, 3, v9")
    a("v_mul_u32_u24 v9, 288, v7")
    a("v_add_u32 v8, v9, v8")
    a(f"v_lshlrev_b32 v{v2w}, 3, v8")
    a("v_bfe_u32 v8, v0, 2, 3")
    a("v_mul_u32_u24 v8, 36, v8")
    a("v_add_u32 v9, v9, v8")
    a("v_and_b32 v8, 3, v0")
    a("v_add_u32 v9, v9, v8")
    a(f"v_lshlrev_b32 v{v2r}, 3, v9")
    a("v_lshlrev_b32 v9, 2, v7")
    a("v_bfe_u32 v7, v0, 2, 2")
    a("v_add_u32 v9, v9, v7")
    a("v_bfe_u32 v7, v0, 4, 1")
    a("v_lshl_add_u32 v9, v7, 5, v9")
    a("v_mul_u32_u24 v8, 68, v8")
    a("v_add_u32 v9, v9, v8")
    a(f"v_lshlrev_b32 v{v3w}, 3, v9")
    a("v_and_b32 v7, 7, v0")
    a("v_lshlrev_b32 v9, 2, v7")
    a("v_bfe_u32 v7, v0, 3, 2")
    a("v_add_u32 v9, v9, v7")
    a("v_bfe_u32 v7, v0, 5, 1")
    a("v_lshl_add_u32 v9, v7, 5, v9")
    a("v_lshrrev_b32 v7, 6, v0")
    a("v_mul_u32_u24 v7, 272, v7")
    a("v_add_u32 v9, v9, v7")
    a(f"v_lshlrev_b32 v{v3r}, 3, v9")
    a("s_waitcnt vmcnt(0)") if False else None
    fz['poll'](a)
    a("s_barrier")
    a(f"s_mul_i32 s28, s95, {T1_PITCH}")
    a(f"s_add_u32 s28, s28, 0x{t1_off:x}")
    for jj in range(4):
        a(f"s_add_u32 s{36+jj}, s28, {4096*jj}")
    for j in range(8):
        a(f"buffer_load_dwordx2 {vp(Z[j])}, v3, s[12:15], s{36+(j>>1)} offen offset:{2048*(j&1)}")
    nw = 0
    if not w_early:
        w_loads()
        nw = 32 if special else 8
    nd = 8
    a(f"s_waitcnt vmcnt({nd + nw})")
    tw_powers(a, TW1, T[0])
    tw_powers(a, TW2, T[0])
    tw_powers(a, TW3, T[0])
    a(f"s_waitcnt vmcnt({nw})")
    B0, B1, B2 = 0, K2_BUF, 2 * K2_BUF

    def fft2048(sgn):
        radix8(a, Z, T, 20, sgn)
        for k in range(1, 8):
            cmul_tw(a, Z[k], Z[k], TW1 + 2 * k, T[k], sgn)
        for k in range(8):
            a(f"ds_write_b64 v{v1w}, {vp(Z[k])} offset:{B0 + 2048*k}")
        a("s_waitcnt lgkmcnt(0)")
        a("s_barrier")
        for j in range(8):
            a(f"ds_read_b64 {vp(Z[j])}, v{v1r} offset:{B0 + 256*j}")
        a("s_waitcnt lgkmcnt(0)")
        radix8(a, Z, T, 20, sgn)
        for k in range(1, 8):
            cmul_tw(a, Z[k], Z[k], TW2 + 2 * k, T[k], sgn)
        for k in range(8):
            a(f"ds_write_b64 v{v2w}, {vp(Z[k])} offset:{B2 + 36*8*k}")
        for c in range(8):
            a(f"ds_read_b64 {vp(Z[c])}, v{v2r} offset:{B2 + 32*c}")
        a("s_waitcnt lgkmcnt(0)")
        radix8(a, Z, T, 20, sgn)
        for k in range(1, 8):
            cmul_tw(a, Z[k], Z[k], TW3 + 2 * k, T[k], sgn)
        for k in range(8):
            a(f"ds_write_b64 v{v3w}, {vp(Z[k])} offset:{B1 + 272*8*k}")
        a("s_waitcnt lgkmcnt(0)")
        a("s_barrier")
        for hi in range(2):
            for n in range(4):
                a(f"ds_read_b64 {vp(Z[hi + 2*n])}, v{v3r} offset:{B1 + (68*n + 272*4*hi)*8}")
        a("s_waitcnt lgkmcnt(0)")
        radix4(a, [Z[0], Z[2], Z[4], Z[6]], T[0:4], sgn)
        radix4(a, [Z[1], Z[3], Z[5], Z[7]], T[4:8], sgn)

    fft2048(+1)
    a("s_waitcnt vmcnt(0)")
    if not special:
        for j in range(8):
            w = T[j ^ 1]
            a(f"v_lshlrev_b32 v{w}, 16, v{WV+j}")
            a(f"v_and_b32 v{w+1}, 0xffff0000, v{WV+j}")
            cmul_tw(a, Z[j], Z[j], w, T[j], +1)
    else:
        B3 = B2
        for j in range(8):
            a(f"ds_write_b64 v3, {vp(Z[j])} offset:{B3 + 2048*j}")
        a("s_waitcnt lgkmcnt(0)")
        a("s_barrier")
        M = [136 + 2 * j for j in range(8)]
        for j in range(8):
            a(f"v_sub_u32 v7, {2048-256*j}, v0")
            a("v_and_b32 v7, 2047, v7")
            a("v_lshlrev_b32 v7, 3, v7")
            a(f"ds_read_b64 {vp(M[j])}, v7 offset:{B3}")
        if not w_early:
            uv_compute()
        a("s_waitcnt lgkmcnt(0)")
        for j in range(8):
            cmul_tw(a, T[4], Z[j], 104 + 4 * j, T[5], +1)
            a(f"v_xor_b32 v{M[j]+1}, 0x80000000, v{M[j]+1}")
            cmul_tw(a, T[6], M[j], 106 + 4 * j, T[7], +1)
            cadd(a, Z[j], T[4], T[6])
    fft2048(-1)
    a("v_lshrrev_b32 v4, 3, v0")
    a(f"v_mul_u32_u24 v4, {T2_PITCH}, v4")
    a("v_and_b32 v5, 7, v0")
    a("v_lshl_add_u32 v4, v5, 3, v4")
    a("s_lshl_b32 s28, s95, 6")
    for j in range(8):
        a(f"s_add_u32 s29, s28, 0x{t2_off + 32*j*T2_PITCH:x}")
        a(f"buffer_store_dwordx2 {vp(Z[j])}, v4, s[12:15], s29 offen")


def gen_mega(a, name):
    kernel_header(a, name, "whole network, one persistent launch")
    Lend = a.newlabel("Lend")
    a("s_cmp_ge_u32 s2, 256")
    a(f"s_cbranch_scc1 {Lend}")
    a(f"s_load_dwordx16 s[{PB}:{PB+15}], s[0:1], 0")
    a(f"s_load_dwordx4 s[{PB+16}:{PB+19}], s[0:1], 64")
    a(f"s_load_dwordx2 s[{PB+20}:{PB+21}], s[0:1], 80")
    a("v_and_b32 v1, 63, v0")
    a("v_lshrrev_b32 v2, 6, v0")
    a("s_nop 0")
    a("v_readfirstlane_b32 s3, v2")
    a("s_waitcnt lgkmcnt(0)")
    ptr = lambda ka: PB + ka // 4
    make_srd_off(a, 96, ptr(KA_WS), MCNT_OFF, NCNT * 256)
    a("s_mov_b32 s95, s2")
    a("s_cmp_eq_u32 s2, 0")
    a(f"s_cselect_b32 s95, {SPW}, s95")
    a(f"s_cmp_eq_u32 s2, {SPW}")
    a("s_cselect_b32 s95, 0, s95")
    inner = INSTR["on"]
    INSTR["on"] = False
    if inner:
        make_srd_off(a, 88, ptr(KA_WS), STAMP_OFF + 6 * 65536, 65536)

    def cstamp(i, real=False):
        if not inner:
            return
        L = a.newlabel("Lcs")
        a("s_cmp_lg_u32 s3, 0")
        a(f"s_cbranch_scc1 {L}")
        a("s_memrealtime s[86:87]" if real else "s_memtime s[86:87]")
        a("s_lshl_b32 s92, s2, 7")
        a("s_waitcnt lgkmcnt(0)")
        a("v_mov_b32 v158, s86")
        a(f"v_mov_b32 v159, {4*i}")
        a("buffer_store_dword v158, v159, s[88:91], s92 offen")
        a.label(L)

    def mk_poll(emit_off, target):
        def poll(a):
            Ld = a.newlabel("Lpd")
            Ll = a.newlabel("Lpl")
            a("s_cmp_lg_u32 s3, 0")
            a(f"s_cbranch_scc1 {Ld}")
            emit_off(a)
            a("v_mov_b32 v159, 0")
            a("s_mov_b32 s93, 0")
            a.label(Ll)
            a("v_mov_b32 v158, 0")
            a("s_mov_b64 exec, 1")
            a("buffer_atomic_add v158, v159, s[96:99], s92 offen sc0 sc1")
            a("s_mov_b64 exec, -1")
            a("s_waitcnt vmcnt(0)")
            a("v_readfirstlane_b32 s94, v158")
            a("s_add_u32 s93, s93, 1")
            a(f"s_cmp_ge_u32 s94, {target}")
            a(f"s_cbranch_scc1 {Ld}")
            a("s_cmp_gt_u32 s93, 0x40000")
            a(f"s_cbranch_scc1 {Ld}")
            a(f"s_sleep {OPT.get('sleep', 2)}")
            a(f"s_branch {Ll}")
            a.label(Ld)
        return poll

    def mk_poll_all(setidx):
        def off(a):
            a("s_lshr_b32 s92, s2, 4")
            a("s_lshl_b32 s92, s92, 8")
            a(f"s_add_u32 s92, s92, {(128 + 64*setidx + 16)*256}")
        return mk_poll(off, 16)

    def publish(emit_off):
        L = a.newlabel("Lpub")
        a("s_waitcnt vmcnt(0)")
        a("s_barrier")
        a("s_cmp_lg_u32 s3, 0")
        a(f"s_cbranch_scc1 {L}")
        emit_off(a)
        a("v_mov_b32 v158, 1")
        a("v_mov_b32 v159, 0")
        a("s_mov_b64 exec, 1")
        a("buffer_atomic_add v158, v159, s[96:99], s92 offen sc1")
        a("s_mov_b64 exec, -1")
        a.label(L)

    def publish_all(setidx):
        L = a.newlabel("Lpub")
        base = (128 + 64 * setidx) * 256
        a("s_waitcnt vmcnt(0)")
        a("s_barrier")
        a("s_cmp_lg_u32 s3, 0")
        a(f"s_cbranch_scc1 {L}")
        a("s_lshr_b32 s92, s2, 4")
        a("s_lshl_b32 s92, s92, 8")
        a(f"s_add_u32 s92, s92, {base}")
        a("v_mov_b32 v158, 1")
        a("v_mov_b32 v159, 0")
        a("s_mov_b64 exec, 1")
        a("buffer_atomic_add v158, v159, s[96:99], s92 offen sc0 sc1")
        a("s_waitcnt vmcnt(0)")
        a("v_readfirstlane_b32 s94, v158")
        a("s_cmp_lg_u32 s94, 15")
        a(f"s_cbranch_scc1 {L}x")
        a("s_mov_b64 exec, 0xffff")
        a("v_mov_b32 v158, 1")
        a("v_lshlrev_b32 v159, 8, v1")
        a(f"s_mov_b32 s92, {base + 16*256}")
        a("buffer_atomic_add v158, v159, s[96:99], s92 offen sc1")
        a.label(L + "x")
        a("s_mov_b64 exec, -1")
        a.label(L)

    def four_wave_phase(fn, alt=None):
        Ls = a.newlabel("Lskip")
        Lj = a.newlabel("Ljoin")
        a("s_cmp_ge_u32 s3, 4")
        a(f"s_cbranch_scc1 {Ls}")
        i0 = len(a.lines)
        fn()
        nb = sum(1 for l in a.lines[i0:] if l.strip() == "s_barrier")
        a(f"s_branch {Lj}")
        a.label(Ls)
        if alt is None:
            for _ in range(nb):
                a("s_barrier")
        else:
            alt(nb, Lj)
        a.label(Lj)

    cstamp(0)
    cstamp(30, True)

    def alt1(nb, Lj):
        assert nb == 1
        La = a.newlabel("Lalt")
        Lb = a.newlabel("Lalt")
        Lc = a.newlabel("Lalt")
        a("v_subrev_u32 v0, 256, v0")
        a(f"s_mov_b64 s[6:7], {sp(ptr(KA_WS))}")
        make_srd(a, 12, 6, WS_BYTES)
        make_srd(a, 44, ptr(KA_DBG), 256)
        a("s_cmp_lg_u32 s2, 255")
        a(f"s_cbranch_scc1 {Lc}")
        a("v_lshlrev_b32 v3, 8, v0")
        a("v_mov_b32 v4, 0")
        a("buffer_store_dword v4, v3, s[96:99], 0 offen")
        a("s_mov_b32 s29, 65536")
        a("buffer_store_dword v4, v3, s[96:99], s29 offen")
        a("s_waitcnt vmcnt(0)")
        a("v_mov_b32 v4, 1")
        a("v_mov_b32 v3, 0")
        a("s_mov_b64 exec, 1")
        a("buffer_atomic_add v4, v3, s[44:47], 0 offen sc1")
        a("s_mov_b64 exec, -1")
        a.label(Lc)
        Lw = a.newlabel("Lw")
        Lwl = a.newlabel("Lwl")
        a("s_cmp_lg_u32 s3, 7")
        a(f"s_cbranch_scc1 {Lw}")
        a("v_mov_b32 v3, 0")
        a("s_mov_b32 s93, 0")
        a.label(Lwl)
        a("buffer_load_dword v4, v3, s[44:47], 0 offen sc0 sc1")
        a("s_waitcnt vmcnt(0)")
        a("v_readfirstlane_b32 s94, v4")
        a("s_add_u32 s93, s93, 1")
        a("s_cmp_ge_u32 s94, 4")
        a(f"s_cbranch_scc1 {Lw}")
        a("s_cmp_gt_u32 s93, 0x40000")
        a(f"s_cbranch_scc1 {Lw}")
        a("s_sleep 8")
        a(f"s_branch {Lwl}")
        a.label(Lw)
        a(f"s_mov_b64 s[24:25], {sp(ptr(KA_WR))}")
        a(f"s_mov_b64 s[26:27], {sp(ptr(KA_WI))}")
        gen_wt(a, fused=True, lb0=0x5000, R=8)
        a("v_add_u32 v0, 256, v0")

    def alt_pf(nb, Lj):
        a("v_subrev_u32 v0, 256, v0")
        make_srd(a, 36, ptr(KA_W1), D * F * 2)
        make_srd(a, 40, ptr(KA_W2), D * F * 2)
        per = D * F * 2 // 256
        a(f"s_mul_i32 s29, s2, {per}")
        a("v_lshlrev_b32 v3, 4, v0")
        for r in range((per + 4095) // 4096):
            a(f"buffer_load_dwordx4 {vq(60+8*r)}, v3, s[36:39], s29 offen")
            a(f"buffer_load_dwordx4 {vq(64+8*r)}, v3, s[40:43], s29 offen")
            a("s_add_u32 s29, s29, 4096")
        l = a.newlabel("Lpc")
        a("s_getpc_b64 s[48:49]")
        a.label(l)
        a(f"s_sub_u32 s48, s48, {l}-code_start")
        a("s_subb_u32 s49, s49, 0")
        a("s_and_b32 s49, s49, 0xffff")
        a("s_mov_b32 s50, code_end-code_start")
        a("s_mov_b32 s51, 0x00020000")
        a("s_lshl_b32 s29, s2, 9")
        a("v_lshlrev_b32 v3, 1, v0")
        a("v_and_b32 v3, 0x1fc, v3")
        a("buffer_load_dword v80, v3, s[48:51], s29 offen")
        a("v_add_u32 v0, 256, v0")
        for _ in range(nb):
            a("s_barrier")

    fz = {"ptr": ptr, "packed": True}
    four_wave_phase(lambda: gen_k1(a, None, KA_X, 0, False, fz=fz, t1_off=T1_OFF), alt1)
    cstamp(1)
    publish_all(0)

    for layer in range(2):
        t1 = T1_OFF if layer == 0 else T1B_OFF
        t2 = T2_OFF if layer == 0 else T2B_OFF
        xn_off = XN_OFF if layer == 0 else XN2_OFF
        h_off = H_OFF if layer == 0 else H2_OFF
        cb = (64 * layer) * 256
        sb = 2 + 12 * layer
        cstamp(sb)
        fz = {"ptr": ptr, "poll": mk_poll_all(2 * layer)}
        Lsp = a.newlabel("Lsp")
        Lspj = a.newlabel("Lspj")
        a(f"s_cmp_eq_u32 s2, {SPW}")
        a(f"s_cbranch_scc1 {Lsp}")
        four_wave_phase(lambda: gen_k2f(a, fz, False, t1, t2, layer == 1), alt_pf if layer == 0 else None)
        a(f"s_branch {Lspj}")
        a.label(Lsp)
        four_wave_phase(lambda: gen_k2f(a, fz, True, t1, t2, layer == 1), alt_pf if layer == 0 else None)
        a.label(Lspj)
        cstamp(sb + 1)
        publish_all(2 * layer + 1)
        cstamp(sb + 2)
        fz = {"ptr": ptr, "poll": mk_poll_all(2 * layer + 1), "packed": True}
        if layer == 0:
            four_wave_phase(lambda: gen_k3(a, None, KA_X, 0, X1_OFF, fz=fz, xn_off=xn_off, t2_off=t2))
        else:
            four_wave_phase(lambda: gen_k3(a, None, KA_WS, X2_OFF, X3_OFF, fz=fz, xn_off=xn_off, t2_off=t2))
        cstamp(sb + 3)

        def off_c3_pub(a):
            a("s_lshr_b32 s92, s2, 4")
            a("s_lshl_b32 s92, s92, 8")
            a(f"s_add_u32 s92, s92, {cb}")
        publish(off_c3_pub)
        cstamp(sb + 4)
        Lg1 = a.newlabel("Lg1skip")
        a(f"s_cmp_ge_u32 s2, {G1_WGS}")
        a(f"s_cbranch_scc1 {Lg1}")

        def off_c3_wait(a):
            a("s_lshl_b32 s92, s10, 8")
            a(f"s_add_u32 s92, s92, {cb}")
        fz = {"ptr": ptr, "poll": mk_poll(off_c3_wait, 16), "cst": lambda i: None}
        gen_g1_8w(a, None, fz=fz, xn_off=xn_off, h_off=h_off)
        cstamp(sb + 5)

        def off_c1_pub(a):
            a("s_lshl_b32 s92, s10, 8")
            a(f"s_add_u32 s92, s92, {cb + 4096}")
        publish(off_c1_pub)
        a.label(Lg1)
        cstamp(sb + 6)

        def off_c1_wait(a):
            a("s_lshr_b32 s92, s10, 1")
            a("s_lshl_b32 s92, s92, 8")
            a(f"s_add_u32 s92, s92, {cb + 4096}")
        fz = {"ptr": ptr, "poll": mk_poll(off_c1_wait, 14)}
        if layer == 0:
            four_wave_phase(lambda: gen_g2(a, None, X1_OFF, KA_WS, X2_OFF, fz=fz, h_off=h_off))
        else:
            four_wave_phase(lambda: gen_g2(a, None, X3_OFF, KA_OUT, 0, fz=fz, h_off=h_off))
        cstamp(sb + 7)
        if layer == 0:
            def off_c2_pub(a):
                a("s_lshl_b32 s92, s10, 8")
                a(f"s_add_u32 s92, s92, {cb + 8192}")
            publish(off_c2_pub)
            cstamp(sb + 8)

            def off_c2_wait(a):
                a("s_lshr_b32 s92, s2, 3")
                a("s_lshl_b32 s92, s92, 8")
                a(f"s_add_u32 s92, s92, {cb + 8192}")
            fz = {"ptr": ptr, "poll": mk_poll(off_c2_wait, 8), "packed": True}
            four_wave_phase(lambda: gen_k1(a, None, KA_WS, X2_OFF, False, fz=fz, t1_off=T1B_OFF))
            cstamp(sb + 9)
            publish_all(2)
    if inner:
        a("s_waitcnt vmcnt(0)")
    cstamp(29)
    cstamp(31, True)
    a.label(Lend)
    a("s_endpgm")
    INSTR["on"] = inner
    return 160
```

```python
from common import *

G1_STAGE = 32768
G1_NST = 4
G1_LDS = G1_STAGE * G1_NST
G1_WGS = 224


def gen_g1(a, name):
    kernel_header(a, name, "GEMM1 + bias + gelu")
    Lend = a.newlabel("Lend")
    a(f"s_cmp_ge_u32 s2, {OPT.get('g1_wgs', G1_WGS)}")
    a(f"s_cbranch_scc1 {Lend}")
    stamp(a, 0)
    stamp_real(a, 6)
    a(f"s_load_dwordx4 s[4:7], s[0:1], {KA_W1}")
    a(f"s_load_dwordx2 s[8:9], s[0:1], {KA_WS}")
    a("v_and_b32 v1, 63, v0")
    a("v_lshrrev_b32 v2, 6, v0")
    a("s_nop 0")
    a("v_readfirstlane_b32 s3, v2")
    if OPT.get("g1_map", 1) == 0:
        a("s_and_b32 s10, s2, 7")
        a("s_lshr_b32 s11, s2, 3")
        a("s_and_b32 s28, s11, 1")
        a("s_lshl_b32 s10, s10, 1")
        a("s_add_u32 s10, s10, s28")
        a("s_lshr_b32 s11, s11, 1")
    else:
        a("s_and_b32 s10, s2, 7")
        a("s_lshr_b32 s11, s2, 3")
        a("s_and_b32 s28, s11, 3")
        a("s_lshr_b32 s11, s11, 2")
        a("s_and_b32 s29, s10, 1")
        a("s_mul_i32 s29, s29, 7")
        a("s_add_u32 s11, s11, s29")
        a("s_lshr_b32 s10, s10, 1")
        a("s_lshl_b32 s10, s10, 2")
        a("s_add_u32 s10, s10, s28")
    a("s_waitcnt lgkmcnt(0)")
    stamp(a, 8)
    make_srd(a, 12, 4, D * F * 2)
    make_srd(a, 16, 6, F * 2)
    make_srd_off(a, 20, 8, XN_OFF, S * D * 2)
    make_srd_off(a, 24, 8, H_OFF, S * F * 2)
    vAd0, vAd1, vWd = 3, 4, 5
    a("v_lshrrev_b32 v6, 3, v1")
    a("v_lshlrev_b32 v6, 10, v6")
    a("v_and_b32 v7, 7, v1")
    a("v_lshrrev_b32 v8, 4, v1")
    a("v_xor_b32 v7, v7, v8")
    a(f"v_lshl_add_u32 v{vAd0}, v7, 4, v6")
    a("v_xor_b32 v7, 4, v7")
    a(f"v_lshl_add_u32 v{vAd1}, v7, 4, v6")
    a("s_lshl_b32 s28, s10, 17")
    a("s_lshl_b32 s29, s3, 15")
    a("s_add_u32 s28, s28, s29")
    a("v_lshrrev_b32 v8, 4, v1")
    a("v_and_b32 v7, 15, v1")
    a("v_lshlrev_b32 v9, 2, v8")
    a("v_xor_b32 v7, v7, v9")
    a("s_movk_i32 s30, 3584")
    a("v_mul_lo_u32 v8, v8, s30")
    a(f"v_lshl_add_u32 v{vWd}, v7, 4, v8")
    a("s_lshl_b32 s31, s11, 8")
    a(f"s_mul_i32 s29, s3, {16*3584}")
    a("s_add_u32 s31, s31, s29")
    a("s_lshl_b32 s32, s3, 12")

    def issue_stage(st):
        slot = st % G1_NST
        for q in range(4):
            a(f"s_add_u32 m0, s32, {slot*G1_STAGE + q*1024}")
            a(f"s_add_u32 s33, s28, {q*8192 + st*128}")
            a(f"buffer_load_dwordx4 v{vAd1 if q & 1 else vAd0}, s[20:23], s33 offen lds")
        for q in range(4):
            a(f"s_add_u32 m0, s32, {slot*G1_STAGE + 16384 + q*1024}")
            a(f"s_add_u32 s33, s31, {(st*64 + 4*q)*3584}")
            a(f"buffer_load_dwordx4 v{vWd}, s[12:15], s33 offen lds")

    stamp(a, 9)
    if OPT.get("g1_mode") == "regonly":
        for st in range(8):
            for q in range(4):
                a(f"s_add_u32 s33, s28, {q*8192 + st*128}")
                a(f"buffer_load_dwordx4 {vq(32 + 4*((8*st+q) % 30))}, v{vAd1 if q & 1 else vAd0}, s[20:23], s33 offen")
            for q in range(4):
                a(f"s_add_u32 s33, s31, {(st*64 + 4*q)*3584}")
                a(f"buffer_load_dwordx4 {vq(32 + 4*((8*st+4+q) % 30))}, v{vWd}, s[12:15], s33 offen")
            if st == 3:
                stamp(a, 10)
        stamp(a, 1)
        a("s_waitcnt vmcnt(0)")
        for i in (2, 3, 4, 5, 11):
            stamp(a, i)
        stamp_real(a, 7)
        stamp_dump(a, 12, 8, 3)
        a.label(Lend)
        a("s_endpgm")
        return 160
    if OPT.get("g1_mode") == "dmaonly":
        for st in range(8):
            issue_stage(st)
            if st == 3:
                stamp(a, 10)
        stamp(a, 1)
        a("s_waitcnt vmcnt(0)")
        for i in (2, 3, 4, 5, 11):
            stamp(a, i)
        stamp_real(a, 7)
        stamp_dump(a, 12, 8, 3)
        a.label(Lend)
        a("s_endpgm")
        return 160
    issue_stage(0)
    issue_stage(1)
    stamp(a, 10)
    order = [0]*8 + [1]*8
    BI = 10
    a("s_lshr_b32 s34, s3, 1")
    a("s_and_b32 s35, s3, 1")
    AA = 26
    a("v_and_b32 v6, 31, v1")
    a("v_lshlrev_b32 v6, 7, v6")
    a("s_lshl_b32 s37, s35, 13")
    a("v_add_u32 v6, s37, v6")
    a("v_lshrrev_b32 v7, 5, v1")
    a("v_bfe_u32 v8, v1, 1, 3")
    a("v_xor_b32 v7, v7, v8")
    a("v_lshl_add_u32 v6, v7, 4, v6")
    for ks in range(4):
        a(f"v_xor_b32 v{AA+ks}, {32*ks}, v6")
        a(f"v_add_u32 v{AA+4+ks}, 0x10000, v{AA+ks}")
    WA = 34
    a("v_lshrrev_b32 v6, 5, v1")
    a("v_lshlrev_b32 v6, 3, v6")
    a("v_bfe_u32 v7, v1, 2, 2")
    a("v_add_u32 v6, v6, v7")
    a("v_lshlrev_b32 v6, 8, v6")
    a("v_bfe_u32 v8, v1, 4, 1")
    a("v_lshlrev_b32 v8, 1, v8")
    a("v_bfe_u32 v9, v1, 1, 1")
    a("v_add_u32 v8, v8, v9")
    a("s_lshl_b32 s37, s34, 3")
    a("v_add_u32 v8, s37, v8")
    a("v_lshlrev_b32 v7, 2, v7")
    a("v_xor_b32 v8, v8, v7")
    a("v_lshl_add_u32 v6, v8, 4, v6")
    a("v_and_b32 v9, 1, v1")
    a("v_lshl_add_u32 v6, v9, 3, v6")
    a(f"v_add_u32 v{WA}, 16384, v6")
    a(f"v_xor_b32 v{WA+1}, 64, v{WA}")
    a(f"v_add_u32 v{WA+2}, 0x10000, v{WA}")
    a(f"v_add_u32 v{WA+3}, 0x10000, v{WA+1}")
    ACC = 64
    for i in range(64):
        a(f"v_mov_b32 v{ACC+i}, 0")
    issue_stage(2)
    issue_stage(3)
    order += [2]*8 + [3]*8
    a("v_lshrrev_b32 v6, 5, v1")
    a("v_lshlrev_b32 v6, 3, v6")
    a("s_lshl_b32 s36, s11, 8")
    a("s_lshl_b32 s37, s34, 7")
    a("s_add_u32 s36, s36, s37")
    for nt in range(2):
        for q in range(4):
            a(f"buffer_load_dwordx2 {vp(BI + 2*(4*nt+q))}, v6, s[16:19], s36 offen offset:{64*nt + 16*q}")
    order += ['b']*8
    stamp(a, 11)
    FR = [128, 144]

    def rd(st, ks, fs, which):
        slot = st % G1_NST
        s2_ = slot >> 1
        so = (slot & 1) * G1_STAGE
        f = FR[fs]
        if which[0] == 'W':
            nt, h = which[1], which[2]
            a(f"ds_read_b64_tr_b16 {vp(f + 4*nt + 2*h)}, v{WA + 2*s2_ + nt} offset:{so + (16*ks + 4*h)*256}")
        else:
            mt = which[1]
            a(f"ds_read_b128 {vq(f + 8 + 4*mt)}, v{AA + 4*s2_ + ks} offset:{so + mt*4096}")

    RD_ORDER = [('W', 0, 0), ('W', 0, 1), ('A', 0), ('A', 1), ('W', 1, 0), ('W', 1, 1)]

    def mf(fs, nt, mt):
        f = FR[fs]
        c = ACC + 16 * (2 * nt + mt)
        a(f"v_mfma_f32_32x32x16_bf16 v[{c}:{c+15}], {vq(f + 4*nt)}, {vq(f + 8 + 4*mt)}, v[{c}:{c+15}]")

    NSTG = D // 64

    def need(tag):
        last = max(i for i, t in enumerate(order) if t == tag)
        return len(order) - 1 - last
    stamp(a, 1)
    a(f"s_waitcnt vmcnt({need(0)})")
    a("s_barrier")
    stamp(a, 2)
    for w in RD_ORDER:
        rd(0, 0, 0, w)
    fs = 0
    steps = [(st, ks) for st in range(NSTG) for ks in range(4)]
    for i, (st, ks) in enumerate(steps):
        nxt = steps[i + 1] if i + 1 < len(steps) else None
        cross = nxt is not None and nxt[0] != st
        a("s_waitcnt lgkmcnt(3)")
        mf(fs, 0, 0)
        if cross:
            a("s_waitcnt lgkmcnt(2)")
            mf(fs, 0, 1)
            a(f"s_waitcnt vmcnt({need(st+1)}) lgkmcnt(0)")
            a("s_barrier")
            for w in RD_ORDER[0:4]:
                rd(nxt[0], nxt[1], fs ^ 1, w)
            mf(fs, 1, 0)
            for w in RD_ORDER[4:6]:
                rd(nxt[0], nxt[1], fs ^ 1, w)
            mf(fs, 1, 1)
            if st + 4 < NSTG:
                issue_stage(st + 4)
                order.extend([st + 4] * 8)
        elif nxt is not None:
            for w in RD_ORDER[0:2]:
                rd(nxt[0], nxt[1], fs ^ 1, w)
            a("s_waitcnt lgkmcnt(4)")
            mf(fs, 0, 1)
            for w in RD_ORDER[2:4]:
                rd(nxt[0], nxt[1], fs ^ 1, w)
            a("s_waitcnt lgkmcnt(4)")
            mf(fs, 1, 0)
            for w in RD_ORDER[4:6]:
                rd(nxt[0], nxt[1], fs ^ 1, w)
            mf(fs, 1, 1)
        else:
            a("s_waitcnt lgkmcnt(2)")
            mf(fs, 0, 1)
            a("s_waitcnt lgkmcnt(0)")
            mf(fs, 1, 0)
            mf(fs, 1, 1)
        fs ^= 1
    stamp(a, 3)
    a("s_waitcnt vmcnt(0)")
    c_k0 = 2.0 * math.sqrt(2.0 / math.pi) * math.log2(math.e)
    c_k1 = c_k0 * 0.044715
    a(f"s_mov_b32 s40, 0x{f2u(-c_k0):08x}")
    a("s_mov_b32 s41, s40")
    a(f"s_mov_b32 s42, 0x{f2u(-c_k1):08x}")
    a("s_mov_b32 s43, s42")
    a("s_mov_b32 s44, 1.0")
    a("s_mov_b32 s45, 1.0")
    BF = 128
    for e in range(8):
        for d in range(2):
            a(f"v_lshlrev_b32 v{BF + 4*e + 2*d}, 16, v{BI + 2*e + d}")
            a(f"v_and_b32 v{BF + 4*e + 2*d + 1}, 0xffff0000, v{BI + 2*e + d}")
    a("s_lshl_b32 s37, s3, 13")
    a("v_and_b32 v6, 31, v1")
    a("v_lshlrev_b32 v7, 7, v6")
    a("v_add_u32 v7, s37, v7")
    a("v_lshrrev_b32 v8, 5, v1")
    a("v_lshl_add_u32 v7, v8, 3, v7")
    a("v_and_b32 v8, 7, v1")
    a("v_lshl_add_u32 v7, v8, 4, v7")
    T0 = 26
    for nt in range(2):
        for mt in range(2):
            c = ACC + 16 * (2 * nt + mt)
            for q in range(4):
                x = c + 4 * q
                bfr = BF + 4 * (4 * nt + q)
                t = T0 + 8 * (q & 1)
                a(f"v_cvt_pk_bf16_f32 v{t}, v{x}, v{x+1}")
                a(f"v_cvt_pk_bf16_f32 v{t+1}, v{x+2}, v{x+3}")
                a(f"v_lshlrev_b32 v{x}, 16, v{t}")
                a(f"v_and_b32 v{x+1}, 0xffff0000, v{t}")
                a(f"v_lshlrev_b32 v{x+2}, 16, v{t+1}")
                a(f"v_and_b32 v{x+3}, 0xffff0000, v{t+1}")
                a(f"v_pk_add_f32 {vp(x)}, {vp(x)}, {vp(bfr)}")
                a(f"v_pk_add_f32 {vp(x+2)}, {vp(x+2)}, {vp(bfr+2)}")
                a(f"v_cvt_pk_bf16_f32 v{t}, v{x}, v{x+1}")
                a(f"v_cvt_pk_bf16_f32 v{t+1}, v{x+2}, v{x+3}")
                a(f"v_lshlrev_b32 v{x}, 16, v{t}")
                a(f"v_and_b32 v{x+1}, 0xffff0000, v{t}")
                a(f"v_lshlrev_b32 v{x+2}, 16, v{t+1}")
                a(f"v_and_b32 v{x+3}, 0xffff0000, v{t+1}")
                a(f"v_pk_mul_f32 {vp(t)}, {vp(x)}, {vp(x)}")
                a(f"v_pk_mul_f32 {vp(t+2)}, {vp(x+2)}, {vp(x+2)}")
                a(f"v_pk_mul_f32 {vp(t)}, {vp(t)}, s[42:43]")
                a(f"v_pk_mul_f32 {vp(t+2)}, {vp(t+2)}, s[42:43]")
                a(f"v_pk_add_f32 {vp(t)}, {vp(t)}, s[40:41]")
                a(f"v_pk_add_f32 {vp(t+2)}, {vp(t+2)}, s[40:41]")
                a(f"v_pk_mul_f32 {vp(t)}, {vp(t)}, {vp(x)}")
                a(f"v_pk_mul_f32 {vp(t+2)}, {vp(t+2)}, {vp(x+2)}")
                for e in range(4):
                    a(f"v_exp_f32 v{t+e}, v{t+e}")
                a(f"v_pk_add_f32 {vp(t)}, {vp(t)}, s[44:45]")
                a(f"v_pk_add_f32 {vp(t+2)}, {vp(t+2)}, s[44:45]")
                for e in range(4):
                    a(f"v_rcp_f32 v{t+e}, v{t+e}")
                a(f"v_pk_mul_f32 {vp(x)}, {vp(x)}, {vp(t)}")
                a(f"v_pk_mul_f32 {vp(x+2)}, {vp(x+2)}, {vp(t+2)}")
                a(f"v_cvt_pk_bf16_f32 v{t+4}, v{x}, v{x+1}")
                a(f"v_cvt_pk_bf16_f32 v{t+5}, v{x+2}, v{x+3}")
                a(f"v_xor_b32 v{t+6}, {16*(4*nt+q)}, v7")
                a(f"ds_write_b64 v{t+6}, {vp(t+4)} offset:{mt*4096}")
    a("v_lshlrev_b32 v6, 4, v1")
    a("v_add_u32 v6, s37, v6")
    a("v_lshrrev_b32 v8, 3, v1")
    a("v_and_b32 v9, 7, v1")
    a("v_xor_b32 v9, v9, v8")
    a("s_movk_i32 s30, 3584")
    a("v_mul_lo_u32 v8, v8, s30")
    a("v_lshl_add_u32 v8, v9, 4, v8")
    a("s_lshl_b32 s38, s10, 7")
    a("s_lshl_b32 s39, s35, 6")
    a("s_add_u32 s38, s38, s39")
    a("s_mul_i32 s38, s38, 3584")
    a("s_add_u32 s38, s38, s36")
    a("s_waitcnt lgkmcnt(0)")
    for it in range(8):
        a(f"ds_read_b128 {vq(64+4*it)}, v6 offset:{1024*it}")
    for it in range(8):
        a(f"s_waitcnt lgkmcnt({7-it})")
        a(f"buffer_store_dwordx4 {vq(64+4*it)}, v8, s[24:27], s38 offen")
        a(f"s_add_u32 s38, s38, {8*3584}")
    stamp(a, 4)
    a("s_waitcnt vmcnt(0)")
    stamp(a, 5)
    stamp_real(a, 7)
    stamp_dump(a, 12, 8, 3)
    a.label(Lend)
    a("s_endpgm")
    return 160


G2_STAGE = 8192
G2_NST = 5
G2_LDS = G2_STAGE * G2_NST * 4


def gen_g2(a, name, res_off, out_ka, out_off, fz=None, h_off=H_OFF):
    Lend = a.newlabel("Lend")
    if fz is None:
        kernel_header(a, name, "GEMM2 + bias + residual")
        a("s_cmp_ge_u32 s2, 256")
        a(f"s_cbranch_scc1 {Lend}")
        stamp(a, 0)
        stamp_real(a, 6)
        a(f"s_load_dwordx4 s[4:7], s[0:1], {KA_W2}")
        a(f"s_load_dwordx2 s[8:9], s[0:1], {KA_WS}")
        a(f"s_load_dwordx2 s[40:41], s[0:1], {out_ka}")
        a("v_and_b32 v1, 63, v0")
        a("v_lshrrev_b32 v2, 6, v0")
        a("s_nop 0")
        a("v_readfirstlane_b32 s3, v2")
    else:
        a(f"s_mov_b64 s[4:5], {sp(fz['ptr'](KA_W2))}")
        a(f"s_mov_b64 s[6:7], {sp(fz['ptr'](KA_B2))}")
        a(f"s_mov_b64 s[8:9], {sp(fz['ptr'](KA_WS))}")
        a(f"s_mov_b64 s[40:41], {sp(fz['ptr'](out_ka))}")
    a("s_and_b32 s10, s2, 7")
    a("s_lshr_b32 s11, s2, 3")
    a("s_and_b32 s28, s11, 3")
    a("s_lshl_b32 s10, s10, 2")
    a("s_add_u32 s10, s10, s28")
    a("s_lshr_b32 s11, s11, 2")
    a("s_waitcnt lgkmcnt(0)")
    make_srd(a, 12, 4, F * D * 2)
    make_srd(a, 16, 6, D * 2)
    make_srd_off(a, 20, 8, h_off, S * F * 2)
    make_srd_off(a, 24, 8, res_off, S * D * 2)
    if out_off:
        make_srd_off(a, 44, 40, out_off, S * D * 2)
    else:
        make_srd(a, 44, 40, S * D * 2)
    vHd0, vHd1, vWd = 3, 4, 5
    a("v_lshrrev_b32 v6, 3, v1")
    a("s_movk_i32 s30, 3584")
    a("v_mul_lo_u32 v6, v6, s30")
    a("v_and_b32 v7, 7, v1")
    a("v_lshrrev_b32 v8, 4, v1")
    a("v_xor_b32 v7, v7, v8")
    a(f"v_lshl_add_u32 v{vHd0}, v7, 4, v6")
    a("v_xor_b32 v7, 4, v7")
    a(f"v_lshl_add_u32 v{vHd1}, v7, 4, v6")
    a("s_lshl_b32 s28, s10, 6")
    a("s_mul_i32 s28, s28, 3584")
    a("s_mul_i32 s29, s3, 896")
    a("s_add_u32 s28, s28, s29")
    a("v_lshrrev_b32 v6, 3, v1")
    a("v_lshlrev_b32 v6, 10, v6")
    a("v_and_b32 v7, 7, v1")
    a("v_bfe_u32 v8, v1, 4, 1")
    a("v_lshlrev_b32 v8, 2, v8")
    a("v_xor_b32 v7, v7, v8")
    a(f"v_lshl_add_u32 v{vWd}, v7, 4, v6")
    a(f"s_mul_i32 s31, s3, {448*1024}")
    a("s_lshl_b32 s29, s11, 7")
    a("s_add_u32 s31, s31, s29")
    a(f"s_mul_i32 s32, s3, {G2_STAGE*G2_NST}")
    NSTG = 448 // 64
    NU = 2 * NSTG

    scf = " sc1" if (fz is not None and OPT.get("ldsc1", 0)) else ""
    order = []

    def need(u):
        last = max(i for i, t in enumerate(order) if t <= u)
        return len(order) - 1 - last

    def issue_unit(u):
        order.extend([u] * 8)
        slot = u % G2_NST
        st = u >> 1
        for q in range(8):
            a(f"s_add_u32 m0, s32, {slot*G2_STAGE + q*1024}")
            if u & 1 == 0:
                a(f"s_add_u32 s33, s28, {q*8*3584 + st*128}")
                a(f"buffer_load_dwordx4 v{vHd1 if q & 1 else vHd0}, s[20:23], s33 offen{scf} lds")
            else:
                a(f"s_add_u32 s33, s31, {(st*64 + 8*q)*1024}")
                a(f"buffer_load_dwordx4 v{vWd}, s[12:15], s33 offen lds")

    if fz is None:
        for u in range(2):
            issue_unit(u)
    else:
        fz['poll'](a)
        for u in (1, 3):
            issue_unit(u)
    HA = 10
    a("v_and_b32 v6, 31, v1")
    a("v_lshlrev_b32 v6, 7, v6")
    a("v_add_u32 v6, s32, v6")
    a("v_lshrrev_b32 v7, 5, v1")
    a("v_bfe_u32 v8, v1, 1, 3")
    a("v_xor_b32 v7, v7, v8")
    a("v_lshl_add_u32 v6, v7, 4, v6")
    for ks in range(4):
        a(f"v_xor_b32 v{HA+ks}, {32*ks}, v6")
    WA = 14
    a("v_lshrrev_b32 v6, 5, v1")
    a("v_lshlrev_b32 v6, 3, v6")
    a("v_bfe_u32 v7, v1, 2, 2")
    a("v_add_u32 v6, v6, v7")
    a("v_lshlrev_b32 v6, 7, v6")
    a("v_bfe_u32 v8, v1, 4, 1")
    a("v_lshlrev_b32 v8, 1, v8")
    a("v_bfe_u32 v9, v1, 1, 1")
    a("v_add_u32 v8, v8, v9")
    a("v_bfe_u32 v7, v1, 3, 1")
    a("v_lshlrev_b32 v7, 2, v7")
    a("v_xor_b32 v8, v8, v7")
    a("v_lshl_add_u32 v6, v8, 4, v6")
    a("v_and_b32 v9, 1, v1")
    a("v_lshl_add_u32 v6, v9, 3, v6")
    a(f"v_add_u32 v{WA}, s32, v6")
    a(f"v_xor_b32 v{WA+1}, 64, v{WA}")
    ACC = 64
    for i in range(64):
        a(f"v_mov_b32 v{ACC+i}, 0")
    FR = [128, 144]
    if fz is None:
        for u in range(2, G2_NST):
            issue_unit(u)
    else:
        a("s_barrier")
        for u in (0, 2, 4):
            issue_unit(u)

    def rd(st, ks, fs, which):
        f = FR[fs]
        if which[0] == 'W':
            so = ((2 * st + 1) % G2_NST) * G2_STAGE
            nt, h = which[1], which[2]
            a(f"ds_read_b64_tr_b16 {vp(f + 4*nt + 2*h)}, v{WA + nt} offset:{so + (16*ks + 4*h)*128}")
        else:
            so = ((2 * st) % G2_NST) * G2_STAGE
            mt = which[1]
            a(f"ds_read_b128 {vq(f + 8 + 4*mt)}, v{HA + ks} offset:{so + mt*4096}")

    RD_ORDER = [('W', 0, 0), ('W', 0, 1), ('A', 0), ('A', 1), ('W', 1, 0), ('W', 1, 1)]

    def mf(fs, nt, mt):
        f = FR[fs]
        c = ACC + 16 * (2 * nt + mt)
        a(f"v_mfma_f32_32x32x16_bf16 v[{c}:{c+15}], {vq(f + 4*nt)}, {vq(f + 8 + 4*mt)}, v[{c}:{c+15}]")

    stamp(a, 1)
    a(f"s_waitcnt vmcnt({need(1)})")
    stamp(a, 2)
    for w in RD_ORDER:
        rd(0, 0, 0, w)
    fs = 0
    steps = [(st, ks) for st in range(NSTG) for ks in range(4)]
    for i, (st, ks) in enumerate(steps):
        nxt = steps[i + 1] if i + 1 < len(steps) else None
        cross = nxt is not None and nxt[0] != st
        a("s_waitcnt lgkmcnt(3)")
        mf(fs, 0, 0)
        if cross:
            a("s_waitcnt lgkmcnt(2)")
            mf(fs, 0, 1)
            a(f"s_waitcnt vmcnt({need(2*st+3)}) lgkmcnt(0)")
            for w in RD_ORDER[0:4]:
                rd(nxt[0], nxt[1], fs ^ 1, w)
            mf(fs, 1, 0)
            for w in RD_ORDER[4:6]:
                rd(nxt[0], nxt[1], fs ^ 1, w)
            mf(fs, 1, 1)
            for u in (2 * st + 5, 2 * st + 6):
                if u < NU:
                    issue_unit(u)
        elif nxt is not None:
            for w in RD_ORDER[0:2]:
                rd(nxt[0], nxt[1], fs ^ 1, w)
            a("s_waitcnt lgkmcnt(4)")
            mf(fs, 0, 1)
            for w in RD_ORDER[2:4]:
                rd(nxt[0], nxt[1], fs ^ 1, w)
            a("s_waitcnt lgkmcnt(4)")
            mf(fs, 1, 0)
            for w in RD_ORDER[4:6]:
                rd(nxt[0], nxt[1], fs ^ 1, w)
            mf(fs, 1, 1)
        else:
            a("s_waitcnt lgkmcnt(2)")
            mf(fs, 0, 1)
            a("s_waitcnt lgkmcnt(0)")
            mf(fs, 1, 0)
            mf(fs, 1, 1)
        fs ^= 1
    stamp(a, 3)
    RS = 272
    PT = 64 * RS
    a("v_lshrrev_b32 v6, 3, v1")
    a("v_lshlrev_b32 v6, 10, v6")
    a("v_and_b32 v7, 7, v1")
    a("v_lshl_add_u32 v6, v7, 4, v6")
    a("s_lshl_b32 s34, s10, 16")
    a("s_lshl_b32 s35, s3, 14")
    a("s_add_u32 s34, s34, s35")
    a("s_lshl_b32 s35, s11, 7")
    a("s_add_u32 s34, s34, s35")
    a(f"buffer_load_dwordx4 v[16:19], v6, s[24:27], s34 offen{scf}")
    a(f"s_add_u32 s36, s34, 8192")
    a(f"buffer_load_dwordx4 v[20:23], v6, s[24:27], s36 offen{scf}")
    a("v_lshlrev_b32 v8, 4, v7")
    a(f"buffer_load_dwordx4 v[24:27], v8, s[16:19], s35 offen")
    a("s_barrier")
    a(f"s_mul_i32 s37, s3, {PT}")
    a("v_and_b32 v9, 31, v1")
    a(f"v_mul_u32_u24 v9, {RS}, v9")
    a("v_lshrrev_b32 v10, 5, v1")
    a("v_lshl_add_u32 v9, v10, 4, v9")
    a("v_add_u32 v9, s37, v9")
    a("s_nop 7")
    for nt in range(2):
        for mt in range(2):
            c = ACC + 16 * (2 * nt + mt)
            for q in range(4):
                a(f"ds_write_b128 v9, {vq(c+4*q)} offset:{mt*32*RS + (32*nt + 8*q)*4}")
    a("s_waitcnt lgkmcnt(0)")
    a("s_barrier")
    a("v_lshrrev_b32 v9, 3, v1")
    a(f"v_mul_u32_u24 v9, {RS}, v9")
    a("v_lshl_add_u32 v9, v7, 5, v9")
    a(f"s_mul_i32 s37, s3, {16*RS}")
    a("v_add_u32 v9, s37, v9")
    for it in range(2):
        for p in range(4):
            for hh in range(2):
                a(f"ds_read_b128 {vq(64 + 32*it + 8*p + 4*hh)}, v9 offset:{p*PT + it*8*RS + hh*16}")
    a("s_waitcnt vmcnt(0)")
    for d in range(4):
        a(f"v_lshlrev_b32 v{28+2*d}, 16, v{24+d}")
        a(f"v_and_b32 v{29+2*d}, 0xffff0000, v{24+d}")
    a("s_waitcnt lgkmcnt(0)")
    for it in range(2):
        b = 64 + 32 * it
        for e in range(4):
            a(f"v_pk_add_f32 {vp(b+2*e)}, {vp(b+2*e)}, {vp(b+8+2*e)}")
            a(f"v_pk_add_f32 {vp(b+16+2*e)}, {vp(b+16+2*e)}, {vp(b+24+2*e)}")
        for e in range(4):
            a(f"v_pk_add_f32 {vp(b+2*e)}, {vp(b+2*e)}, {vp(b+16+2*e)}")
        for e in range(4):
            round_pair(a, b + 2 * e, 36 + e)
        for e in range(4):
            a(f"v_pk_add_f32 {vp(b+2*e)}, {vp(b+2*e)}, {vp(28+2*e)}")
        for e in range(4):
            round_pair(a, b + 2 * e, 36 + e)
        for e in range(4):
            a(f"v_lshlrev_b32 v{b+8+2*e}, 16, v{16+4*it+e}")
            a(f"v_and_b32 v{b+9+2*e}, 0xffff0000, v{16+4*it+e}")
        for e in range(4):
            a(f"v_pk_add_f32 {vp(b+2*e)}, {vp(b+2*e)}, {vp(b+8+2*e)}")
        for e in range(4):
            a(f"v_cvt_pk_bf16_f32 v{40+4*it+e}, v{b+2*e}, v{b+2*e+1}")
    a(f"buffer_store_dwordx4 v[40:43], v6, s[44:47], s34 offen")
    a(f"buffer_store_dwordx4 v[44:47], v6, s[44:47], s36 offen")
    if fz is not None:
        return 160
    stamp(a, 4)
    a("s_waitcnt vmcnt(0)")
    stamp(a, 5)
    stamp_real(a, 7)
    stamp_dump(a, 8, 8, 4)
    a.label(Lend)
    a("s_endpgm")
    return 160
```

```python
from common import *
from fft_kernels import *
from gemm_kernels import *
from gemm1_8w import *
from chain import XN2_OFF, H2_OFF, PB, CHAIN_LDS

T1B_OFF = 0x2500000
T2B_OFF = 0x2A00000
MCNT_OFF = 0x3000000
NCNT = 384
SPW = 200


def gen_k2f(a, fz, special, t1_off, t2_off, w_early):
    make_tab_srd(a, 16, TAB2048A, 2048)
    a(f"s_mov_b32 s20, 0x{f2u(math.sqrt(0.5)):08x}")
    a("s_mov_b32 s21, s20")
    a(f"s_mov_b64 s[6:7], {sp(fz['ptr'](KA_WS))}")
    make_srd(a, 12, 6, WS_BYTES)
    Z = [10 + 2 * j for j in range(8)]
    T = [26 + 2 * j for j in range(8)]
    TW1, TW2, TW3 = 42, 58, 74
    WV = 90
    v1w, v1r, v2w, v2r, v3w, v3r = 98, 99, 100, 101, 102, 103
    a("v_lshlrev_b32 v3, 3, v0")
    a(f"buffer_load_dwordx2 {vp(TW1+2)}, v3, s[16:19], 0 offen")
    a("v_and_b32 v5, 31, v0")
    a("v_lshlrev_b32 v5, 6, v5")
    a(f"buffer_load_dwordx2 {vp(TW2+2)}, v5, s[16:19], 0 offen")
    a("v_and_b32 v5, 3, v0")
    a("v_lshlrev_b32 v5, 9, v5")
    a(f"buffer_load_dwordx2 {vp(TW3+2)}, v5, s[16:19], 0 offen")

    def w_loads():
        a("v_lshlrev_b32 v6, 2, v0")
        if not special:
            a("s_lshl_b32 s29, s95, 13")
            a(f"s_add_u32 s29, s29, 0x{WT_OFF:x}")
            a("s_add_u32 s30, s29, 4096")
            for j in range(8):
                a(f"buffer_load_dword v{WV+j}, v6, s[12:15], s{29+(j>>2)} offen offset:{1024*(j&3)}")
        else:
            for j in range(8):
                a(f"v_sub_u32 v7, {2048-256*j}, v0")
                a("v_and_b32 v7, 2047, v7")
                a("v_lshlrev_b32 v7, 2, v7")
                a(f"s_mov_b32 s29, 0x{WT_OFF + 1024*j:x}")
                a(f"buffer_load_dword v{104+4*j}, v6, s[12:15], s29 offen")
                a(f"s_mov_b32 s29, 0x{WT_OFF + 256*8192 + 1024*j:x}")
                a(f"buffer_load_dword v{105+4*j}, v6, s[12:15], s29 offen")
                a(f"s_mov_b32 s29, 0x{WT_OFF:x}")
                a(f"buffer_load_dword v{106+4*j}, v7, s[12:15], s29 offen")
                a(f"s_mov_b32 s29, 0x{WT_OFF + 256*8192:x}")
                a(f"buffer_load_dword v{107+4*j}, v7, s[12:15], s29 offen")
    def uv_compute():
        a("s_mov_b32 s22, 0.25")
        a("s_mov_b32 s23, 0.25")
        for j in range(8):
            w0, w6, m0, m6 = T[0], T[1], T[2], T[3]
            for (d, r) in ((w0, 104), (w6, 105), (m0, 106), (m6, 107)):
                a(f"v_lshlrev_b32 v{d}, 16, v{r+4*j}")
                a(f"v_and_b32 v{d+1}, 0xffff0000, v{r+4*j}")
            a(f"v_pk_add_f32 {vp(w0)}, {vp(w0)}, {vp(m0)} neg_hi:[0,1]")
            a(f"v_pk_add_f32 {vp(w6)}, {vp(w6)}, {vp(m6)} neg_hi:[0,1]")
            cadd(a, m0, w0, w6)
            csub(a, m6, w0, w6)
            a(f"v_pk_mul_f32 {vp(104+4*j)}, {vp(m0)}, s[22:23]")
            a(f"v_pk_mul_f32 {vp(106+4*j)}, {vp(m6)}, s[22:23]")
    if w_early:
        w_loads()
        if special:
            a("s_waitcnt vmcnt(0)")
            uv_compute()
    a(f"v_lshlrev_b32 v{v1w}, 3, v0")
    a("v_lshrrev_b32 v7, 5, v0")
    a("v_and_b32 v8, 31, v0")
    a("v_lshl_add_u32 v9, v7, 8, v8")
    a(f"v_lshlrev_b32 v{v1r}, 3, v9")
    a("v_mul_u32_u24 v9, 288, v7")
    a("v_add_u32 v8, v9, v8")
    a(f"v_lshlrev_b32 v{v2w}, 3, v8")
    a("v_bfe_u32 v8, v0, 2, 3")
    a("v_mul_u32_u24 v8, 36, v8")
    a("v_add_u32 v9, v9, v8")
    a("v_and_b32 v8, 3, v0")
    a("v_add_u32 v9, v9, v8")
    a(f"v_lshlrev_b32 v{v2r}, 3, v9")
    a("v_lshlrev_b32 v9, 2, v7")
    a("v_bfe_u32 v7, v0, 2, 2")
    a("v_add_u32 v9, v9, v7")
    a("v_bfe_u32 v7, v0, 4, 1")
    a("v_lshl_add_u32 v9, v7, 5, v9")
    a("v_mul_u32_u24 v8, 68, v8")
    a("v_add_u32 v9, v9, v8")
    a(f"v_lshlrev_b32 v{v3w}, 3, v9")
    a("v_and_b32 v7, 7, v0")
    a("v_lshlrev_b32 v9, 2, v7")
    a("v_bfe_u32 v7, v0, 3, 2")
    a("v_add_u32 v9, v9, v7")
    a("v_bfe_u32 v7, v0, 5, 1")
    a("v_lshl_add_u32 v9, v7, 5, v9")
    a("v_lshrrev_b32 v7, 6, v0")
    a("v_mul_u32_u24 v7, 272, v7")
    a("v_add_u32 v9, v9, v7")
    a(f"v_lshlrev_b32 v{v3r}, 3, v9")
    a("s_waitcnt vmcnt(0)") if False else None
    fz['poll'](a)
    a("s_barrier")
    a(f"s_mul_i32 s28, s95, {T1_PITCH}")
    a(f"s_add_u32 s28, s28, 0x{t1_off:x}")
    for jj in range(4):
        a(f"s_add_u32 s{36+jj}, s28, {4096*jj}")
    for j in range(8):
        a(f"buffer_load_dwordx2 {vp(Z[j])}, v3, s[12:15], s{36+(j>>1)} offen offset:{2048*(j&1)}")
    nw = 0
    if not w_early:
        w_loads()
        nw = 32 if special else 8
    nd = 8
    a(f"s_waitcnt vmcnt({nd + nw})")
    tw_powers(a, TW1, T[0])
    tw_powers(a, TW2, T[0])
    tw_powers(a, TW3, T[0])
    a(f"s_waitcnt vmcnt({nw})")
    B0, B1, B2 = 0, K2_BUF, 2 * K2_BUF

    def fft2048(sgn):
        radix8(a, Z, T, 20, sgn)
        for k in range(1, 8):
            cmul_tw(a, Z[k], Z[k], TW1 + 2 * k, T[k], sgn)
        for k in range(8):
            a(f"ds_write_b64 v{v1w}, {vp(Z[k])} offset:{B0 + 2048*k}")
        a("s_waitcnt lgkmcnt(0)")
        a("s_barrier")
        for j in range(8):
            a(f"ds_read_b64 {vp(Z[j])}, v{v1r} offset:{B0 + 256*j}")
        a("s_waitcnt lgkmcnt(0)")
        radix8(a, Z, T, 20, sgn)
        for k in range(1, 8):
            cmul_tw(a, Z[k], Z[k], TW2 + 2 * k, T[k], sgn)
        for k in range(8):
            a(f"ds_write_b64 v{v2w}, {vp(Z[k])} offset:{B2 + 36*8*k}")
        for c in range(8):
            a(f"ds_read_b64 {vp(Z[c])}, v{v2r} offset:{B2 + 32*c}")
        a("s_waitcnt lgkmcnt(0)")
        radix8(a, Z, T, 20, sgn)
        for k in range(1, 8):
            cmul_tw(a, Z[k], Z[k], TW3 + 2 * k, T[k], sgn)
        for k in range(8):
            a(f"ds_write_b64 v{v3w}, {vp(Z[k])} offset:{B1 + 272*8*k}")
        a("s_waitcnt lgkmcnt(0)")
        a("s_barrier")
        for hi in range(2):
            for n in range(4):
                a(f"ds_read_b64 {vp(Z[hi + 2*n])}, v{v3r} offset:{B1 + (68*n + 272*4*hi)*8}")
        a("s_waitcnt lgkmcnt(0)")
        radix4(a, [Z[0], Z[2], Z[4], Z[6]], T[0:4], sgn)
        radix4(a, [Z[1], Z[3], Z[5], Z[7]], T[4:8], sgn)

    fft2048(+1)
    a("s_waitcnt vmcnt(0)")
    if not special:
        for j in range(8):
            w = T[j ^ 1]
            a(f"v_lshlrev_b32 v{w}, 16, v{WV+j}")
            a(f"v_and_b32 v{w+1}, 0xffff0000, v{WV+j}")
            cmul_tw(a, Z[j], Z[j], w, T[j], +1)
    else:
        B3 = B2
        for j in range(8):
            a(f"ds_write_b64 v3, {vp(Z[j])} offset:{B3 + 2048*j}")
        a("s_waitcnt lgkmcnt(0)")
        a("s_barrier")
        M = [136 + 2 * j for j in range(8)]
        for j in range(8):
            a(f"v_sub_u32 v7, {2048-256*j}, v0")
            a("v_and_b32 v7, 2047, v7")
            a("v_lshlrev_b32 v7, 3, v7")
            a(f"ds_read_b64 {vp(M[j])}, v7 offset:{B3}")
        if not w_early:
            uv_compute()
        a("s_waitcnt lgkmcnt(0)")
        for j in range(8):
            cmul_tw(a, T[4], Z[j], 104 + 4 * j, T[5], +1)
            a(f"v_xor_b32 v{M[j]+1}, 0x80000000, v{M[j]+1}")
            cmul_tw(a, T[6], M[j], 106 + 4 * j, T[7], +1)
            cadd(a, Z[j], T[4], T[6])
    fft2048(-1)
    a("v_lshrrev_b32 v4, 3, v0")
    a(f"v_mul_u32_u24 v4, {T2_PITCH}, v4")
    a("v_and_b32 v5, 7, v0")
    a("v_lshl_add_u32 v4, v5, 3, v4")
    a("s_lshl_b32 s28, s95, 6")
    for j in range(8):
        a(f"s_add_u32 s29, s28, 0x{t2_off + 32*j*T2_PITCH:x}")
        a(f"buffer_store_dwordx2 {vp(Z[j])}, v4, s[12:15], s29 offen")


def gen_mega(a, name):
    kernel_header(a, name, "whole network, one persistent launch")
    Lend = a.newlabel("Lend")
    a("s_cmp_ge_u32 s2, 256")
    a(f"s_cbranch_scc1 {Lend}")
    a(f"s_load_dwordx16 s[{PB}:{PB+15}], s[0:1], 0")
    a(f"s_load_dwordx4 s[{PB+16}:{PB+19}], s[0:1], 64")
    a(f"s_load_dwordx2 s[{PB+20}:{PB+21}], s[0:1], 80")
    a("v_and_b32 v1, 63, v0")
    a("v_lshrrev_b32 v2, 6, v0")
    a("s_nop 0")
    a("v_readfirstlane_b32 s3, v2")
    a("s_waitcnt lgkmcnt(0)")
    ptr = lambda ka: PB + ka // 4
    make_srd_off(a, 96, ptr(KA_WS), MCNT_OFF, NCNT * 256)
    a("s_mov_b32 s95, s2")
    a("s_cmp_eq_u32 s2, 0")
    a(f"s_cselect_b32 s95, {SPW}, s95")
    a(f"s_cmp_eq_u32 s2, {SPW}")
    a("s_cselect_b32 s95, 0, s95")
    inner = INSTR["on"]
    INSTR["on"] = False
    if inner:
        make_srd_off(a, 88, ptr(KA_WS), STAMP_OFF + 6 * 65536, 65536)

    def cstamp(i, real=False):
        if not inner:
            return
        L = a.newlabel("Lcs")
        a("s_cmp_lg_u32 s3, 0")
        a(f"s_cbranch_scc1 {L}")
        a("s_memrealtime s[86:87]" if real else "s_memtime s[86:87]")
        a("s_lshl_b32 s92, s2, 7")
        a("s_waitcnt lgkmcnt(0)")
        a("v_mov_b32 v158, s86")
        a(f"v_mov_b32 v159, {4*i}")
        a("buffer_store_dword v158, v159, s[88:91], s92 offen")
        a.label(L)

    def mk_poll(emit_off, target):
        def poll(a):
            Ld = a.newlabel("Lpd")
            Ll = a.newlabel("Lpl")
            a("s_cmp_lg_u32 s3, 0")
            a(f"s_cbranch_scc1 {Ld}")
            emit_off(a)
            a("v_mov_b32 v159, 0")
            a("s_mov_b32 s93, 0")
            a.label(Ll)
            a("v_mov_b32 v158, 0")
            a("s_mov_b64 exec, 1")
            a("buffer_atomic_add v158, v159, s[96:99], s92 offen sc0 sc1")
            a("s_mov_b64 exec, -1")
            a("s_waitcnt vmcnt(0)")
            a("v_readfirstlane_b32 s94, v158")
            a("s_add_u32 s93, s93, 1")
            a(f"s_cmp_ge_u32 s94, {target}")
            a(f"s_cbranch_scc1 {Ld}")
            a("s_cmp_gt_u32 s93, 0x40000")
            a(f"s_cbranch_scc1 {Ld}")
            a(f"s_sleep {OPT.get('sleep', 2)}")
            a(f"s_branch {Ll}")
            a.label(Ld)
        return poll

    def mk_poll_all(setidx):
        def off(a):
            a("s_lshr_b32 s92, s2, 4")
            a("s_lshl_b32 s92, s92, 8")
            a(f"s_add_u32 s92, s92, {(128 + 64*setidx + 16)*256}")
        return mk_poll(off, 16)

    def publish(emit_off):
        L = a.newlabel("Lpub")
        a("s_waitcnt vmcnt(0)")
        a("s_barrier")
        a("s_cmp_lg_u32 s3, 0")
        a(f"s_cbranch_scc1 {L}")
        emit_off(a)
        a("v_mov_b32 v158, 1")
        a("v_mov_b32 v159, 0")
        a("s_mov_b64 exec, 1")
        a("buffer_atomic_add v158, v159, s[96:99], s92 offen sc1")
        a("s_mov_b64 exec, -1")
        a.label(L)

    def publish_all(setidx):
        L = a.newlabel("Lpub")
        base = (128 + 64 * setidx) * 256
        a("s_waitcnt vmcnt(0)")
        a("s_barrier")
        a("s_cmp_lg_u32 s3, 0")
        a(f"s_cbranch_scc1 {L}")
        a("s_lshr_b32 s92, s2, 4")
        a("s_lshl_b32 s92, s92, 8")
        a(f"s_add_u32 s92, s92, {base}")
        a("v_mov_b32 v158, 1")
        a("v_mov_b32 v159, 0")
        a("s_mov_b64 exec, 1")
        a("buffer_atomic_add v158, v159, s[96:99], s92 offen sc0 sc1")
        a("s_waitcnt vmcnt(0)")
        a("v_readfirstlane_b32 s94, v158")
        a("s_cmp_lg_u32 s94, 15")
        a(f"s_cbranch_scc1 {L}x")
        a("s_mov_b64 exec, 0xffff")
        a("v_mov_b32 v158, 1")
        a("v_lshlrev_b32 v159, 8, v1")
        a(f"s_mov_b32 s92, {base + 16*256}")
        a("buffer_atomic_add v158, v159, s[96:99], s92 offen sc1")
        a.label(L + "x")
        a("s_mov_b64 exec, -1")
        a.label(L)

    def four_wave_phase(fn, alt=None):
        Ls = a.newlabel("Lskip")
        Lj = a.newlabel("Ljoin")
        a("s_cmp_ge_u32 s3, 4")
        a(f"s_cbranch_scc1 {Ls}")
        i0 = len(a.lines)
        fn()
        nb = sum(1 for l in a.lines[i0:] if l.strip() == "s_barrier")
        a(f"s_branch {Lj}")
        a.label(Ls)
        if alt is None:
            for _ in range(nb):
                a("s_barrier")
        else:
            alt(nb, Lj)
        a.label(Lj)

    cstamp(0)
    cstamp(30, True)

    def alt1(nb, Lj):
        assert nb == 1
        La = a.newlabel("Lalt")
        Lb = a.newlabel("Lalt")
        Lc = a.newlabel("Lalt")
        a("v_subrev_u32 v0, 256, v0")
        l = a.newlabel("Lpc")
        a("s_getpc_b64 s[48:49]")
        a.label(l)
        a(f"s_sub_u32 s48, s48, {l}-code_start")
        a("s_subb_u32 s49, s49, 0")
        a("s_and_b32 s49, s49, 0xffff")
        a("s_mov_b32 s50, code_end-code_start")
        a("s_mov_b32 s51, 0x00020000")
        a("s_lshr_b32 s29, s2, 3")
        a("s_lshl_b32 s29, s29, 12")
        a("v_lshlrev_b32 v3, 4, v0")
        a("buffer_load_dwordx4 v[80:83], v3, s[48:51], s29 offen")
        a(f"s_mov_b64 s[6:7], {sp(ptr(KA_WS))}")
        make_srd(a, 12, 6, WS_BYTES)
        make_srd(a, 44, ptr(KA_DBG), 256)
        a("s_cmp_lg_u32 s2, 255")
        a(f"s_cbranch_scc1 {Lc}")
        a("v_lshlrev_b32 v3, 8, v0")
        a("v_mov_b32 v4, 0")
        a("buffer_store_dword v4, v3, s[96:99], 0 offen")
        a("s_mov_b32 s29, 65536")
        a("buffer_store_dword v4, v3, s[96:99], s29 offen")
        a("s_waitcnt vmcnt(0)")
        a("v_mov_b32 v4, 1")
        a("v_mov_b32 v3, 0")
        a("s_mov_b64 exec, 1")
        a("buffer_atomic_add v4, v3, s[44:47], 0 offen sc1")
        a("s_mov_b64 exec, -1")
        a.label(Lc)
        Lw = a.newlabel("Lw")
        Lwl = a.newlabel("Lwl")
        a("s_cmp_lg_u32 s3, 7")
        a(f"s_cbranch_scc1 {Lw}")
        a("v_mov_b32 v3, 0")
        a("s_mov_b32 s93, 0")
        a.label(Lwl)
        a("buffer_load_dword v4, v3, s[44:47], 0 offen sc0 sc1")
        a("s_waitcnt vmcnt(0)")
        a("v_readfirstlane_b32 s94, v4")
        a("s_add_u32 s93, s93, 1")
        a("s_cmp_ge_u32 s94, 4")
        a(f"s_cbranch_scc1 {Lw}")
        a("s_cmp_gt_u32 s93, 0x40000")
        a(f"s_cbranch_scc1 {Lw}")
        a("s_sleep 8")
        a(f"s_branch {Lwl}")
        a.label(Lw)
        a(f"s_mov_b64 s[24:25], {sp(ptr(KA_WR))}")
        a(f"s_mov_b64 s[26:27], {sp(ptr(KA_WI))}")
        gen_wt(a, fused=True, lb0=0x5000, R=8)
        a("v_add_u32 v0, 256, v0")

    def alt_pf(nb, Lj):
        a("v_subrev_u32 v0, 256, v0")
        make_srd(a, 36, ptr(KA_W1), D * F * 2)
        make_srd(a, 40, ptr(KA_W2), D * F * 2)
        per = D * F * 2 // 256
        a(f"s_mul_i32 s29, s2, {per}")
        a("v_lshlrev_b32 v3, 4, v0")
        for r in range((per + 4095) // 4096):
            a(f"buffer_load_dwordx4 {vq(60+8*r)}, v3, s[36:39], s29 offen")
            a(f"buffer_load_dwordx4 {vq(64+8*r)}, v3, s[40:43], s29 offen")
            a("s_add_u32 s29, s29, 4096")
        a("v_add_u32 v0, 256, v0")
        for _ in range(nb):
            a("s_barrier")

    fz = {"ptr": ptr, "packed": True}
    four_wave_phase(lambda: gen_k1(a, None, KA_X, 0, False, fz=fz, t1_off=T1_OFF), alt1)
    cstamp(1)
    publish_all(0)

    for layer in range(2):
        t1 = T1_OFF if layer == 0 else T1B_OFF
        t2 = T2_OFF if layer == 0 else T2B_OFF
        xn_off = XN_OFF if layer == 0 else XN2_OFF
        h_off = H_OFF if layer == 0 else H2_OFF
        cb = (64 * layer) * 256
        sb = 2 + 12 * layer
        cstamp(sb)
        fz = {"ptr": ptr, "poll": mk_poll_all(2 * layer)}
        Lsp = a.newlabel("Lsp")
        Lspj = a.newlabel("Lspj")
        a(f"s_cmp_eq_u32 s2, {SPW}")
        a(f"s_cbranch_scc1 {Lsp}")
        four_wave_phase(lambda: gen_k2f(a, fz, False, t1, t2, layer == 1), alt_pf if layer == 0 else None)
        a(f"s_branch {Lspj}")
        a.label(Lsp)
        four_wave_phase(lambda: gen_k2f(a, fz, True, t1, t2, layer == 1), alt_pf if layer == 0 else None)
        a.label(Lspj)
        cstamp(sb + 1)
        publish_all(2 * layer + 1)
        cstamp(sb + 2)
        fz = {"ptr": ptr, "poll": mk_poll_all(2 * layer + 1), "packed": True}
        if layer == 0:
            four_wave_phase(lambda: gen_k3(a, None, KA_X, 0, X1_OFF, fz=fz, xn_off=xn_off, t2_off=t2))
        else:
            four_wave_phase(lambda: gen_k3(a, None, KA_WS, X2_OFF, X3_OFF, fz=fz, xn_off=xn_off, t2_off=t2))
        cstamp(sb + 3)

        def off_c3_pub(a):
            a("s_lshr_b32 s92, s2, 4")
            a("s_lshl_b32 s92, s92, 8")
            a(f"s_add_u32 s92, s92, {cb}")
        publish(off_c3_pub)
        cstamp(sb + 4)
        Lg1 = a.newlabel("Lg1skip")
        a(f"s_cmp_ge_u32 s2, {G1_WGS}")
        a(f"s_cbranch_scc1 {Lg1}")

        def off_c3_wait(a):
            a("s_lshl_b32 s92, s10, 8")
            a(f"s_add_u32 s92, s92, {cb}")
        fz = {"ptr": ptr, "poll": mk_poll(off_c3_wait, 16), "cst": lambda i: None}
        gen_g1_8w(a, None, fz=fz, xn_off=xn_off, h_off=h_off)
        cstamp(sb + 5)

        def off_c1_pub(a):
            a("s_lshl_b32 s92, s10, 8")
            a(f"s_add_u32 s92, s92, {cb + 4096}")
        publish(off_c1_pub)
        a.label(Lg1)
        cstamp(sb + 6)

        def off_c1_wait(a):
            a("s_lshr_b32 s92, s10, 1")
            a("s_lshl_b32 s92, s92, 8")
            a(f"s_add_u32 s92, s92, {cb + 4096}")
        fz = {"ptr": ptr, "poll": mk_poll(off_c1_wait, 14)}
        if layer == 0:
            four_wave_phase(lambda: gen_g2(a, None, X1_OFF, KA_WS, X2_OFF, fz=fz, h_off=h_off))
        else:
            four_wave_phase(lambda: gen_g2(a, None, X3_OFF, KA_OUT, 0, fz=fz, h_off=h_off))
        cstamp(sb + 7)
        if layer == 0:
            def off_c2_pub(a):
                a("s_lshl_b32 s92, s10, 8")
                a(f"s_add_u32 s92, s92, {cb + 8192}")
            publish(off_c2_pub)
            cstamp(sb + 8)

            def off_c2_wait(a):
                a("s_lshr_b32 s92, s2, 3")
                a("s_lshl_b32 s92, s92, 8")
                a(f"s_add_u32 s92, s92, {cb + 8192}")
            fz = {"ptr": ptr, "poll": mk_poll(off_c2_wait, 8), "packed": True}
            four_wave_phase(lambda: gen_k1(a, None, KA_WS, X2_OFF, False, fz=fz, t1_off=T1B_OFF))
            cstamp(sb + 9)
            publish_all(2)
    if inner:
        a("s_waitcnt vmcnt(0)")
    cstamp(29)
    cstamp(31, True)
    a.label(Lend)
    a("s_endpgm")
    INSTR["on"] = inner
    return 160
```

```python
import math, struct

NAME = "interleave_layers__spectral_gfnet__dense_activation_gelu__prompt"
S = 2048
D = 512
F = 1792
KF = 257

T1_OFF = 0x0000000
WT_OFF = 0x0420000
X1_OFF = 0x0640000
XN_OFF = 0x0840000
H_OFF = 0x0A40000
X2_OFF = 0x1140000
X3_OFF = 0x1340000
WS_BYTES = 0x10000000
T2_OFF = 0x2000000
T2_PITCH = 16640
CNT_OFF = 0x1E40000
T1_PITCH = 16384 + 256

KA_X, KA_WR, KA_WI, KA_BX, KA_W1, KA_B1, KA_W2, KA_B2, KA_OUT, KA_DBG, KA_WS = [8 * i for i in range(11)]


def f2u(f):
    return struct.unpack("<I", struct.pack("<f", f))[0]


class Asm:
    def __init__(self):
        self.lines = []
        self.uid = 0

    def __call__(self, s):
        for l in s.strip("\n").split("\n"):
            self.lines.append("    " + l.strip())

    def label(self, l):
        self.lines.append(l + ":")

    def cmt(self, s):
        self.lines.append("    ; " + s)

    def newlabel(self, base="L"):
        self.uid += 1
        return f"{base}_{self.uid}"

    def text(self):
        return "\n".join(self.lines) + "\n"


def vp(r):
    return f"v[{r}:{r+1}]"


def vq(r):
    return f"v[{r}:{r+3}]"


def sp(r):
    return f"s[{r}:{r+1}]"


def sq(r):
    return f"s[{r}:{r+3}]"


def cadd(a, d, x, y):
    a(f"v_pk_add_f32 {vp(d)}, {vp(x)}, {vp(y)}")


def csub(a, d, x, y):
    a(f"v_pk_add_f32 {vp(d)}, {vp(x)}, {vp(y)} neg_lo:[0,1] neg_hi:[0,1]")


def cadd_mi(a, d, x, y, sgn):
    if sgn > 0:
        a(f"v_pk_add_f32 {vp(d)}, {vp(x)}, {vp(y)} op_sel:[0,1] op_sel_hi:[1,0] neg_hi:[0,1]")
    else:
        a(f"v_pk_add_f32 {vp(d)}, {vp(x)}, {vp(y)} op_sel:[0,1] op_sel_hi:[1,0] neg_lo:[0,1]")


def csub_mi(a, d, x, y, sgn):
    cadd_mi(a, d, x, y, -sgn)


def cfma_s(a, d, x, sc, y, neg=False):
    m = " neg_lo:[1,0,0] neg_hi:[1,0,0]" if neg else ""
    a(f"v_pk_fma_f32 {vp(d)}, {vp(x)}, {sp(sc)}, {vp(y)}{m}")


def cfma_mi(a, d, x, sc, y, sgn):
    if sgn > 0:
        a(f"v_pk_fma_f32 {vp(d)}, {vp(x)}, {sp(sc)}, {vp(y)} op_sel:[1,0,0] op_sel_hi:[0,1,1] neg_hi:[1,0,0]")
    else:
        a(f"v_pk_fma_f32 {vp(d)}, {vp(x)}, {sp(sc)}, {vp(y)} op_sel:[1,0,0] op_sel_hi:[0,1,1] neg_lo:[1,0,0]")


def cmul_tw(a, d, x, w, t, sgn):
    a(f"v_pk_mul_f32 {vp(t)}, {vp(x)}, {vp(w)} op_sel_hi:[1,0]")
    if sgn > 0:
        a(f"v_pk_fma_f32 {vp(d)}, {vp(x)}, {vp(w)}, {vp(t)} op_sel:[1,1,0] op_sel_hi:[0,1,1] neg_lo:[1,0,0]")
    else:
        a(f"v_pk_fma_f32 {vp(d)}, {vp(x)}, {vp(w)}, {vp(t)} op_sel:[1,1,0] op_sel_hi:[0,1,1] neg_hi:[1,0,0]")


def radix8(a, x, t, sc, sgn, lds_waits=False):
    A = t[0:4]
    B = t[4:8]
    for j in range(4):
        if lds_waits:
            a(f"s_waitcnt lgkmcnt({6-2*j})")
        cadd(a, A[j], x[j], x[j + 4])
        csub(a, B[j], x[j], x[j + 4])
    s0, s1, s2, s3 = x[1], x[3], x[5], x[7]
    cadd(a, s0, A[0], A[2])
    csub(a, s1, A[0], A[2])
    cadd(a, s2, A[1], A[3])
    csub(a, s3, A[1], A[3])
    cadd(a, x[0], s0, s2)
    csub(a, x[4], s0, s2)
    cadd_mi(a, x[2], s1, s3, sgn)
    csub_mi(a, x[6], s1, s3, sgn)
    t1, t3, u, v = A[0], A[1], A[2], A[3]
    cadd_mi(a, t1, B[1], B[1], sgn)
    if sgn > 0:
        a(f"v_pk_add_f32 {vp(t3)}, {vp(B[3])}, {vp(B[3])} op_sel:[0,1] op_sel_hi:[1,0] neg_lo:[1,0] neg_hi:[1,1]")
    else:
        a(f"v_pk_add_f32 {vp(t3)}, {vp(B[3])}, {vp(B[3])} op_sel:[0,1] op_sel_hi:[1,0] neg_lo:[1,1] neg_hi:[1,0]")
    cadd(a, u, t1, t3)
    csub(a, v, t1, t3)
    cadd_mi(a, B[1], B[0], B[2], sgn)
    csub_mi(a, B[3], B[0], B[2], sgn)
    cfma_s(a, x[1], u, sc, B[1])
    cfma_s(a, x[5], u, sc, B[1], neg=True)
    cfma_mi(a, x[3], v, sc, B[3], sgn)
    cfma_mi(a, x[7], v, sc, B[3], -sgn)


def radix4(a, x, t, sgn):
    cadd(a, t[0], x[0], x[2])
    csub(a, t[1], x[0], x[2])
    cadd(a, t[2], x[1], x[3])
    csub(a, t[3], x[1], x[3])
    cadd(a, x[0], t[0], t[2])
    csub(a, x[2], t[0], t[2])
    cadd_mi(a, x[1], t[1], t[3], sgn)
    csub_mi(a, x[3], t[1], t[3], sgn)


def tw_table(N, rows, mult):
    out = []
    for q in range(4):
        for r in range(rows):
            for e in range(2):
                k = 2 * q + e
                p = (r * mult * k) % N
                ang = -2.0 * math.pi * p / N
                out.append(f2u(math.cos(ang)))
                out.append(f2u(math.sin(ang)))
    return out


def emit_table(a, label, words):
    a.lines.append(".p2align 6")
    a.lines.append(f".type {label},@object")
    a.label(label)
    for i in range(0, len(words), 8):
        a.lines.append("    .long " + ", ".join(f"0x{w:08x}" for w in words[i:i + 8]))


def wave_sum2(a, va, vb, sa, sb):
    steps = ["row_shr:1 row_mask:0xf bank_mask:0xf bound_ctrl:0",
             "row_shr:2 row_mask:0xf bank_mask:0xf bound_ctrl:0",
             "row_shr:4 row_mask:0xf bank_mask:0xf bound_ctrl:0",
             "row_shr:8 row_mask:0xf bank_mask:0xf bound_ctrl:0",
             "row_bcast:15 row_mask:0xa bank_mask:0xf",
             "row_bcast:31 row_mask:0xc bank_mask:0xf"]
    a("s_nop 1")
    for st in steps:
        a(f"v_add_f32_dpp v{va}, v{va}, v{va} {st}")
        a(f"v_add_f32_dpp v{vb}, v{vb}, v{vb} {st}")
        a("s_nop 0")
    a(f"v_readlane_b32 s{sa}, v{va}, 63")
    a(f"v_readlane_b32 s{sb}, v{vb}, 63")
    a("s_nop 1")


def round_pair(a, p, tmp):
    a(f"v_cvt_pk_bf16_f32 v{tmp}, v{p}, v{p+1}")
    a(f"v_lshlrev_b32 v{p}, 16, v{tmp}")
    a(f"v_and_b32 v{p+1}, 0xffff0000, v{tmp}")


def wave_sum4(a, v4, s4):
    steps = ["row_shr:1 row_mask:0xf bank_mask:0xf bound_ctrl:0",
             "row_shr:2 row_mask:0xf bank_mask:0xf bound_ctrl:0",
             "row_shr:4 row_mask:0xf bank_mask:0xf bound_ctrl:0",
             "row_shr:8 row_mask:0xf bank_mask:0xf bound_ctrl:0",
             "row_bcast:15 row_mask:0xa bank_mask:0xf",
             "row_bcast:31 row_mask:0xc bank_mask:0xf"]
    a("s_nop 1")
    for st in steps:
        for v in v4:
            a(f"v_add_f32_dpp v{v}, v{v}, v{v} {st}")
    a("s_nop 0")
    for v, sr in zip(v4, s4):
        a(f"v_readlane_b32 s{sr}, v{v}, 63")
    a("s_nop 1")


def layernorm_pairs(a, z, tmp, st, s_c512, s_stat):
    s1, s2 = st[0], st[2]
    sp_ = s_stat + 4
    a(f"v_readfirstlane_b32 s{sp_}, v{z[0]}")
    a(f"v_readfirstlane_b32 s{sp_+1}, v{z[0]+1}")
    d = [tmp[0], tmp[2]]
    a("s_nop 0")
    for j in range(8):
        dd = d[j & 1]
        a(f"v_pk_add_f32 {vp(dd)}, {vp(z[j])}, {sp(sp_)} neg_lo:[0,1] neg_hi:[0,1]")
        if j == 0:
            a(f"v_pk_mul_f32 {vp(s2)}, {vp(dd)}, {vp(dd)}")
        else:
            a(f"v_pk_fma_f32 {vp(s2)}, {vp(dd)}, {vp(dd)}, {vp(s2)}")
        if j == 1:
            a(f"v_pk_add_f32 {vp(s1)}, {vp(d[0])}, {vp(d[1])}")
        elif j > 1:
            a(f"v_pk_add_f32 {vp(s1)}, {vp(s1)}, {vp(dd)}")
    a(f"v_pk_mul_f32 {vp(s1)}, {vp(s1)}, {sp(s_c512)}")
    a(f"v_pk_mul_f32 {vp(s2)}, {vp(s2)}, {sp(s_c512)}")
    wave_sum4(a, [s1, s1 + 1, s2, s2 + 1], [s_stat, s_stat + 1, s_stat + 2, s_stat + 3])
    a(f"v_mov_b32 v{s1}, s{s_stat}")
    a(f"v_mov_b32 v{s1+1}, s{s_stat+1}")
    a(f"v_mov_b32 v{s2}, s{s_stat+2}")
    a(f"v_mov_b32 v{s2+1}, s{s_stat+3}")
    a(f"v_pk_fma_f32 {vp(s2)}, {vp(s1)}, {vp(s1)}, {vp(s2)} neg_lo:[1,0,0] neg_hi:[1,0,0]")
    a(f"v_max_f32 v{s2}, 0, v{s2}")
    a(f"v_max_f32 v{s2+1}, 0, v{s2+1}")
    a(f"v_pk_add_f32 {vp(s1)}, {vp(s1)}, {sp(sp_)}")
    round_pair(a, s1, tmp[4])
    round_pair(a, s2, tmp[5])
    a(f"v_add_f32 v{s2}, 0x3727c5ac, v{s2}")
    a(f"v_add_f32 v{s2+1}, 0x3727c5ac, v{s2+1}")
    round_pair(a, s2, tmp[5])
    a(f"v_sqrt_f32 v{s2}, v{s2}")
    a(f"v_sqrt_f32 v{s2+1}, v{s2+1}")
    for j in range(8):
        a(f"v_pk_add_f32 {vp(z[j])}, {vp(z[j])}, {vp(s1)} neg_lo:[0,1] neg_hi:[0,1]")
    round_pair(a, s2, tmp[8])
    a(f"v_rcp_f32 v{s2}, v{s2}")
    a(f"v_rcp_f32 v{s2+1}, v{s2+1}")
    for j in range(8):
        a(f"v_cvt_pk_bf16_f32 v{tmp[j]}, v{z[j]}, v{z[j]+1}")
    for j in range(8):
        a(f"v_lshlrev_b32 v{z[j]}, 16, v{tmp[j]}")
        a(f"v_and_b32 v{z[j]+1}, 0xffff0000, v{tmp[j]}")
    for j in range(8):
        a(f"v_pk_mul_f32 {vp(z[j])}, {vp(z[j])}, {vp(s2)}")
    for j in range(8):
        a(f"v_cvt_pk_bf16_f32 v{tmp[j]}, v{z[j]}, v{z[j]+1}")
    for j in range(8):
        a(f"v_lshlrev_b32 v{z[j]}, 16, v{tmp[j]}")
        a(f"v_and_b32 v{z[j]+1}, 0xffff0000, v{tmp[j]}")


def kernel_header(a, name, comment=""):
    a.lines.append(f".globl {name}")
    a.lines.append(".p2align 8")
    a.lines.append(f".type {name},@function")
    a.label(name)
    if comment:
        a.cmt(comment)


def kernel_desc(name, vgpr, sgpr=102, agpr=0):
    acc = (vgpr + 3) // 4 * 4
    nfv = acc + agpr if agpr else vgpr
    return f""".p2align 6
.amdhsa_kernel {name}
  .amdhsa_next_free_vgpr {nfv}
  .amdhsa_next_free_sgpr {sgpr}
  .amdhsa_accum_offset {acc}
  .amdhsa_group_segment_fixed_size 0
  .amdhsa_kernarg_size 88
  .amdhsa_user_sgpr_count 2
  .amdhsa_user_sgpr_kernarg_segment_ptr 1
  .amdhsa_system_sgpr_workgroup_id_x 1
.end_amdhsa_kernel
"""


def make_srd(a, srd, base, nbytes):
    a(f"s_mov_b32 s{srd}, s{base}")
    a(f"s_and_b32 s{srd+1}, s{base+1}, 0xffff")
    a(f"s_mov_b32 s{srd+2}, 0x{nbytes:x}")
    a(f"s_mov_b32 s{srd+3}, 0x00020000")


def make_srd_off(a, srd, base, off, nbytes):
    a(f"s_add_u32 s{srd}, s{base}, 0x{off:x}")
    a(f"s_addc_u32 s{srd+1}, s{base+1}, 0")
    a(f"s_and_b32 s{srd+1}, s{srd+1}, 0xffff")
    a(f"s_mov_b32 s{srd+2}, 0x{nbytes:x}")
    a(f"s_mov_b32 s{srd+3}, 0x00020000")


def make_tab_srd(a, srd, label, nbytes):
    l = a.newlabel("Lpc")
    a(f"s_getpc_b64 {sp(srd)}")
    a.label(l)
    a(f"s_add_u32 s{srd}, s{srd}, {label}-{l}")
    a(f"s_addc_u32 s{srd+1}, s{srd+1}, 0")
    a(f"s_and_b32 s{srd+1}, s{srd+1}, 0xffff")
    a(f"s_mov_b32 s{srd+2}, 0x{nbytes:x}")
    a(f"s_mov_b32 s{srd+3}, 0x00020000")


STAMP_OFF = 0x8000000
INSTR = {"on": False}


def stamp(a, i):
    if INSTR["on"]:
        a(f"s_memtime s[{64+2*i}:{65+2*i}]")


def stamp_real(a, i):
    if INSTR["on"]:
        a(f"s_memrealtime s[{64+2*i}:{65+2*i}]")


def stamp_dump(a, n, ws_lo, kid, vtmp=2):
    if not INSTR["on"]:
        return
    L = a.newlabel("Lst")
    a("s_waitcnt lgkmcnt(0)")
    a("s_mov_b64 exec, -1")
    a(f"v_cmp_eq_u32 vcc, 0, v0")
    a("s_and_saveexec_b64 s[94:95], vcc")
    a(f"s_cbranch_execz {L}")
    make_srd_off(a, 96, ws_lo, STAMP_OFF + kid * 65536, 65536)
    a("s_lshl_b32 s93, s2, 6")
    for i in range(n):
        a(f"v_mov_b32 v{vtmp}, s{64+2*i}")
        a(f"v_mov_b32 v{vtmp+1}, {4*i}")
        a(f"buffer_store_dword v{vtmp}, v{vtmp+1}, s[96:99], s93 offen")
        a("s_waitcnt vmcnt(0)")
    a.label(L)

OPT = {}


def tw_powers(a, tw, t):
    w = lambda k: tw + 2 * k
    cmul_tw(a, w(2), w(1), w(1), t, +1)
    cmul_tw(a, w(3), w(2), w(1), t + 2, +1)
    cmul_tw(a, w(4), w(2), w(2), t, +1)
    cmul_tw(a, w(5), w(4), w(1), t + 2, +1)
    cmul_tw(a, w(6), w(3), w(3), t, +1)
    cmul_tw(a, w(7), w(4), w(3), t + 2, +1)


def tw_table1(N, rows):
    out = []
    for r in range(rows):
        ang = -2.0 * math.pi * r / N
        out.append(f2u(math.cos(ang)))
        out.append(f2u(math.sin(ang)))
    return out

RD8 = [0, 4, 1, 5, 2, 6, 3, 7]
```

```python
from common import *

TAB512A = "tab_tw512a"
TAB64 = "tab_tw64"
TAB2048A = "tab_tw2048a"
TAB256 = "tab_tw256"
TAB32 = "tab_tw32"


def emit_tables(a):
    emit_table(a, TAB2048A, tw_table1(2048, 256))


WAVE_LDS = 4768


def fft512_core(a, z, t, tw1, tw2, s_c, sgn, vA_w, vA_r, vB_w, vB_r):
    radix8(a, z, t, s_c, sgn)
    for k in range(8):
        if k:
            cmul_tw(a, z[k], z[k], tw1 + 2 * k, t[k & 7], sgn)
        a(f"ds_write_b64 v{vA_w}, {vp(z[k])} offset:{72*8*k}")
    for b in RD8:
        a(f"ds_read_b64 {vp(z[b])}, v{vA_r} offset:{64*b}")
    radix8(a, z, t, s_c, sgn, lds_waits=True)
    for k in range(8):
        if k:
            cmul_tw(a, z[k], z[k], tw2 + 2 * k, t[k & 7], sgn)
        a(f"ds_write_b64 v{vB_w}, {vp(z[k])} offset:{64*k}")
    for c in RD8:
        a(f"ds_read_b64 {vp(z[c])}, v{vB_r} offset:{66*8*c}")
    radix8(a, z, t, s_c, sgn, lds_waits=True)


def fft512_addr(a, vlane, sbase, vA_w, vA_r, vB_w, tmp):
    a(f"v_lshlrev_b32 v{vA_w}, 3, v{vlane}")
    a(f"v_add_u32 v{vA_w}, s{sbase}, v{vA_w}")
    a(f"v_lshrrev_b32 v{tmp}, 3, v{vlane}")
    a(f"v_mul_u32_u24 v{vA_r}, 72, v{tmp}")
    a(f"v_and_b32 v{tmp+1}, 7, v{vlane}")
    a(f"v_add_u32 v{vA_r}, v{vA_r}, v{tmp+1}")
    a(f"v_lshlrev_b32 v{vA_r}, 3, v{vA_r}")
    a(f"v_add_u32 v{vA_r}, s{sbase}, v{vA_r}")
    a(f"v_mul_u32_u24 v{vB_w}, 66, v{tmp+1}")
    a(f"v_add_u32 v{vB_w}, v{vB_w}, v{tmp}")
    a(f"v_lshlrev_b32 v{vB_w}, 3, v{vB_w}")
    a(f"v_add_u32 v{vB_w}, s{sbase}, v{vB_w}")


WT_ROWS = 32
WT_WGS = S // WT_ROWS
PF_WGS = 64


def gen_k1(a, name, src_ka, src_off, with_wt, fz=None, t1_off=T1_OFF):
    Lend = a.newlabel("Lend")
    Lwt = a.newlabel("Lwt")
    if fz is None:
        kernel_header(a, name, "LN + row rFFT")
        nwg = 256 + (WT_WGS + PF_WGS if with_wt else 0)
        a(f"s_cmp_ge_u32 s2, {nwg}")
        a(f"s_cbranch_scc1 {Lend}")
        stamp(a, 0)
        stamp_real(a, 6)
        a(f"s_load_dwordx2 s[4:5], s[0:1], {src_ka}")
        a(f"s_load_dwordx2 s[6:7], s[0:1], {KA_WS}")
        if with_wt:
            a(f"s_load_dwordx4 s[24:27], s[0:1], {KA_WR}")
        a("v_and_b32 v1, 63, v0")
        a("v_lshrrev_b32 v2, 6, v0")
        a("s_nop 0")
        a("v_readfirstlane_b32 s3, v2")
    make_tab_srd(a, 16, TAB2048A, 2048)
    a(f"s_mov_b32 s20, 0x{f2u(math.sqrt(0.5)):08x}")
    a("s_mov_b32 s21, s20")
    a(f"s_mov_b32 s22, 0x{f2u(1.0/512):08x}")
    a("s_mov_b32 s23, s22")
    a("s_waitcnt lgkmcnt(0)")
    if fz is not None:
        a(f"s_mov_b64 s[4:5], {sp(fz['ptr'](src_ka))}")
        a(f"s_mov_b64 s[6:7], {sp(fz['ptr'](KA_WS))}")
    if src_off:
        make_srd_off(a, 8, 4, src_off, S * D * 2)
    else:
        make_srd(a, 8, 4, S * D * 2)
    make_srd(a, 12, 6, WS_BYTES)
    if with_wt:
        a("s_cmp_ge_u32 s2, 256")
        a(f"s_cbranch_scc1 {Lwt}")
    Z = [10 + 2 * j for j in range(8)]
    T = [26 + 2 * j for j in range(8)]
    RA, RB = 42, 46
    TW1, TW2 = 50, 66
    ST = [82, 83, 84, 85]
    TMP = list(range(86, 96))
    vA_w, vA_r, vB_w, vX = 96, 97, 98, 99
    vI_w0, vI_r = 100, 101
    a("s_lshl_b32 s28, s2, 13")
    a("s_lshl_b32 s29, s3, 11")
    a("s_add_u32 s28, s28, s29")
    a("v_lshlrev_b32 v3, 4, v1")
    a("v_add_u32 v3, s28, v3")
    if fz is not None and fz.get('poll'):
        fz['poll'](a)
    else:
        a(f"buffer_load_dwordx4 {vq(RA)}, v3, s[8:11], 0 offen")
        a(f"buffer_load_dwordx4 {vq(RB)}, v3, s[8:11], 0 offen offset:1024")
    a("v_lshlrev_b32 v4, 5, v1")
    a(f"buffer_load_dwordx2 {vp(TW1+2)}, v4, s[16:19], 0 offen")
    a("v_and_b32 v5, 7, v1")
    a("v_lshlrev_b32 v5, 8, v5")
    a(f"buffer_load_dwordx2 {vp(TW2+2)}, v5, s[16:19], 0 offen")
    if fz is not None and fz.get('poll'):
        a("s_barrier")
        a(f"buffer_load_dwordx4 {vq(RA)}, v3, s[8:11], 0 offen sc1")
        a(f"buffer_load_dwordx4 {vq(RB)}, v3, s[8:11], 0 offen offset:1024 sc1")
    a(f"s_mul_i32 s30, s3, {WAVE_LDS}")
    fft512_addr(a, 1, 30, vA_w, vA_r, vB_w, TMP[0])
    a(f"v_lshrrev_b32 v{TMP[0]}, 1, v1")
    a(f"v_lshlrev_b32 v{TMP[1]}, 6, v1")
    a(f"v_add_u32 v{TMP[1]}, s30, v{TMP[1]}")
    for c in range(4):
        a(f"v_add_u32 v{TMP[2]}, {c}, v{TMP[0]}")
        a(f"v_and_b32 v{TMP[2]}, 3, v{TMP[2]}")
        a(f"v_lshlrev_b32 v{TMP[2]}, 4, v{TMP[2]}")
        a(f"v_add_u32 v{102+c}, v{TMP[1]}, v{TMP[2]}")
    a(f"v_lshrrev_b32 v{TMP[0]}, 3, v1")
    a(f"v_lshlrev_b32 v{TMP[0]}, 6, v{TMP[0]}")
    a(f"v_bfe_u32 v{TMP[1]}, v1, 1, 2")
    a(f"v_lshrrev_b32 v{TMP[2]}, 4, v1")
    a(f"v_add_u32 v{TMP[1]}, v{TMP[1]}, v{TMP[2]}")
    a(f"v_and_b32 v{TMP[1]}, 3, v{TMP[1]}")
    a(f"v_lshlrev_b32 v{TMP[1]}, 4, v{TMP[1]}")
    a(f"v_and_b32 v{TMP[2]}, 1, v1")
    a(f"v_lshlrev_b32 v{TMP[2]}, 3, v{TMP[2]}")
    a(f"v_add3_u32 v{vI_r}, v{TMP[0]}, v{TMP[1]}, v{TMP[2]}")
    a(f"v_add_u32 v{vI_r}, s30, v{vI_r}")
    stamp(a, 8)
    a("s_waitcnt vmcnt(0)")
    stamp(a, 1)
    tw_powers(a, TW1, T[0])
    tw_powers(a, TW2, T[0])
    for j in range(8):
        if j & 1:
            a(f"v_and_b32 v{Z[j]}, 0xffff0000, v{RA + (j >> 1)}")
            a(f"v_and_b32 v{Z[j]+1}, 0xffff0000, v{RB + (j >> 1)}")
        else:
            a(f"v_lshlrev_b32 v{Z[j]}, 16, v{RA + (j >> 1)}")
            a(f"v_lshlrev_b32 v{Z[j]+1}, 16, v{RB + (j >> 1)}")
    layernorm_pairs(a, Z, TMP, ST, 22, 44)
    for c in range(4):
        a(f"ds_write_b128 v{102+c}, {vq(Z[2*c])}")
    for j in range(8):
        a(f"ds_read_b64 {vp(Z[j])}, v{vI_r} offset:{512*j}")
    a("s_waitcnt vmcnt(0) lgkmcnt(0)")
    stamp(a, 2)
    fft512_core(a, Z, T, TW1, TW2, 20, +1, vA_w, vA_r, vB_w, vA_w)
    stamp(a, 3)
    for k in range(8):
        a(f"ds_write_b64 v{vA_w}, {vp(Z[k])} offset:{512*k}")
    a("v_cmp_eq_u32 vcc, 0, v1")
    a("s_and_saveexec_b64 s[34:35], vcc")
    a(f"ds_write_b64 v{vA_w}, {vp(Z[0])} offset:{512*8}")
    a("s_mov_b64 exec, s[34:35]")
    a("v_lshrrev_b32 v5, 2, v0")
    a("v_and_b32 v6, 3, v0")
    a(f"v_mul_u32_u24 v4, {WAVE_LDS}, v6")
    a("v_lshl_add_u32 v3, v5, 3, v4")
    a("v_sub_u32 v7, 256, v5")
    a(f"v_lshl_add_u32 v{vX}, v7, 3, v4")
    a("v_lshlrev_b32 v6, 4, v6")
    a(f"v_mul_u32_u24 v5, {T1_PITCH}, v5")
    a("v_add_u32 v6, v5, v6")
    a("s_lshl_b32 s28, s2, 6")
    a("s_waitcnt lgkmcnt(0)")
    a("s_barrier")
    for k in range(5):
        a(f"ds_read_b64 {vp(Z[k])}, v3 offset:{512*k}")
        a(f"ds_read_b64 {vp(T[k])}, v{vX} offset:{(256-64*k)*8}")
    a("v_cmp_gt_u32 vcc, 4, v0")
    O = [TW1 + 4 * k for k in range(5)]
    Lsk = a.newlabel("Lsk")
    if fz is not None and fz.get("packed"):
        a("s_waitcnt lgkmcnt(0)")
        for k in range(5):
            a(f"v_pk_add_f32 {vp(O[k])}, {vp(Z[k])}, {vp(T[k])} neg_hi:[0,1]")
            a(f"v_pk_add_f32 {vp(O[k]+2)}, {vp(Z[k])}, {vp(T[k])} op_sel:[1,1] op_sel_hi:[0,0] neg_hi:[1,0]")
            if k in (1, 2, 3):
                a(f"s_add_u32 s29, s28, 0x{t1_off + k*64*T1_PITCH:x}")
                a(f"buffer_store_dwordx4 {vq(O[k])}, v6, s[12:15], s29 offen")
        a(f"v_cndmask_b32 v{O[0]+1}, v{O[0]+1}, v{O[4]}, vcc")
        a(f"v_cndmask_b32 v{O[0]+3}, v{O[0]+3}, v{O[4]+2}, vcc")
        a(f"s_add_u32 s29, s28, 0x{t1_off:x}")
        a(f"buffer_store_dwordx4 {vq(O[0])}, v6, s[12:15], s29 offen")
    else:
        for k in range(5):
            a(f"s_waitcnt lgkmcnt({8-2*k})")
            a(f"v_pk_add_f32 {vp(O[k])}, {vp(Z[k])}, {vp(T[k])} neg_hi:[0,1]")
            a(f"v_pk_add_f32 {vp(O[k]+2)}, {vp(Z[k])}, {vp(T[k])} op_sel:[1,1] op_sel_hi:[0,0] neg_hi:[1,0]")
            if k < 4:
                a(f"s_add_u32 s29, s28, 0x{t1_off + k*64*T1_PITCH:x}")
                a(f"buffer_store_dwordx4 {vq(O[k])}, v6, s[12:15], s29 offen")
        a("s_mov_b64 exec, vcc")
        a(f"s_cbranch_execz {Lsk}")
        a(f"s_add_u32 s29, s28, 0x{t1_off + 4*64*T1_PITCH:x}")
        a(f"buffer_store_dwordx4 {vq(O[4])}, v6, s[12:15], s29 offen")
    a.label(Lsk)
    if fz is not None:
        a("s_mov_b64 exec, -1")
        return 106
    stamp(a, 4)
    if INSTR["on"]:
        a("s_waitcnt vmcnt(0)")
    stamp(a, 5)
    stamp_real(a, 7)
    stamp_dump(a, 12, 6, 0 if with_wt else 5)
    a("s_endpgm")
    if with_wt:
        a.label(Lwt)
        gen_wt(a)
    a.label(Lend)
    a("s_endpgm")
    return 106


def gen_wt(a, fused=False, lb0=0, R=WT_ROWS):
    nb = R * KF * 2
    nch = nb // 16
    assert nb % 16 == 0
    if not fused:
        Lnpf = a.newlabel("Lnpf")
        a(f"s_cmp_lt_u32 s2, {256 + WT_WGS}")
        a(f"s_cbranch_scc1 {Lnpf}")
        a(f"s_load_dwordx2 s[36:37], s[0:1], {KA_W1}")
        a(f"s_load_dwordx2 s[40:41], s[0:1], {KA_W2}")
        a(f"s_sub_u32 s28, s2, {256 + WT_WGS}")
        per = D * F * 2 // PF_WGS
        a(f"s_mul_i32 s29, s28, {per}")
        a("v_lshlrev_b32 v3, 4, v0")
        a("s_waitcnt lgkmcnt(0)")
        make_srd(a, 36, 36, D * F * 2)
        make_srd(a, 40, 40, D * F * 2)
        for r in range(per // 4096):
            a(f"buffer_load_dwordx4 {vq(10+8*r)}, v3, s[36:39], s29 offen")
            a(f"buffer_load_dwordx4 {vq(14+8*r)}, v3, s[40:43], s29 offen")
            a("s_add_u32 s29, s29, 4096")
        if OPT.get("pfcode", 1):
            l = a.newlabel("Lpc")
            a("s_getpc_b64 s[44:45]")
            a.label(l)
            a(f"s_sub_u32 s44, s44, {l}-code_start")
            a("s_subb_u32 s45, s45, 0")
            a("s_and_b32 s45, s45, 0xffff")
            a("s_mov_b32 s46, code_end-code_start")
            a("s_mov_b32 s47, 0x00020000")
            a("s_lshl_b32 s29, s28, 11")
            a("v_lshlrev_b32 v3, 3, v0")
            a("buffer_load_dwordx2 v[4:5], v3, s[44:47], s29 offen")
        a("s_waitcnt vmcnt(0)")
        a("s_endpgm")
        a.label(Lnpf)
    make_srd(a, 36, 24, S * KF * 2)
    make_srd(a, 40, 26, S * KF * 2)
    if fused:
        a("s_mov_b32 s28, s2")
    else:
        a("s_sub_u32 s28, s2, 256")
    Lz = a.newlabel("Lz")
    if fused:
        a(f"s_branch {Lz}")
    a("s_cmp_lg_u32 s28, 0")
    a(f"s_cbranch_scc1 {Lz}")
    a("v_cmp_gt_u32 vcc, 128, v0")
    a("s_and_saveexec_b64 s[34:35], vcc")
    a(f"s_cbranch_execz {Lz}r")
    a("v_lshlrev_b32 v3, 8, v0")
    a("v_mov_b32 v4, 0")
    a(f"s_mov_b32 s29, 0x{CNT_OFF:x}")
    a("buffer_store_dword v4, v3, s[12:15], s29 offen")
    a.label(Lz + "r")
    a("s_mov_b64 exec, s[34:35]")
    a.label(Lz)
    a(f"s_mul_i32 s29, s28, {nb}")
    a("v_lshlrev_b32 v3, 4, v0")
    nr = (nch + 255) // 256
    LB = ((nb + 4096 + 15) // 16) * 16
    for r in range(nr):
        a(f"buffer_load_dwordx4 {vq(10+8*r)}, v3, s[36:39], s29 offen offset:{0}")
        a(f"buffer_load_dwordx4 {vq(14+8*r)}, v3, s[40:43], s29 offen offset:{0}")
        a(f"s_add_u32 s29, s29, 4096")
    for r in range(nr):
        a(f"s_waitcnt vmcnt({2*(nr-1-r)})")
        a(f"ds_write_b128 v3, {vq(10+8*r)} offset:{lb0+4096*r}")
        a(f"ds_write_b128 v3, {vq(14+8*r)} offset:{lb0+LB+4096*r}")
    a("s_waitcnt lgkmcnt(0)")
    a("s_barrier")
    lr = int(math.log2(R))
    KST = 256 // R
    a(f"v_and_b32 v4, {R-1}, v0")
    a(f"v_lshrrev_b32 v5, {lr}, v0")
    a(f"v_mul_u32_u24 v6, {KF*2}, v4")
    a("v_lshl_add_u32 v6, v5, 1, v6")
    a("v_lshlrev_b32 v7, 13, v5")
    a("v_lshl_add_u32 v7, v4, 2, v7")
    a(f"s_lshl_b32 s29, s28, {lr+2}")
    a(f"s_add_u32 s29, s29, 0x{WT_OFF:x}")
    n_i = R + 1
    G = 11
    for i0 in range(0, n_i, G):
        for i in range(i0, min(i0 + G, n_i)):
            r = 10 + 2 * (i - i0)
            a(f"ds_read_u16 v{r}, v6 offset:{lb0+2*KST*i}")
            a(f"ds_read_u16 v{r+1}, v6 offset:{lb0+LB+2*KST*i}")
        a("s_waitcnt lgkmcnt(0)")
        for i in range(i0, min(i0 + G, n_i)):
            r = 10 + 2 * (i - i0)
            a(f"v_lshl_or_b32 v{r}, v{r+1}, 16, v{r}")
            if i == R:
                a(f"v_cmp_gt_u32 vcc, {R}, v0")
                a("s_and_saveexec_b64 s[34:35], vcc")
            a(f"buffer_store_dword v{r}, v7, s[12:15], s29 offen")
            a(f"s_add_u32 s29, s29, {KST*8192}")
    if fused:
        a("s_mov_b64 exec, -1")
    else:
        a("s_endpgm")
    return LB + nb + 4096


def k1_lds(with_wt):
    nb = WT_ROWS * KF * 2
    LB = ((nb + 4096 + 15) // 16) * 16
    w = LB + 5 * 4096
    return max(4 * WAVE_LDS, w if with_wt else 0)


K2_BUF = 18432


def gen_k2(a, name):
    kernel_header(a, name, "column FFT * W, inverse column FFT")
    Lend = a.newlabel("Lend")
    a(f"s_cmp_ge_u32 s2, {KF}")
    a(f"s_cbranch_scc1 {Lend}")
    stamp(a, 0)
    stamp_real(a, 6)
    a(f"s_load_dwordx2 s[6:7], s[0:1], {KA_WS}")
    make_tab_srd(a, 16, TAB2048A, 2048)
    a(f"s_mov_b32 s20, 0x{f2u(math.sqrt(0.5)):08x}")
    a("s_mov_b32 s21, s20")
    a("s_waitcnt lgkmcnt(0)")
    make_srd(a, 12, 6, WS_BYTES)
    Z = [10 + 2 * j for j in range(8)]
    T = [26 + 2 * j for j in range(8)]
    TW1, TW2, TW3 = 42, 58, 74
    WV = 90
    v1w, v1r, v2w, v2r, v3w, v3r = 98, 99, 100, 101, 102, 103
    a(f"s_mul_i32 s28, s2, {T1_PITCH}")
    a(f"s_add_u32 s28, s28, 0x{T1_OFF:x}")
    a("v_lshlrev_b32 v3, 3, v0")
    for jj in range(4):
        a(f"s_add_u32 s{36+jj}, s28, {4096*jj}")
    for j in range(8):
        a(f"buffer_load_dwordx2 {vp(Z[j])}, v3, s[12:15], s{36+(j>>1)} offen offset:{2048*(j&1)}")
    a(f"buffer_load_dwordx2 {vp(TW1+2)}, v3, s[16:19], 0 offen")
    a("v_and_b32 v5, 31, v0")
    a("v_lshlrev_b32 v5, 6, v5")
    a(f"buffer_load_dwordx2 {vp(TW2+2)}, v5, s[16:19], 0 offen")
    a("v_and_b32 v5, 3, v0")
    a("v_lshlrev_b32 v5, 9, v5")
    a(f"buffer_load_dwordx2 {vp(TW3+2)}, v5, s[16:19], 0 offen")
    a("s_lshl_b32 s29, s2, 13")
    a(f"s_add_u32 s29, s29, 0x{WT_OFF:x}")
    a("v_lshlrev_b32 v6, 2, v0")
    a("s_add_u32 s30, s29, 4096")
    for j in range(8):
        a(f"buffer_load_dword v{WV+j}, v6, s[12:15], s{29+(j>>2)} offen offset:{1024*(j&3)}")
    a(f"v_lshlrev_b32 v{v1w}, 3, v0")
    a("v_lshrrev_b32 v7, 5, v0")
    a("v_and_b32 v8, 31, v0")
    a("v_lshl_add_u32 v9, v7, 8, v8")
    a(f"v_lshlrev_b32 v{v1r}, 3, v9")
    a("v_mul_u32_u24 v9, 288, v7")
    a("v_add_u32 v8, v9, v8")
    a(f"v_lshlrev_b32 v{v2w}, 3, v8")
    a("v_bfe_u32 v8, v0, 2, 3")
    a("v_mul_u32_u24 v8, 36, v8")
    a("v_add_u32 v9, v9, v8")
    a("v_and_b32 v8, 3, v0")
    a("v_add_u32 v9, v9, v8")
    a(f"v_lshlrev_b32 v{v2r}, 3, v9")
    a("v_lshlrev_b32 v9, 2, v7")
    a("v_bfe_u32 v7, v0, 2, 2")
    a("v_add_u32 v9, v9, v7")
    a("v_bfe_u32 v7, v0, 4, 1")
    a("v_lshl_add_u32 v9, v7, 5, v9")
    a("v_mul_u32_u24 v8, 68, v8")
    a("v_add_u32 v9, v9, v8")
    a(f"v_lshlrev_b32 v{v3w}, 3, v9")
    a("v_and_b32 v7, 7, v0")
    a("v_lshlrev_b32 v9, 2, v7")
    a("v_bfe_u32 v7, v0, 3, 2")
    a("v_add_u32 v9, v9, v7")
    a("v_bfe_u32 v7, v0, 5, 1")
    a("v_lshl_add_u32 v9, v7, 5, v9")
    a("v_lshrrev_b32 v7, 6, v0")
    a("v_mul_u32_u24 v7, 272, v7")
    a("v_add_u32 v9, v9, v7")
    a(f"v_lshlrev_b32 v{v3r}, 3, v9")

    bufsel = [0]

    def fft2048(sgn, first):
        def nb():
            b = bufsel[0] * K2_BUF
            bufsel[0] ^= 1
            return b
        radix8(a, Z, T, 20, sgn)
        for k in range(1, 8):
            cmul_tw(a, Z[k], Z[k], TW1 + 2 * k, T[k], sgn)
        b = nb()
        for k in range(8):
            a(f"ds_write_b64 v{v1w}, {vp(Z[k])} offset:{b + 2048*k}")
        a("s_waitcnt lgkmcnt(0)")
        a("s_barrier")
        for j in range(8):
            a(f"ds_read_b64 {vp(Z[j])}, v{v1r} offset:{b + 256*j}")
        a("s_waitcnt lgkmcnt(0)")
        radix8(a, Z, T, 20, sgn)
        for k in range(1, 8):
            cmul_tw(a, Z[k], Z[k], TW2 + 2 * k, T[k], sgn)
        b = nb()
        for k in range(8):
            a(f"ds_write_b64 v{v2w}, {vp(Z[k])} offset:{b + 36*8*k}")
        a("s_waitcnt lgkmcnt(0)")
        a("s_barrier")
        for c in range(8):
            a(f"ds_read_b64 {vp(Z[c])}, v{v2r} offset:{b + 32*c}")
        a("s_waitcnt lgkmcnt(0)")
        radix8(a, Z, T, 20, sgn)
        for k in range(1, 8):
            cmul_tw(a, Z[k], Z[k], TW3 + 2 * k, T[k], sgn)
        b = nb()
        for k in range(8):
            a(f"ds_write_b64 v{v3w}, {vp(Z[k])} offset:{b + 272*8*k}")
        a("s_waitcnt lgkmcnt(0)")
        a("s_barrier")
        for hi in range(2):
            for n in range(4):
                a(f"ds_read_b64 {vp(Z[hi + 2*n])}, v{v3r} offset:{b + (68*n + 272*4*hi)*8}")
        a("s_waitcnt lgkmcnt(0)")
        radix4(a, [Z[0], Z[2], Z[4], Z[6]], T[0:4], sgn)
        radix4(a, [Z[1], Z[3], Z[5], Z[7]], T[4:8], sgn)

    stamp(a, 8)
    a("s_waitcnt vmcnt(8)")
    tw_powers(a, TW1, T[0])
    tw_powers(a, TW2, T[0])
    tw_powers(a, TW3, T[0])
    stamp(a, 1)
    if OPT.get("k2loop"):
        a("s_mov_b32 s50, 0")
        a.label("Lk2loop")
        a("s_cmp_eq_u32 s50, 1")
        a("s_cbranch_scc0 Lk2ns")
        stamp(a, 9)
        a.label("Lk2ns")
        bufsel[0] = 0
        fft2048(+1, True)
        a("s_barrier")
        a("s_add_u32 s50, s50, 1")
        a("s_cmp_lt_u32 s50, 2")
        a("s_cbranch_scc1 Lk2loop")
        bufsel[0] = 1
    else:
        fft2048(+1, True)
    stamp(a, 2)
    a("s_waitcnt vmcnt(0)")
    for j in range(8):
        w = T[j ^ 1]
        a(f"v_lshlrev_b32 v{w}, 16, v{WV+j}")
        a(f"v_and_b32 v{w+1}, 0xffff0000, v{WV+j}")
        cmul_tw(a, Z[j], Z[j], w, T[j], +1)
    fft2048(-1, False)
    stamp(a, 3)
    a("v_lshrrev_b32 v4, 3, v0")
    a(f"v_mul_u32_u24 v4, {T2_PITCH}, v4")
    a("v_and_b32 v5, 7, v0")
    a("v_lshl_add_u32 v4, v5, 3, v4")
    a("s_lshl_b32 s28, s2, 6")
    for j in range(8):
        a(f"s_add_u32 s29, s28, 0x{T2_OFF + 32*j*T2_PITCH:x}")
        a(f"buffer_store_dwordx2 {vp(Z[j])}, v4, s[12:15], s29 offen")
    stamp(a, 4)
    if INSTR["on"]:
        a("s_waitcnt vmcnt(0)")
    stamp(a, 5)
    stamp_real(a, 7)
    stamp_dump(a, 12, 6, 1)
    a.label(Lend)
    a("s_endpgm")
    return 104


def gen_k3(a, name, res_ka, res_off, x_out_off, fz=None, xn_off=XN_OFF, t2_off=T2_OFF):
    Lend = a.newlabel("Lend")
    if fz is None:
        kernel_header(a, name, "row irFFT + residual + LN")
        a("s_cmp_ge_u32 s2, 256")
        a(f"s_cbranch_scc1 {Lend}")
        stamp(a, 0)
        stamp_real(a, 6)
        a(f"s_load_dwordx2 s[4:5], s[0:1], {res_ka}")
        a(f"s_load_dwordx2 s[6:7], s[0:1], {KA_WS}")
        a("v_and_b32 v1, 63, v0")
        a("v_lshrrev_b32 v2, 6, v0")
        a("s_nop 0")
        a("v_readfirstlane_b32 s3, v2")
    make_tab_srd(a, 16, TAB2048A, 2048)
    a(f"s_mov_b32 s20, 0x{f2u(math.sqrt(0.5)):08x}")
    a("s_mov_b32 s21, s20")
    a(f"s_mov_b32 s22, 0x{f2u(1.0/512):08x}")
    a("s_mov_b32 s23, s22")
    a(f"s_mov_b32 s24, 0x{f2u(1.0/(2*2048*512)):08x}")
    a("s_mov_b32 s25, s24")
    a("s_waitcnt lgkmcnt(0)")
    if fz is not None:
        a(f"s_mov_b64 s[4:5], {sp(fz['ptr'](res_ka))}")
        a(f"s_mov_b64 s[6:7], {sp(fz['ptr'](KA_WS))}")
    if res_off:
        make_srd_off(a, 8, 4, res_off, S * D * 2)
    else:
        make_srd(a, 8, 4, S * D * 2)
    make_srd(a, 12, 6, WS_BYTES)
    Z = [10 + 2 * j for j in range(8)]
    T = [26 + 2 * j for j in range(8)]
    RA, RB = 42, 46
    TW1, TW2 = 50, 66
    ST = [82, 83, 84, 85]
    TMP = list(range(86, 96))
    vA_w, vA_r, vB_w, vX = 96, 97, 98, 99
    IN = [104 + 4 * q for q in range(5)]
    a("v_lshrrev_b32 v7, 2, v0")
    a("v_and_b32 v8, 3, v0")
    def spec_loads():
        a("v_lshlrev_b32 v3, 4, v0")
        a(f"s_mul_i32 s28, s2, {T2_PITCH}")
        for q in range(4):
            a(f"s_add_u32 s29, s28, 0x{t2_off + q*4096:x}")
            a(f"buffer_load_dwordx4 {vq(IN[q])}, v3, s[12:15], s29 offen")
        a("v_cmp_gt_u32 vcc, 4, v0")
        a("s_and_saveexec_b64 s[34:35], vcc")
        if not packed:
            a(f"s_add_u32 s29, s28, 0x{t2_off + 4*4096:x}")
            a(f"buffer_load_dwordx4 {vq(IN[4])}, v3, s[12:15], s29 offen")
        a("s_mov_b64 exec, s[34:35]")
    packed = fz is not None and fz.get("packed")
    polled = fz is not None and fz.get('poll')
    if polled:
        fz['poll'](a)
    else:
        spec_loads()
    a("v_lshlrev_b32 v4, 5, v1")
    a(f"buffer_load_dwordx2 {vp(TW1+2)}, v4, s[16:19], 0 offen")
    a("v_and_b32 v5, 7, v1")
    a("v_lshlrev_b32 v5, 8, v5")
    a(f"buffer_load_dwordx2 {vp(TW2+2)}, v5, s[16:19], 0 offen")
    if polled:
        a("s_barrier")
        spec_loads()
    a("s_lshl_b32 s28, s2, 13")
    a("s_lshl_b32 s29, s3, 11")
    a("s_add_u32 s28, s28, s29")
    a("v_lshlrev_b32 v6, 4, v1")
    a("v_add_u32 v6, s28, v6")
    a(f"buffer_load_dwordx4 {vq(RA)}, v6, s[8:11], 0 offen")
    a(f"buffer_load_dwordx4 {vq(RB)}, v6, s[8:11], 0 offen offset:1024")
    a(f"s_mul_i32 s30, s3, {WAVE_LDS}")
    fft512_addr(a, 1, 30, vA_w, vA_r, vB_w, TMP[0])
    a(f"v_mul_u32_u24 v8, {WAVE_LDS}, v8")
    a("v_lshl_add_u32 v9, v7, 3, v8")
    a("v_sub_u32 v7, 256, v7")
    a(f"v_lshl_add_u32 v{vX}, v7, 3, v8")
    stamp(a, 8)
    a("s_waitcnt vmcnt(2)")
    stamp(a, 1)
    tw_powers(a, TW1, T[6])
    tw_powers(a, TW2, T[6])
    a("s_mov_b64 exec, vcc")
    if packed:
        a(f"v_mov_b32 v{T[4]}, v{IN[0]+1}")
        a(f"v_mov_b32 v{T[4]+1}, v{IN[0]+3}")
        a(f"v_mov_b32 v{IN[0]+1}, 0")
        a(f"v_mov_b32 v{IN[0]+3}, 0")
    else:
        for q in (0, 4):
            a(f"v_mov_b32 v{IN[q]+1}, 0")
            a(f"v_mov_b32 v{IN[q]+3}, 0")
        a(f"v_pk_add_f32 {vp(T[4])}, {vp(IN[4])}, {vp(IN[4]+2)} op_sel:[0,1] op_sel_hi:[1,0] neg_lo:[0,1]")
    a(f"ds_write_b64 v9, {vp(T[4])} offset:2048")
    a("s_mov_b64 exec, s[34:35]")
    for q in range(4):
        a(f"v_pk_add_f32 {vp(Z[q])}, {vp(IN[q])}, {vp(IN[q]+2)} op_sel:[0,1] op_sel_hi:[1,0] neg_lo:[0,1]")
        a(f"v_pk_add_f32 {vp(T[q])}, {vp(IN[q])}, {vp(IN[q]+2)} op_sel:[0,1] op_sel_hi:[1,0] neg_hi:[1,0]")
        a(f"ds_write_b64 v9, {vp(Z[q])} offset:{512*q}")
        a(f"ds_write_b64 v{vX}, {vp(T[q])} offset:{(256-64*q)*8}")
    a("s_waitcnt lgkmcnt(0)")
    a("s_barrier")
    for j in range(8):
        a(f"ds_read_b64 {vp(Z[j])}, v{vA_w} offset:{512*j}")
    a("s_waitcnt lgkmcnt(0)")
    stamp(a, 2)
    fft512_core(a, Z, T, TW1, TW2, 20, -1, vA_w, vA_r, vB_w, vA_w)
    stamp(a, 3)
    for par in range(2):
        a(f"v_bfe_u32 v{TMP[0]}, v1, 1, 2")
        a(f"v_lshrrev_b32 v{TMP[1]}, 5, v1")
        a(f"v_add3_u32 v{TMP[0]}, v{TMP[0]}, v{TMP[1]}, {2*par}")
        a(f"v_and_b32 v{TMP[0]}, 3, v{TMP[0]}")
        a(f"v_lshlrev_b32 v{TMP[0]}, 4, v{TMP[0]}")
        a(f"v_lshrrev_b32 v{TMP[1]}, 3, v1")
        a(f"v_lshl_add_u32 v{TMP[0]}, v{TMP[1]}, 6, v{TMP[0]}")
        a(f"v_and_b32 v{TMP[1]}, 1, v1")
        a(f"v_lshl_add_u32 v{TMP[0]}, v{TMP[1]}, 3, v{TMP[0]}")
        a(f"v_add_u32 v{100+par}, s30, v{TMP[0]}")
    for j in range(8):
        a(f"ds_write_b64 v{100+(j&1)}, {vp(Z[j])} offset:{512*j}")
    a(f"v_lshrrev_b32 v{TMP[0]}, 2, v1")
    a(f"v_lshlrev_b32 v{TMP[1]}, 6, v1")
    a(f"v_add_u32 v{TMP[1]}, s30, v{TMP[1]}")
    for c in range(4):
        a(f"v_add_u32 v{TMP[2]}, {c}, v{TMP[0]}")
        a(f"v_and_b32 v{TMP[2]}, 3, v{TMP[2]}")
        a(f"v_lshlrev_b32 v{TMP[2]}, 4, v{TMP[2]}")
        a(f"v_add_u32 v{T[c]}, v{TMP[1]}, v{TMP[2]}")
    for c in range(4):
        a(f"ds_read_b128 {vq(Z[2*c])}, v{T[c]}")
    a("s_waitcnt vmcnt(0) lgkmcnt(0)")
    for j in range(8):
        a(f"v_pk_mul_f32 {vp(Z[j])}, {vp(Z[j])}, s[24:25]")
    for j in range(8):
        a(f"v_cvt_pk_bf16_f32 v{TMP[j]}, v{Z[j]}, v{Z[j]+1}")
    for j in range(8):
        a(f"v_lshlrev_b32 v{Z[j]}, 16, v{TMP[j]}")
        a(f"v_and_b32 v{Z[j]+1}, 0xffff0000, v{TMP[j]}")
    for j in range(8):
        if j & 1:
            a(f"v_and_b32 v{T[j]}, 0xffff0000, v{RA + (j >> 1)}")
            a(f"v_and_b32 v{T[j]+1}, 0xffff0000, v{RB + (j >> 1)}")
        else:
            a(f"v_lshlrev_b32 v{T[j]}, 16, v{RA + (j >> 1)}")
            a(f"v_lshlrev_b32 v{T[j]+1}, 16, v{RB + (j >> 1)}")
    for j in range(8):
        a(f"v_pk_add_f32 {vp(Z[j])}, {vp(Z[j])}, {vp(T[j])}")
    for jj in range(4):
        a(f"v_cvt_pk_bf16_f32 v{RA+jj}, v{Z[2*jj]}, v{Z[2*jj+1]}")
        a(f"v_cvt_pk_bf16_f32 v{RB+jj}, v{Z[2*jj]+1}, v{Z[2*jj+1]+1}")
    a(f"s_mov_b32 s29, 0x{x_out_off:x}")
    a(f"buffer_store_dwordx4 {vq(RA)}, v6, s[12:15], s29 offen")
    a(f"buffer_store_dwordx4 {vq(RB)}, v6, s[12:15], s29 offen offset:1024")
    for j in range(8):
        if j & 1:
            a(f"v_and_b32 v{Z[j]}, 0xffff0000, v{RA + (j >> 1)}")
            a(f"v_and_b32 v{Z[j]+1}, 0xffff0000, v{RB + (j >> 1)}")
        else:
            a(f"v_lshlrev_b32 v{Z[j]}, 16, v{RA + (j >> 1)}")
            a(f"v_lshlrev_b32 v{Z[j]+1}, 16, v{RB + (j >> 1)}")
    layernorm_pairs(a, Z, TMP, ST, 22, 44)
    O1, O2 = T[0], T[2]
    for jj in range(4):
        a(f"v_cvt_pk_bf16_f32 v{O1+jj}, v{Z[2*jj]}, v{Z[2*jj+1]}")
        a(f"v_cvt_pk_bf16_f32 v{O2+jj}, v{Z[2*jj]+1}, v{Z[2*jj+1]+1}")
    a(f"s_mov_b32 s29, 0x{xn_off:x}")
    a(f"buffer_store_dwordx4 {vq(O1)}, v6, s[12:15], s29 offen")
    a(f"buffer_store_dwordx4 {vq(O2)}, v6, s[12:15], s29 offen offset:1024")
    if fz is not None:
        return 124
    stamp(a, 4)
    if INSTR["on"]:
        a("s_waitcnt vmcnt(0)")
    stamp(a, 5)
    stamp_real(a, 7)
    stamp_dump(a, 12, 6, 2)
    a.label(Lend)
    a("s_endpgm")
    return 124
```

```python
from common import *
from fft_kernels import *
from gemm_kernels import *
from gemm1_8w import *
from chain import XN2_OFF, H2_OFF, PB, CHAIN_LDS

T1B_OFF = 0x2500000
T2B_OFF = 0x2A00000
MCNT_OFF = 0x3000000
NCNT = 384
SPW = 200


def gen_k2f(a, fz, special, t1_off, t2_off, w_early):
    make_tab_srd(a, 16, TAB2048A, 2048)
    a(f"s_mov_b32 s20, 0x{f2u(math.sqrt(0.5)):08x}")
    a("s_mov_b32 s21, s20")
    a(f"s_mov_b64 s[6:7], {sp(fz['ptr'](KA_WS))}")
    make_srd(a, 12, 6, WS_BYTES)
    Z = [10 + 2 * j for j in range(8)]
    T = [26 + 2 * j for j in range(8)]
    TW1, TW2, TW3 = 42, 58, 74
    WV = 90
    v1w, v1r, v2w, v2r, v3w, v3r = 98, 99, 100, 101, 102, 103
    a("v_lshlrev_b32 v3, 3, v0")
    a(f"buffer_load_dwordx2 {vp(TW1+2)}, v3, s[16:19], 0 offen")
    a("v_and_b32 v5, 31, v0")
    a("v_lshlrev_b32 v5, 6, v5")
    a(f"buffer_load_dwordx2 {vp(TW2+2)}, v5, s[16:19], 0 offen")
    a("v_and_b32 v5, 3, v0")
    a("v_lshlrev_b32 v5, 9, v5")
    a(f"buffer_load_dwordx2 {vp(TW3+2)}, v5, s[16:19], 0 offen")

    def w_loads():
        a("v_lshlrev_b32 v6, 2, v0")
        if not special:
            a("s_lshl_b32 s29, s95, 13")
            a(f"s_add_u32 s29, s29, 0x{WT_OFF:x}")
            a("s_add_u32 s30, s29, 4096")
            for j in range(8):
                a(f"buffer_load_dword v{WV+j}, v6, s[12:15], s{29+(j>>2)} offen offset:{1024*(j&3)}")
        else:
            for j in range(8):
                a(f"v_sub_u32 v7, {2048-256*j}, v0")
                a("v_and_b32 v7, 2047, v7")
                a("v_lshlrev_b32 v7, 2, v7")
                a(f"s_mov_b32 s29, 0x{WT_OFF + 1024*j:x}")
                a(f"buffer_load_dword v{104+4*j}, v6, s[12:15], s29 offen")
                a(f"s_mov_b32 s29, 0x{WT_OFF + 256*8192 + 1024*j:x}")
                a(f"buffer_load_dword v{105+4*j}, v6, s[12:15], s29 offen")
                a(f"s_mov_b32 s29, 0x{WT_OFF:x}")
                a(f"buffer_load_dword v{106+4*j}, v7, s[12:15], s29 offen")
                a(f"s_mov_b32 s29, 0x{WT_OFF + 256*8192:x}")
                a(f"buffer_load_dword v{107+4*j}, v7, s[12:15], s29 offen")
    def uv_compute():
        a("s_mov_b32 s22, 0.25")
        a("s_mov_b32 s23, 0.25")
        for j in range(8):
            w0, w6, m0, m6 = T[0], T[1], T[2], T[3]
            for (d, r) in ((w0, 104), (w6, 105), (m0, 106), (m6, 107)):
                a(f"v_lshlrev_b32 v{d}, 16, v{r+4*j}")
                a(f"v_and_b32 v{d+1}, 0xffff0000, v{r+4*j}")
            a(f"v_pk_add_f32 {vp(w0)}, {vp(w0)}, {vp(m0)} neg_hi:[0,1]")
            a(f"v_pk_add_f32 {vp(w6)}, {vp(w6)}, {vp(m6)} neg_hi:[0,1]")
            cadd(a, m0, w0, w6)
            csub(a, m6, w0, w6)
            a(f"v_pk_mul_f32 {vp(104+4*j)}, {vp(m0)}, s[22:23]")
            a(f"v_pk_mul_f32 {vp(106+4*j)}, {vp(m6)}, s[22:23]")
    if w_early:
        w_loads()
        if special:
            a("s_waitcnt vmcnt(0)")
            uv_compute()
    a(f"v_lshlrev_b32 v{v1w}, 3, v0")
    a("v_lshrrev_b32 v7, 5, v0")
    a("v_and_b32 v8, 31, v0")
    a("v_lshl_add_u32 v9, v7, 8, v8")
    a(f"v_lshlrev_b32 v{v1r}, 3, v9")
    a("v_mul_u32_u24 v9, 288, v7")
    a("v_add_u32 v8, v9, v8")
    a(f"v_lshlrev_b32 v{v2w}, 3, v8")
    a("v_bfe_u32 v8, v0, 2, 3")
    a("v_mul_u32_u24 v8, 36, v8")
    a("v_add_u32 v9, v9, v8")
    a("v_and_b32 v8, 3, v0")
    a("v_add_u32 v9, v9, v8")
    a(f"v_lshlrev_b32 v{v2r}, 3, v9")
    a("v_lshlrev_b32 v9, 2, v7")
    a("v_bfe_u32 v7, v0, 2, 2")
    a("v_add_u32 v9, v9, v7")
    a("v_bfe_u32 v7, v0, 4, 1")
    a("v_lshl_add_u32 v9, v7, 5, v9")
    a("v_mul_u32_u24 v8, 68, v8")
    a("v_add_u32 v9, v9, v8")
    a(f"v_lshlrev_b32 v{v3w}, 3, v9")
    a("v_and_b32 v7, 7, v0")
    a("v_lshlrev_b32 v9, 2, v7")
    a("v_bfe_u32 v7, v0, 3, 2")
    a("v_add_u32 v9, v9, v7")
    a("v_bfe_u32 v7, v0, 5, 1")
    a("v_lshl_add_u32 v9, v7, 5, v9")
    a("v_lshrrev_b32 v7, 6, v0")
    a("v_mul_u32_u24 v7, 272, v7")
    a("v_add_u32 v9, v9, v7")
    a(f"v_lshlrev_b32 v{v3r}, 3, v9")
    a("s_waitcnt vmcnt(0)") if False else None
    fz['poll'](a)
    a("s_barrier")
    a(f"s_mul_i32 s28, s95, {T1_PITCH}")
    a(f"s_add_u32 s28, s28, 0x{t1_off:x}")
    for jj in range(4):
        a(f"s_add_u32 s{36+jj}, s28, {4096*jj}")
    for j in range(8):
        a(f"buffer_load_dwordx2 {vp(Z[j])}, v3, s[12:15], s{36+(j>>1)} offen offset:{2048*(j&1)}")
    nw = 0
    if not w_early:
        w_loads()
        nw = 32 if special else 8
    nd = 8
    a(f"s_waitcnt vmcnt({nd + nw})")
    tw_powers(a, TW1, T[0])
    tw_powers(a, TW2, T[0])
    tw_powers(a, TW3, T[0])
    a(f"s_waitcnt vmcnt({nw})")
    B0, B1, B2 = 0, K2_BUF, 2 * K2_BUF

    def fft2048(sgn):
        radix8(a, Z, T, 20, sgn)
        for k in range(8):
            if k:
                cmul_tw(a, Z[k], Z[k], TW1 + 2 * k, T[k], sgn)
            a(f"ds_write_b64 v{v1w}, {vp(Z[k])} offset:{B0 + 2048*k}")
        a("s_waitcnt lgkmcnt(0)")
        a("s_barrier")
        for j in RD8:
            a(f"ds_read_b64 {vp(Z[j])}, v{v1r} offset:{B0 + 256*j}")
        radix8(a, Z, T, 20, sgn, lds_waits=True)
        for k in range(8):
            if k:
                cmul_tw(a, Z[k], Z[k], TW2 + 2 * k, T[k], sgn)
            a(f"ds_write_b64 v{v2w}, {vp(Z[k])} offset:{B2 + 36*8*k}")
        for c in RD8:
            a(f"ds_read_b64 {vp(Z[c])}, v{v2r} offset:{B2 + 32*c}")
        radix8(a, Z, T, 20, sgn, lds_waits=True)
        for k in range(8):
            if k:
                cmul_tw(a, Z[k], Z[k], TW3 + 2 * k, T[k], sgn)
            a(f"ds_write_b64 v{v3w}, {vp(Z[k])} offset:{B1 + 272*8*k}")
        a("s_waitcnt lgkmcnt(0)")
        a("s_barrier")
        for hi in range(2):
            for n in range(4):
                a(f"ds_read_b64 {vp(Z[hi + 2*n])}, v{v3r} offset:{B1 + (68*n + 272*4*hi)*8}")
        a("s_waitcnt lgkmcnt(0)")
        radix4(a, [Z[0], Z[2], Z[4], Z[6]], T[0:4], sgn)
        radix4(a, [Z[1], Z[3], Z[5], Z[7]], T[4:8], sgn)

    fft2048(+1)
    a("s_waitcnt vmcnt(0)")
    if not special:
        for j in range(8):
            w = T[j ^ 1]
            a(f"v_lshlrev_b32 v{w}, 16, v{WV+j}")
            a(f"v_and_b32 v{w+1}, 0xffff0000, v{WV+j}")
            cmul_tw(a, Z[j], Z[j], w, T[j], +1)
    else:
        B3 = B2
        for j in range(8):
            a(f"ds_write_b64 v3, {vp(Z[j])} offset:{B3 + 2048*j}")
        a("s_waitcnt lgkmcnt(0)")
        a("s_barrier")
        M = [136 + 2 * j for j in range(8)]
        for j in range(8):
            a(f"v_sub_u32 v7, {2048-256*j}, v0")
            a("v_and_b32 v7, 2047, v7")
            a("v_lshlrev_b32 v7, 3, v7")
            a(f"ds_read_b64 {vp(M[j])}, v7 offset:{B3}")
        if not w_early:
            uv_compute()
        a("s_waitcnt lgkmcnt(0)")
        for j in range(8):
            cmul_tw(a, T[4], Z[j], 104 + 4 * j, T[5], +1)
            a(f"v_xor_b32 v{M[j]+1}, 0x80000000, v{M[j]+1}")
            cmul_tw(a, T[6], M[j], 106 + 4 * j, T[7], +1)
            cadd(a, Z[j], T[4], T[6])
    fft2048(-1)
    a("v_lshrrev_b32 v4, 3, v0")
    a(f"v_mul_u32_u24 v4, {T2_PITCH}, v4")
    a("v_and_b32 v5, 7, v0")
    a("v_lshl_add_u32 v4, v5, 3, v4")
    a("s_lshl_b32 s28, s95, 6")
    for j in range(8):
        a(f"s_add_u32 s29, s28, 0x{t2_off + 32*j*T2_PITCH:x}")
        a(f"buffer_store_dwordx2 {vp(Z[j])}, v4, s[12:15], s29 offen")


def gen_mega(a, name):
    kernel_header(a, name, "whole network, one persistent launch")
    Lend = a.newlabel("Lend")
    a("s_cmp_ge_u32 s2, 256")
    a(f"s_cbranch_scc1 {Lend}")
    a(f"s_load_dwordx16 s[{PB}:{PB+15}], s[0:1], 0")
    a(f"s_load_dwordx4 s[{PB+16}:{PB+19}], s[0:1], 64")
    a(f"s_load_dwordx2 s[{PB+20}:{PB+21}], s[0:1], 80")
    a("v_and_b32 v1, 63, v0")
    a("v_lshrrev_b32 v2, 6, v0")
    a("s_nop 0")
    a("v_readfirstlane_b32 s3, v2")
    a("s_waitcnt lgkmcnt(0)")
    ptr = lambda ka: PB + ka // 4
    make_srd_off(a, 96, ptr(KA_WS), MCNT_OFF, NCNT * 256)
    a("s_mov_b32 s95, s2")
    a("s_cmp_eq_u32 s2, 0")
    a(f"s_cselect_b32 s95, {SPW}, s95")
    a(f"s_cmp_eq_u32 s2, {SPW}")
    a("s_cselect_b32 s95, 0, s95")
    inner = INSTR["on"]
    INSTR["on"] = False
    if inner:
        make_srd_off(a, 88, ptr(KA_WS), STAMP_OFF + 6 * 65536, 65536)

    def cstamp(i, real=False):
        if not inner:
            return
        L = a.newlabel("Lcs")
        a("s_cmp_lg_u32 s3, 0")
        a(f"s_cbranch_scc1 {L}")
        a("s_memrealtime s[86:87]" if real else "s_memtime s[86:87]")
        a("s_lshl_b32 s92, s2, 7")
        a("s_waitcnt lgkmcnt(0)")
        a("v_mov_b32 v158, s86")
        a(f"v_mov_b32 v159, {4*i}")
        a("buffer_store_dword v158, v159, s[88:91], s92 offen")
        a.label(L)

    def mk_poll(emit_off, target):
        def poll(a):
            Ld = a.newlabel("Lpd")
            Ll = a.newlabel("Lpl")
            a("s_cmp_lg_u32 s3, 0")
            a(f"s_cbranch_scc1 {Ld}")
            emit_off(a)
            a("v_mov_b32 v159, 0")
            a("s_mov_b32 s93, 0")
            a.label(Ll)
            a("v_mov_b32 v158, 0")
            a("s_mov_b64 exec, 1")
            a("buffer_atomic_add v158, v159, s[96:99], s92 offen sc0 sc1")
            a("s_mov_b64 exec, -1")
            a("s_waitcnt vmcnt(0)")
            a("v_readfirstlane_b32 s94, v158")
            a("s_add_u32 s93, s93, 1")
            a(f"s_cmp_ge_u32 s94, {target}")
            a(f"s_cbranch_scc1 {Ld}")
            a("s_cmp_gt_u32 s93, 0x40000")
            a(f"s_cbranch_scc1 {Ld}")
            a(f"s_sleep {OPT.get('sleep', 2)}")
            a(f"s_branch {Ll}")
            a.label(Ld)
        return poll

    def mk_poll_all(setidx):
        def off(a):
            a("s_lshr_b32 s92, s2, 4")
            a("s_lshl_b32 s92, s92, 8")
            a(f"s_add_u32 s92, s92, {(128 + 64*setidx + 16)*256}")
        return mk_poll(off, 16)

    def publish(emit_off):
        L = a.newlabel("Lpub")
        a("s_waitcnt vmcnt(0)")
        a("s_barrier")
        a("s_cmp_lg_u32 s3, 0")
        a(f"s_cbranch_scc1 {L}")
        emit_off(a)
        a("v_mov_b32 v158, 1")
        a("v_mov_b32 v159, 0")
        a("s_mov_b64 exec, 1")
        a("buffer_atomic_add v158, v159, s[96:99], s92 offen sc1")
        a("s_mov_b64 exec, -1")
        a.label(L)

    def publish_all(setidx):
        L = a.newlabel("Lpub")
        base = (128 + 64 * setidx) * 256
        a("s_waitcnt vmcnt(0)")
        a("s_barrier")
        a("s_cmp_lg_u32 s3, 0")
        a(f"s_cbranch_scc1 {L}")
        a("s_lshr_b32 s92, s2, 4")
        a("s_lshl_b32 s92, s92, 8")
        a(f"s_add_u32 s92, s92, {base}")
        a("v_mov_b32 v158, 1")
        a("v_mov_b32 v159, 0")
        a("s_mov_b64 exec, 1")
        a("buffer_atomic_add v158, v159, s[96:99], s92 offen sc0 sc1")
        a("s_waitcnt vmcnt(0)")
        a("v_readfirstlane_b32 s94, v158")
        a("s_cmp_lg_u32 s94, 15")
        a(f"s_cbranch_scc1 {L}x")
        a("s_mov_b64 exec, 0xffff")
        a("v_mov_b32 v158, 1")
        a("v_lshlrev_b32 v159, 8, v1")
        a(f"s_mov_b32 s92, {base + 16*256}")
        a("buffer_atomic_add v158, v159, s[96:99], s92 offen sc1")
        a.label(L + "x")
        a("s_mov_b64 exec, -1")
        a.label(L)

    def four_wave_phase(fn, alt=None):
        Ls = a.newlabel("Lskip")
        Lj = a.newlabel("Ljoin")
        a("s_cmp_ge_u32 s3, 4")
        a(f"s_cbranch_scc1 {Ls}")
        i0 = len(a.lines)
        fn()
        nb = sum(1 for l in a.lines[i0:] if l.strip() == "s_barrier")
        a(f"s_branch {Lj}")
        a.label(Ls)
        if alt is None:
            for _ in range(nb):
                a("s_barrier")
        else:
            alt(nb, Lj)
        a.label(Lj)

    cstamp(0)
    cstamp(30, True)

    def alt1(nb, Lj):
        assert nb == 1
        La = a.newlabel("Lalt")
        Lb = a.newlabel("Lalt")
        Lc = a.newlabel("Lalt")
        a("v_subrev_u32 v0, 256, v0")
        l = a.newlabel("Lpc")
        a("s_getpc_b64 s[48:49]")
        a.label(l)
        a(f"s_sub_u32 s48, s48, {l}-code_start")
        a("s_subb_u32 s49, s49, 0")
        a("s_and_b32 s49, s49, 0xffff")
        a("s_mov_b32 s50, code_end-code_start")
        a("s_mov_b32 s51, 0x00020000")
        a("s_lshr_b32 s29, s2, 3")
        a("s_lshl_b32 s29, s29, 12")
        a("v_lshlrev_b32 v3, 4, v0")
        a("buffer_load_dwordx4 v[80:83], v3, s[48:51], s29 offen")
        a(f"s_mov_b64 s[6:7], {sp(ptr(KA_WS))}")
        make_srd(a, 12, 6, WS_BYTES)
        make_srd(a, 44, ptr(KA_DBG), 256)
        a("s_cmp_lg_u32 s2, 255")
        a(f"s_cbranch_scc1 {Lc}")
        a("v_lshlrev_b32 v3, 8, v0")
        a("v_mov_b32 v4, 0")
        a("buffer_store_dword v4, v3, s[96:99], 0 offen")
        a("s_mov_b32 s29, 65536")
        a("buffer_store_dword v4, v3, s[96:99], s29 offen")
        a("s_waitcnt vmcnt(0)")
        a("v_mov_b32 v4, 1")
        a("v_mov_b32 v3, 0")
        a("s_mov_b64 exec, 1")
        a("buffer_atomic_add v4, v3, s[44:47], 0 offen sc1")
        a("s_mov_b64 exec, -1")
        a.label(Lc)
        a(f"s_mov_b64 s[24:25], {sp(ptr(KA_WR))}")
        a(f"s_mov_b64 s[26:27], {sp(ptr(KA_WI))}")
        gen_wt(a, fused=True, lb0=0x5000, R=8)
        Lw = a.newlabel("Lw")
        Lwl = a.newlabel("Lwl")
        a("s_cmp_lg_u32 s3, 7")
        a(f"s_cbranch_scc1 {Lw}")
        a("v_mov_b32 v3, 0")
        a("s_mov_b32 s93, 0")
        a.label(Lwl)
        a("buffer_load_dword v4, v3, s[44:47], 0 offen sc0 sc1")
        a("s_waitcnt vmcnt(0)")
        a("v_readfirstlane_b32 s94, v4")
        a("s_add_u32 s93, s93, 1")
        a("s_cmp_ge_u32 s94, 4")
        a(f"s_cbranch_scc1 {Lw}")
        a("s_cmp_gt_u32 s93, 0x40000")
        a(f"s_cbranch_scc1 {Lw}")
        a("s_sleep 8")
        a(f"s_branch {Lwl}")
        a.label(Lw)
        a("v_add_u32 v0, 256, v0")

    def alt_pf(nb, Lj):
        a("v_subrev_u32 v0, 256, v0")
        make_srd(a, 36, ptr(KA_W1), D * F * 2)
        make_srd(a, 40, ptr(KA_W2), D * F * 2)
        per = D * F * 2 // 256
        a(f"s_mul_i32 s29, s2, {per}")
        a("v_lshlrev_b32 v3, 4, v0")
        for r in range((per + 4095) // 4096):
            a(f"buffer_load_dwordx4 {vq(60+8*r)}, v3, s[36:39], s29 offen")
            a(f"buffer_load_dwordx4 {vq(64+8*r)}, v3, s[40:43], s29 offen")
            a("s_add_u32 s29, s29, 4096")
        a("v_add_u32 v0, 256, v0")
        for _ in range(nb):
            a("s_barrier")

    fz = {"ptr": ptr, "packed": True}
    four_wave_phase(lambda: gen_k1(a, None, KA_X, 0, False, fz=fz, t1_off=T1_OFF), alt1)
    cstamp(1)
    publish_all(0)

    for layer in range(2):
        t1 = T1_OFF if layer == 0 else T1B_OFF
        t2 = T2_OFF if layer == 0 else T2B_OFF
        xn_off = XN_OFF if layer == 0 else XN2_OFF
        h_off = H_OFF if layer == 0 else H2_OFF
        cb = (64 * layer) * 256
        sb = 2 + 12 * layer
        cstamp(sb)
        fz = {"ptr": ptr, "poll": mk_poll_all(2 * layer)}
        Lsp = a.newlabel("Lsp")
        Lspj = a.newlabel("Lspj")
        a(f"s_cmp_eq_u32 s2, {SPW}")
        a(f"s_cbranch_scc1 {Lsp}")
        four_wave_phase(lambda: gen_k2f(a, fz, False, t1, t2, layer == 1), alt_pf if layer == 0 else None)
        a(f"s_branch {Lspj}")
        a.label(Lsp)
        four_wave_phase(lambda: gen_k2f(a, fz, True, t1, t2, layer == 1), alt_pf if layer == 0 else None)
        a.label(Lspj)
        cstamp(sb + 1)
        publish_all(2 * layer + 1)
        cstamp(sb + 2)
        fz = {"ptr": ptr, "poll": mk_poll_all(2 * layer + 1), "packed": True}
        if layer == 0:
            four_wave_phase(lambda: gen_k3(a, None, KA_X, 0, X1_OFF, fz=fz, xn_off=xn_off, t2_off=t2))
        else:
            four_wave_phase(lambda: gen_k3(a, None, KA_WS, X2_OFF, X3_OFF, fz=fz, xn_off=xn_off, t2_off=t2))
        cstamp(sb + 3)

        def off_c3_pub(a):
            a("s_lshr_b32 s92, s2, 4")
            a("s_lshl_b32 s92, s92, 8")
            a(f"s_add_u32 s92, s92, {cb}")
        publish(off_c3_pub)
        cstamp(sb + 4)
        Lg1 = a.newlabel("Lg1skip")
        a(f"s_cmp_ge_u32 s2, {G1_WGS}")
        a(f"s_cbranch_scc1 {Lg1}")

        def off_c3_wait(a):
            a("s_lshl_b32 s92, s10, 8")
            a(f"s_add_u32 s92, s92, {cb}")
        fz = {"ptr": ptr, "poll": mk_poll(off_c3_wait, 16), "cst": lambda i: None}
        gen_g1_8w(a, None, fz=fz, xn_off=xn_off, h_off=h_off)
        cstamp(sb + 5)

        def off_c1_pub(a):
            a("s_lshl_b32 s92, s10, 8")
            a(f"s_add_u32 s92, s92, {cb + 4096}")
        publish(off_c1_pub)
        a.label(Lg1)
        cstamp(sb + 6)

        def off_c1_wait(a):
            a("s_lshr_b32 s92, s10, 1")
            a("s_lshl_b32 s92, s92, 8")
            a(f"s_add_u32 s92, s92, {cb + 4096}")
        fz = {"ptr": ptr, "poll": mk_poll(off_c1_wait, 14)}
        if layer == 0:
            four_wave_phase(lambda: gen_g2(a, None, X1_OFF, KA_WS, X2_OFF, fz=fz, h_off=h_off))
        else:
            four_wave_phase(lambda: gen_g2(a, None, X3_OFF, KA_OUT, 0, fz=fz, h_off=h_off))
        cstamp(sb + 7)
        if layer == 0:
            def off_c2_pub(a):
                a("s_lshl_b32 s92, s10, 8")
                a(f"s_add_u32 s92, s92, {cb + 8192}")
            publish(off_c2_pub)
            cstamp(sb + 8)

            def off_c2_wait(a):
                a("s_lshr_b32 s92, s2, 3")
                a("s_lshl_b32 s92, s92, 8")
                a(f"s_add_u32 s92, s92, {cb + 8192}")
            fz = {"ptr": ptr, "poll": mk_poll(off_c2_wait, 8), "packed": True}
            four_wave_phase(lambda: gen_k1(a, None, KA_WS, X2_OFF, False, fz=fz, t1_off=T1B_OFF))
            cstamp(sb + 9)
            publish_all(2)
    if inner:
        a("s_waitcnt vmcnt(0)")
    cstamp(29)
    cstamp(31, True)
    a.label(Lend)
    a("s_endpgm")
    INSTR["on"] = inner
    return 160
```

```python
from common import *
from gemm_kernels import G1_STAGE, G1_NST, G1_LDS, G1_WGS


def gen_g1_8w(a, name, fz=None, xn_off=XN_OFF, h_off=H_OFF):
    Lend = a.newlabel("Lend")
    if fz is None:
        kernel_header(a, name, "GEMM1 + bias + gelu (8 waves)")
        a(f"s_cmp_ge_u32 s2, {G1_WGS}")
        a(f"s_cbranch_scc1 {Lend}")
        stamp(a, 0)
        stamp_real(a, 6)
        a(f"s_load_dwordx4 s[4:7], s[0:1], {KA_W1}")
        a(f"s_load_dwordx2 s[8:9], s[0:1], {KA_WS}")
        a("v_and_b32 v1, 63, v0")
        a("v_lshrrev_b32 v2, 6, v0")
        a("s_nop 0")
        a("v_readfirstlane_b32 s3, v2")
    else:
        a(f"s_mov_b64 s[4:5], {sp(fz['ptr'](KA_W1))}")
        a(f"s_mov_b64 s[6:7], {sp(fz['ptr'](KA_B1))}")
        a(f"s_mov_b64 s[8:9], {sp(fz['ptr'](KA_WS))}")
    a("s_and_b32 s10, s2, 7")
    a("s_lshr_b32 s11, s2, 3")
    a("s_and_b32 s28, s11, 3")
    a("s_lshr_b32 s11, s11, 2")
    a("s_and_b32 s29, s10, 1")
    a("s_mul_i32 s29, s29, 7")
    a("s_add_u32 s11, s11, s29")
    a("s_lshr_b32 s10, s10, 1")
    a("s_lshl_b32 s10, s10, 2")
    a("s_add_u32 s10, s10, s28")
    vAd0, vAd1, vWd = 3, 4, 5
    a("v_lshrrev_b32 v6, 3, v1")
    a("v_lshlrev_b32 v6, 10, v6")
    a("v_and_b32 v7, 7, v1")
    a("v_lshrrev_b32 v8, 4, v1")
    a("v_xor_b32 v7, v7, v8")
    a(f"v_lshl_add_u32 v{vAd0}, v7, 4, v6")
    a("v_xor_b32 v7, 4, v7")
    a(f"v_lshl_add_u32 v{vAd1}, v7, 4, v6")
    a("s_lshl_b32 s28, s10, 17")
    a("s_lshl_b32 s29, s3, 14")
    a("s_add_u32 s28, s28, s29")
    a("v_and_b32 v7, 15, v1")
    a("v_lshlrev_b32 v9, 2, v8")
    a("v_xor_b32 v7, v7, v9")
    a("s_movk_i32 s30, 3584")
    a("v_mul_lo_u32 v8, v8, s30")
    a(f"v_lshl_add_u32 v{vWd}, v7, 4, v8")
    a("s_lshl_b32 s31, s11, 8")
    a(f"s_mul_i32 s29, s3, {8*3584}")
    a("s_add_u32 s31, s31, s29")
    a("s_lshl_b32 s32, s3, 11")
    a("s_waitcnt lgkmcnt(0)")
    stamp(a, 8)
    make_srd(a, 12, 4, D * F * 2)
    make_srd_off(a, 20, 8, xn_off, S * D * 2)

    scf = " sc1" if (fz is not None and OPT.get("ldsc1", 0)) else ""

    def issue_A(st):
        slot = st % G1_NST
        for q in range(2):
            a(f"s_add_u32 m0, s32, {slot*G1_STAGE + q*1024}")
            a(f"s_add_u32 s33, s28, {q*8192 + st*128}")
            a(f"buffer_load_dwordx4 v{vAd1 if q & 1 else vAd0}, s[20:23], s33 offen{scf} lds")

    NWS = OPT.get("nws", 4)

    def wbase(st):
        ws_ = st % NWS
        return ws_ * G1_STAGE + 16384 if ws_ < 4 else 131072 + (ws_ - 4) * 16384

    def issue_W(st):
        for q in range(2):
            a(f"s_add_u32 m0, s32, {wbase(st) + q*1024}")
            a(f"s_add_u32 s33, s31, {(st*64 + 4*q)*3584}")
            a(f"buffer_load_dwordx4 v{vWd}, s[12:15], s33 offen lds")

    def issue_stage(st):
        issue_A(st)
        issue_W(st)

    stamp(a, 9)
    if fz is None:
        issue_stage(0)
        issue_stage(1)
        order = [0]*4 + [1]*4
    else:
        fz['poll'](a)
        fz['cst'](9)
        order = []
        for st in range(NWS):
            issue_W(st)
            order += [st] * 2
    stamp(a, 10)
    make_srd(a, 16, 6, F * 2)
    make_srd_off(a, 24, 8, h_off, S * F * 2)
    BI = 10
    a("s_lshr_b32 s34, s3, 1")
    a("s_and_b32 s35, s3, 1")
    AA = 26
    a("v_and_b32 v6, 31, v1")
    a("v_lshlrev_b32 v6, 7, v6")
    a("s_lshl_b32 s37, s35, 13")
    a("v_add_u32 v6, s37, v6")
    a("v_lshrrev_b32 v7, 5, v1")
    a("v_bfe_u32 v8, v1, 1, 3")
    a("v_xor_b32 v7, v7, v8")
    a("v_lshl_add_u32 v6, v7, 4, v6")
    for ks in range(4):
        a(f"v_xor_b32 v{AA+ks}, {32*ks}, v6")
        a(f"v_add_u32 v{AA+4+ks}, 0x10000, v{AA+ks}")
    WA = 34
    a("v_lshrrev_b32 v6, 5, v1")
    a("v_lshlrev_b32 v6, 3, v6")
    a("v_bfe_u32 v7, v1, 2, 2")
    a("v_add_u32 v6, v6, v7")
    a("v_lshlrev_b32 v6, 8, v6")
    a("v_bfe_u32 v8, v1, 4, 1")
    a("v_lshlrev_b32 v8, 1, v8")
    a("v_bfe_u32 v9, v1, 1, 1")
    a("v_add_u32 v8, v8, v9")
    a("s_lshl_b32 s37, s34, 2")
    a("v_add_u32 v8, s37, v8")
    a("v_lshlrev_b32 v7, 2, v7")
    a("v_xor_b32 v8, v8, v7")
    a("v_lshl_add_u32 v6, v8, 4, v6")
    a("v_and_b32 v9, 1, v1")
    a("v_lshl_add_u32 v6, v9, 3, v6")
    a(f"v_add_u32 v{WA}, 16384, v6")
    a(f"v_add_u32 v{WA+1}, 0x10000, v{WA}")
    a(f"v_add_u32 v{WA+2}, 0x1c000, v{WA}")
    ACC = 64
    for i in range(32):
        a(f"v_mov_b32 v{ACC+i}, 0")
    if fz is None:
        issue_stage(2)
        issue_stage(3)
        order += [2]*4 + [3]*4
    else:
        a("s_barrier")
        for st in range(4):
            issue_A(st)
            order += [st] * 2
    a("v_lshrrev_b32 v6, 5, v1")
    a("v_lshlrev_b32 v6, 3, v6")
    a("s_lshl_b32 s36, s11, 8")
    a("s_lshl_b32 s37, s34, 6")
    a("s_add_u32 s36, s36, s37")
    for q in range(4):
        a(f"buffer_load_dwordx2 {vp(BI + 2*q)}, v6, s[16:19], s36 offen offset:{16*q}")
    order += ['b']*4
    stamp(a, 11)
    FR = [96, 108]

    def rd(st, ks, fs, which):
        slot = st % G1_NST
        s2_ = slot >> 1
        so = (slot & 1) * G1_STAGE
        f = FR[fs]
        if which[0] == 'W':
            h = which[1]
            wb = wbase(st) - 16384
            if wb >= 131072 - 16384:
                reg, wo = WA + 2, wb - (131072 - 16384)
            else:
                reg, wo = WA + (wb >> 16), wb & 0xffff
            a(f"ds_read_b64_tr_b16 {vp(f + 2*h)}, v{reg} offset:{wo + (16*ks + 4*h)*256}")
        else:
            mt = which[1]
            a(f"ds_read_b128 {vq(f + 4 + 4*mt)}, v{AA + 4*s2_ + ks} offset:{so + mt*4096}")

    RD_ORDER = [('W', 0), ('W', 1), ('A', 0), ('A', 1)]

    def mf(fs, mt):
        f = FR[fs]
        c = ACC + 16 * mt
        a(f"v_mfma_f32_32x32x16_bf16 v[{c}:{c+15}], {vq(f)}, {vq(f + 4 + 4*mt)}, v[{c}:{c+15}]")

    NSTG = D // 64

    def need(tag):
        last = max(i for i, t in enumerate(order) if t == tag)
        return len(order) - 1 - last
    stamp(a, 1)
    a(f"s_waitcnt vmcnt({need(0)})")
    a("s_barrier")
    stamp(a, 2)
    if fz is not None:
        fz['cst'](10)
    for w in RD_ORDER:
        rd(0, 0, 0, w)
    fs = 0
    steps = [(st, ks) for st in range(NSTG) for ks in range(4)]
    for i, (st, ks) in enumerate(steps):
        nxt = steps[i + 1] if i + 1 < len(steps) else None
        cross = nxt is not None and nxt[0] != st
        a("s_waitcnt lgkmcnt(1)")
        mf(fs, 0)
        if cross:
            a(f"s_waitcnt vmcnt({need(st+1)}) lgkmcnt(0)")
            a("s_barrier")
            for w in RD_ORDER:
                rd(nxt[0], nxt[1], fs ^ 1, w)
            mf(fs, 1)
            if st + 4 < NSTG:
                issue_A(st + 4)
                order.extend([st + 4] * 2)
            if st + NWS < NSTG:
                issue_W(st + NWS)
                order.extend([st + NWS] * 2)
        elif nxt is not None:
            for w in RD_ORDER[0:2]:
                rd(nxt[0], nxt[1], fs ^ 1, w)
            a("s_waitcnt lgkmcnt(2)")
            mf(fs, 1)
            for w in RD_ORDER[2:4]:
                rd(nxt[0], nxt[1], fs ^ 1, w)
        else:
            a("s_waitcnt lgkmcnt(0)")
            mf(fs, 1)
        fs ^= 1
    stamp(a, 3)
    if fz is not None:
        fz['cst'](11)
    a("s_waitcnt vmcnt(0)")
    c_k0 = 2.0 * math.sqrt(2.0 / math.pi) * math.log2(math.e)
    c_k1 = c_k0 * 0.044715
    KK0 = 38
    a(f"v_mov_b32 v{KK0}, 0x{f2u(-c_k0):08x}")
    a(f"v_mov_b32 v{KK0+1}, 0x{f2u(-c_k0):08x}")
    a(f"s_mov_b32 s42, 0x{f2u(-c_k1):08x}")
    a("s_mov_b32 s43, s42")
    a("s_mov_b32 s44, 1.0")
    a("s_mov_b32 s45, 1.0")
    BF = 96
    for e in range(4):
        for d in range(2):
            a(f"v_lshlrev_b32 v{BF + 4*e + 2*d}, 16, v{BI + 2*e + d}")
            a(f"v_and_b32 v{BF + 4*e + 2*d + 1}, 0xffff0000, v{BI + 2*e + d}")
    a("s_lshr_b32 s37, s34, 1")
    a("s_lshl_b32 s37, s37, 1")
    a("s_add_u32 s37, s37, s35")
    a("s_lshl_b32 s37, s37, 13")
    a("v_and_b32 v6, 31, v1")
    a("v_lshlrev_b32 v7, 7, v6")
    a("v_add_u32 v7, s37, v7")
    a("v_lshrrev_b32 v8, 5, v1")
    a("v_lshl_add_u32 v7, v8, 3, v7")
    a("v_and_b32 v8, 7, v1")
    a("v_lshl_add_u32 v7, v8, 4, v7")
    a("s_and_b32 s38, s34, 1")
    a("s_lshl_b32 s38, s38, 6")
    a("v_xor_b32 v7, s38, v7")
    T0 = 40
    for mt in range(2):
        c = ACC + 16 * mt
        for q in range(4):
            x = c + 4 * q
            bfr = BF + 4 * q
            t = T0 + 8 * (q & 1)
            a(f"v_cvt_pk_bf16_f32 v{t}, v{x}, v{x+1}")
            a(f"v_cvt_pk_bf16_f32 v{t+1}, v{x+2}, v{x+3}")
            a(f"v_lshlrev_b32 v{x}, 16, v{t}")
            a(f"v_and_b32 v{x+1}, 0xffff0000, v{t}")
            a(f"v_lshlrev_b32 v{x+2}, 16, v{t+1}")
            a(f"v_and_b32 v{x+3}, 0xffff0000, v{t+1}")
            a(f"v_pk_add_f32 {vp(x)}, {vp(x)}, {vp(bfr)}")
            a(f"v_pk_add_f32 {vp(x+2)}, {vp(x+2)}, {vp(bfr+2)}")
            a(f"v_cvt_pk_bf16_f32 v{t}, v{x}, v{x+1}")
            a(f"v_cvt_pk_bf16_f32 v{t+1}, v{x+2}, v{x+3}")
            a(f"v_lshlrev_b32 v{x}, 16, v{t}")
            a(f"v_and_b32 v{x+1}, 0xffff0000, v{t}")
            a(f"v_lshlrev_b32 v{x+2}, 16, v{t+1}")
            a(f"v_and_b32 v{x+3}, 0xffff0000, v{t+1}")
            a(f"v_pk_mul_f32 {vp(t)}, {vp(x)}, {vp(x)}")
            a(f"v_pk_mul_f32 {vp(t+2)}, {vp(x+2)}, {vp(x+2)}")
            a(f"v_pk_fma_f32 {vp(t)}, {vp(t)}, s[42:43], {vp(KK0)}")
            a(f"v_pk_fma_f32 {vp(t+2)}, {vp(t+2)}, s[42:43], {vp(KK0)}")
            a(f"v_pk_mul_f32 {vp(t)}, {vp(t)}, {vp(x)}")
            a(f"v_pk_mul_f32 {vp(t+2)}, {vp(t+2)}, {vp(x+2)}")
            for e in range(4):
                a(f"v_exp_f32 v{t+e}, v{t+e}")
            a(f"v_pk_add_f32 {vp(t)}, {vp(t)}, s[44:45]")
            a(f"v_pk_add_f32 {vp(t+2)}, {vp(t+2)}, s[44:45]")
            for e in range(4):
                a(f"v_rcp_f32 v{t+e}, v{t+e}")
            a(f"v_pk_mul_f32 {vp(x)}, {vp(x)}, {vp(t)}")
            a(f"v_pk_mul_f32 {vp(x+2)}, {vp(x+2)}, {vp(t+2)}")
            a(f"v_cvt_pk_bf16_f32 v{t+4}, v{x}, v{x+1}")
            a(f"v_cvt_pk_bf16_f32 v{t+5}, v{x+2}, v{x+3}")
            a(f"v_xor_b32 v{t+6}, {16*q}, v7")
            a(f"ds_write_b64 v{t+6}, {vp(t+4)} offset:{mt*4096}")
    a("v_lshlrev_b32 v6, 4, v1")
    a("s_and_b32 s38, s34, 1")
    a("s_lshl_b32 s39, s38, 12")
    a("s_add_u32 s39, s39, s37")
    a("v_add_u32 v6, s39, v6")
    a("v_lshrrev_b32 v8, 3, v1")
    a("v_and_b32 v9, 7, v1")
    a("v_xor_b32 v9, v9, v8")
    a("v_mul_lo_u32 v8, v8, s30")
    a("v_lshl_add_u32 v8, v9, 4, v8")
    a("s_lshl_b32 s38, s38, 5")
    a("s_lshl_b32 s39, s10, 7")
    a("s_add_u32 s38, s38, s39")
    a("s_lshl_b32 s39, s35, 6")
    a("s_add_u32 s38, s38, s39")
    a("s_mul_i32 s38, s38, 3584")
    a("s_lshl_b32 s39, s11, 8")
    a("s_add_u32 s38, s38, s39")
    a("s_lshr_b32 s39, s34, 1")
    a("s_lshl_b32 s39, s39, 7")
    a("s_add_u32 s38, s38, s39")
    a("s_waitcnt lgkmcnt(0)")
    a("s_barrier")
    for it in range(4):
        a(f"ds_read_b128 {vq(64+4*it)}, v6 offset:{1024*it}")
    for it in range(4):
        a(f"s_waitcnt lgkmcnt({3-it})")
        a(f"buffer_store_dwordx4 {vq(64+4*it)}, v8, s[24:27], s38 offen")
        a(f"s_add_u32 s38, s38, {8*3584}")
    if fz is not None:
        return 120
    stamp(a, 4)
    if INSTR["on"]:
        a("s_waitcnt vmcnt(0)")
    stamp(a, 5)
    stamp_real(a, 7)
    stamp_dump(a, 12, 8, 3)
    a.label(Lend)
    a("s_endpgm")
    return 120
```

```python
from common import *

G1_STAGE = 32768
G1_NST = 4
G1_LDS = G1_STAGE * G1_NST
G1_WGS = 224


def gen_g1(a, name):
    kernel_header(a, name, "GEMM1 + bias + gelu")
    Lend = a.newlabel("Lend")
    a(f"s_cmp_ge_u32 s2, {OPT.get('g1_wgs', G1_WGS)}")
    a(f"s_cbranch_scc1 {Lend}")
    stamp(a, 0)
    stamp_real(a, 6)
    a(f"s_load_dwordx4 s[4:7], s[0:1], {KA_W1}")
    a(f"s_load_dwordx2 s[8:9], s[0:1], {KA_WS}")
    a("v_and_b32 v1, 63, v0")
    a("v_lshrrev_b32 v2, 6, v0")
    a("s_nop 0")
    a("v_readfirstlane_b32 s3, v2")
    if OPT.get("g1_map", 1) == 0:
        a("s_and_b32 s10, s2, 7")
        a("s_lshr_b32 s11, s2, 3")
        a("s_and_b32 s28, s11, 1")
        a("s_lshl_b32 s10, s10, 1")
        a("s_add_u32 s10, s10, s28")
        a("s_lshr_b32 s11, s11, 1")
    else:
        a("s_and_b32 s10, s2, 7")
        a("s_lshr_b32 s11, s2, 3")
        a("s_and_b32 s28, s11, 3")
        a("s_lshr_b32 s11, s11, 2")
        a("s_and_b32 s29, s10, 1")
        a("s_mul_i32 s29, s29, 7")
        a("s_add_u32 s11, s11, s29")
        a("s_lshr_b32 s10, s10, 1")
        a("s_lshl_b32 s10, s10, 2")
        a("s_add_u32 s10, s10, s28")
    a("s_waitcnt lgkmcnt(0)")
    stamp(a, 8)
    make_srd(a, 12, 4, D * F * 2)
    make_srd(a, 16, 6, F * 2)
    make_srd_off(a, 20, 8, XN_OFF, S * D * 2)
    make_srd_off(a, 24, 8, H_OFF, S * F * 2)
    vAd0, vAd1, vWd = 3, 4, 5
    a("v_lshrrev_b32 v6, 3, v1")
    a("v_lshlrev_b32 v6, 10, v6")
    a("v_and_b32 v7, 7, v1")
    a("v_lshrrev_b32 v8, 4, v1")
    a("v_xor_b32 v7, v7, v8")
    a(f"v_lshl_add_u32 v{vAd0}, v7, 4, v6")
    a("v_xor_b32 v7, 4, v7")
    a(f"v_lshl_add_u32 v{vAd1}, v7, 4, v6")
    a("s_lshl_b32 s28, s10, 17")
    a("s_lshl_b32 s29, s3, 15")
    a("s_add_u32 s28, s28, s29")
    a("v_lshrrev_b32 v8, 4, v1")
    a("v_and_b32 v7, 15, v1")
    a("v_lshlrev_b32 v9, 2, v8")
    a("v_xor_b32 v7, v7, v9")
    a("s_movk_i32 s30, 3584")
    a("v_mul_lo_u32 v8, v8, s30")
    a(f"v_lshl_add_u32 v{vWd}, v7, 4, v8")
    a("s_lshl_b32 s31, s11, 8")
    a(f"s_mul_i32 s29, s3, {16*3584}")
    a("s_add_u32 s31, s31, s29")
    a("s_lshl_b32 s32, s3, 12")

    def issue_stage(st):
        slot = st % G1_NST
        for q in range(4):
            a(f"s_add_u32 m0, s32, {slot*G1_STAGE + q*1024}")
            a(f"s_add_u32 s33, s28, {q*8192 + st*128}")
            a(f"buffer_load_dwordx4 v{vAd1 if q & 1 else vAd0}, s[20:23], s33 offen lds")
        for q in range(4):
            a(f"s_add_u32 m0, s32, {slot*G1_STAGE + 16384 + q*1024}")
            a(f"s_add_u32 s33, s31, {(st*64 + 4*q)*3584}")
            a(f"buffer_load_dwordx4 v{vWd}, s[12:15], s33 offen lds")

    stamp(a, 9)
    if OPT.get("g1_mode") == "regonly":
        for st in range(8):
            for q in range(4):
                a(f"s_add_u32 s33, s28, {q*8192 + st*128}")
                a(f"buffer_load_dwordx4 {vq(32 + 4*((8*st+q) % 30))}, v{vAd1 if q & 1 else vAd0}, s[20:23], s33 offen")
            for q in range(4):
                a(f"s_add_u32 s33, s31, {(st*64 + 4*q)*3584}")
                a(f"buffer_load_dwordx4 {vq(32 + 4*((8*st+4+q) % 30))}, v{vWd}, s[12:15], s33 offen")
            if st == 3:
                stamp(a, 10)
        stamp(a, 1)
        a("s_waitcnt vmcnt(0)")
        for i in (2, 3, 4, 5, 11):
            stamp(a, i)
        stamp_real(a, 7)
        stamp_dump(a, 12, 8, 3)
        a.label(Lend)
        a("s_endpgm")
        return 160
    if OPT.get("g1_mode") == "dmaonly":
        for st in range(8):
            issue_stage(st)
            if st == 3:
                stamp(a, 10)
        stamp(a, 1)
        a("s_waitcnt vmcnt(0)")
        for i in (2, 3, 4, 5, 11):
            stamp(a, i)
        stamp_real(a, 7)
        stamp_dump(a, 12, 8, 3)
        a.label(Lend)
        a("s_endpgm")
        return 160
    issue_stage(0)
    issue_stage(1)
    stamp(a, 10)
    order = [0]*8 + [1]*8
    BI = 10
    a("s_lshr_b32 s34, s3, 1")
    a("s_and_b32 s35, s3, 1")
    AA = 26
    a("v_and_b32 v6, 31, v1")
    a("v_lshlrev_b32 v6, 7, v6")
    a("s_lshl_b32 s37, s35, 13")
    a("v_add_u32 v6, s37, v6")
    a("v_lshrrev_b32 v7, 5, v1")
    a("v_bfe_u32 v8, v1, 1, 3")
    a("v_xor_b32 v7, v7, v8")
    a("v_lshl_add_u32 v6, v7, 4, v6")
    for ks in range(4):
        a(f"v_xor_b32 v{AA+ks}, {32*ks}, v6")
        a(f"v_add_u32 v{AA+4+ks}, 0x10000, v{AA+ks}")
    WA = 34
    a("v_lshrrev_b32 v6, 5, v1")
    a("v_lshlrev_b32 v6, 3, v6")
    a("v_bfe_u32 v7, v1, 2, 2")
    a("v_add_u32 v6, v6, v7")
    a("v_lshlrev_b32 v6, 8, v6")
    a("v_bfe_u32 v8, v1, 4, 1")
    a("v_lshlrev_b32 v8, 1, v8")
    a("v_bfe_u32 v9, v1, 1, 1")
    a("v_add_u32 v8, v8, v9")
    a("s_lshl_b32 s37, s34, 3")
    a("v_add_u32 v8, s37, v8")
    a("v_lshlrev_b32 v7, 2, v7")
    a("v_xor_b32 v8, v8, v7")
    a("v_lshl_add_u32 v6, v8, 4, v6")
    a("v_and_b32 v9, 1, v1")
    a("v_lshl_add_u32 v6, v9, 3, v6")
    a(f"v_add_u32 v{WA}, 16384, v6")
    a(f"v_xor_b32 v{WA+1}, 64, v{WA}")
    a(f"v_add_u32 v{WA+2}, 0x10000, v{WA}")
    a(f"v_add_u32 v{WA+3}, 0x10000, v{WA+1}")
    ACC = 64
    for i in range(64):
        a(f"v_mov_b32 v{ACC+i}, 0")
    issue_stage(2)
    issue_stage(3)
    order += [2]*8 + [3]*8
    a("v_lshrrev_b32 v6, 5, v1")
    a("v_lshlrev_b32 v6, 3, v6")
    a("s_lshl_b32 s36, s11, 8")
    a("s_lshl_b32 s37, s34, 7")
    a("s_add_u32 s36, s36, s37")
    for nt in range(2):
        for q in range(4):
            a(f"buffer_load_dwordx2 {vp(BI + 2*(4*nt+q))}, v6, s[16:19], s36 offen offset:{64*nt + 16*q}")
    order += ['b']*8
    stamp(a, 11)
    FR = [128, 144]

    def rd(st, ks, fs, which):
        slot = st % G1_NST
        s2_ = slot >> 1
        so = (slot & 1) * G1_STAGE
        f = FR[fs]
        if which[0] == 'W':
            nt, h = which[1], which[2]
            a(f"ds_read_b64_tr_b16 {vp(f + 4*nt + 2*h)}, v{WA + 2*s2_ + nt} offset:{so + (16*ks + 4*h)*256}")
        else:
            mt = which[1]
            a(f"ds_read_b128 {vq(f + 8 + 4*mt)}, v{AA + 4*s2_ + ks} offset:{so + mt*4096}")

    RD_ORDER = [('W', 0, 0), ('W', 0, 1), ('A', 0), ('A', 1), ('W', 1, 0), ('W', 1, 1)]

    def mf(fs, nt, mt):
        f = FR[fs]
        c = ACC + 16 * (2 * nt + mt)
        a(f"v_mfma_f32_32x32x16_bf16 v[{c}:{c+15}], {vq(f + 4*nt)}, {vq(f + 8 + 4*mt)}, v[{c}:{c+15}]")

    NSTG = D // 64

    def need(tag):
        last = max(i for i, t in enumerate(order) if t == tag)
        return len(order) - 1 - last
    stamp(a, 1)
    a(f"s_waitcnt vmcnt({need(0)})")
    a("s_barrier")
    stamp(a, 2)
    for w in RD_ORDER:
        rd(0, 0, 0, w)
    fs = 0
    steps = [(st, ks) for st in range(NSTG) for ks in range(4)]
    for i, (st, ks) in enumerate(steps):
        nxt = steps[i + 1] if i + 1 < len(steps) else None
        cross = nxt is not None and nxt[0] != st
        a("s_waitcnt lgkmcnt(3)")
        mf(fs, 0, 0)
        if cross:
            a("s_waitcnt lgkmcnt(2)")
            mf(fs, 0, 1)
            a(f"s_waitcnt vmcnt({need(st+1)}) lgkmcnt(0)")
            a("s_barrier")
            for w in RD_ORDER[0:4]:
                rd(nxt[0], nxt[1], fs ^ 1, w)
            mf(fs, 1, 0)
            for w in RD_ORDER[4:6]:
                rd(nxt[0], nxt[1], fs ^ 1, w)
            mf(fs, 1, 1)
            if st + 4 < NSTG:
                issue_stage(st + 4)
                order.extend([st + 4] * 8)
        elif nxt is not None:
            for w in RD_ORDER[0:2]:
                rd(nxt[0], nxt[1], fs ^ 1, w)
            a("s_waitcnt lgkmcnt(4)")
            mf(fs, 0, 1)
            for w in RD_ORDER[2:4]:
                rd(nxt[0], nxt[1], fs ^ 1, w)
            a("s_waitcnt lgkmcnt(4)")
            mf(fs, 1, 0)
            for w in RD_ORDER[4:6]:
                rd(nxt[0], nxt[1], fs ^ 1, w)
            mf(fs, 1, 1)
        else:
            a("s_waitcnt lgkmcnt(2)")
            mf(fs, 0, 1)
            a("s_waitcnt lgkmcnt(0)")
            mf(fs, 1, 0)
            mf(fs, 1, 1)
        fs ^= 1
    stamp(a, 3)
    a("s_waitcnt vmcnt(0)")
    c_k0 = 2.0 * math.sqrt(2.0 / math.pi) * math.log2(math.e)
    c_k1 = c_k0 * 0.044715
    a(f"s_mov_b32 s40, 0x{f2u(-c_k0):08x}")
    a("s_mov_b32 s41, s40")
    a(f"s_mov_b32 s42, 0x{f2u(-c_k1):08x}")
    a("s_mov_b32 s43, s42")
    a("s_mov_b32 s44, 1.0")
    a("s_mov_b32 s45, 1.0")
    BF = 128
    for e in range(8):
        for d in range(2):
            a(f"v_lshlrev_b32 v{BF + 4*e + 2*d}, 16, v{BI + 2*e + d}")
            a(f"v_and_b32 v{BF + 4*e + 2*d + 1}, 0xffff0000, v{BI + 2*e + d}")
    a("s_lshl_b32 s37, s3, 13")
    a("v_and_b32 v6, 31, v1")
    a("v_lshlrev_b32 v7, 7, v6")
    a("v_add_u32 v7, s37, v7")
    a("v_lshrrev_b32 v8, 5, v1")
    a("v_lshl_add_u32 v7, v8, 3, v7")
    a("v_and_b32 v8, 7, v1")
    a("v_lshl_add_u32 v7, v8, 4, v7")
    T0 = 26
    for nt in range(2):
        for mt in range(2):
            c = ACC + 16 * (2 * nt + mt)
            for q in range(4):
                x = c + 4 * q
                bfr = BF + 4 * (4 * nt + q)
                t = T0 + 8 * (q & 1)
                a(f"v_cvt_pk_bf16_f32 v{t}, v{x}, v{x+1}")
                a(f"v_cvt_pk_bf16_f32 v{t+1}, v{x+2}, v{x+3}")
                a(f"v_lshlrev_b32 v{x}, 16, v{t}")
                a(f"v_and_b32 v{x+1}, 0xffff0000, v{t}")
                a(f"v_lshlrev_b32 v{x+2}, 16, v{t+1}")
                a(f"v_and_b32 v{x+3}, 0xffff0000, v{t+1}")
                a(f"v_pk_add_f32 {vp(x)}, {vp(x)}, {vp(bfr)}")
                a(f"v_pk_add_f32 {vp(x+2)}, {vp(x+2)}, {vp(bfr+2)}")
                a(f"v_cvt_pk_bf16_f32 v{t}, v{x}, v{x+1}")
                a(f"v_cvt_pk_bf16_f32 v{t+1}, v{x+2}, v{x+3}")
                a(f"v_lshlrev_b32 v{x}, 16, v{t}")
                a(f"v_and_b32 v{x+1}, 0xffff0000, v{t}")
                a(f"v_lshlrev_b32 v{x+2}, 16, v{t+1}")
                a(f"v_and_b32 v{x+3}, 0xffff0000, v{t+1}")
                a(f"v_pk_mul_f32 {vp(t)}, {vp(x)}, {vp(x)}")
                a(f"v_pk_mul_f32 {vp(t+2)}, {vp(x+2)}, {vp(x+2)}")
                a(f"v_pk_mul_f32 {vp(t)}, {vp(t)}, s[42:43]")
                a(f"v_pk_mul_f32 {vp(t+2)}, {vp(t+2)}, s[42:43]")
                a(f"v_pk_add_f32 {vp(t)}, {vp(t)}, s[40:41]")
                a(f"v_pk_add_f32 {vp(t+2)}, {vp(t+2)}, s[40:41]")
                a(f"v_pk_mul_f32 {vp(t)}, {vp(t)}, {vp(x)}")
                a(f"v_pk_mul_f32 {vp(t+2)}, {vp(t+2)}, {vp(x+2)}")
                for e in range(4):
                    a(f"v_exp_f32 v{t+e}, v{t+e}")
                a(f"v_pk_add_f32 {vp(t)}, {vp(t)}, s[44:45]")
                a(f"v_pk_add_f32 {vp(t+2)}, {vp(t+2)}, s[44:45]")
                for e in range(4):
                    a(f"v_rcp_f32 v{t+e}, v{t+e}")
                a(f"v_pk_mul_f32 {vp(x)}, {vp(x)}, {vp(t)}")
                a(f"v_pk_mul_f32 {vp(x+2)}, {vp(x+2)}, {vp(t+2)}")
                a(f"v_cvt_pk_bf16_f32 v{t+4}, v{x}, v{x+1}")
                a(f"v_cvt_pk_bf16_f32 v{t+5}, v{x+2}, v{x+3}")
                a(f"v_xor_b32 v{t+6}, {16*(4*nt+q)}, v7")
                a(f"ds_write_b64 v{t+6}, {vp(t+4)} offset:{mt*4096}")
    a("v_lshlrev_b32 v6, 4, v1")
    a("v_add_u32 v6, s37, v6")
    a("v_lshrrev_b32 v8, 3, v1")
    a("v_and_b32 v9, 7, v1")
    a("v_xor_b32 v9, v9, v8")
    a("s_movk_i32 s30, 3584")
    a("v_mul_lo_u32 v8, v8, s30")
    a("v_lshl_add_u32 v8, v9, 4, v8")
    a("s_lshl_b32 s38, s10, 7")
    a("s_lshl_b32 s39, s35, 6")
    a("s_add_u32 s38, s38, s39")
    a("s_mul_i32 s38, s38, 3584")
    a("s_add_u32 s38, s38, s36")
    a("s_waitcnt lgkmcnt(0)")
    for it in range(8):
        a(f"ds_read_b128 {vq(64+4*it)}, v6 offset:{1024*it}")
    for it in range(8):
        a(f"s_waitcnt lgkmcnt({7-it})")
        a(f"buffer_store_dwordx4 {vq(64+4*it)}, v8, s[24:27], s38 offen")
        a(f"s_add_u32 s38, s38, {8*3584}")
    stamp(a, 4)
    a("s_waitcnt vmcnt(0)")
    stamp(a, 5)
    stamp_real(a, 7)
    stamp_dump(a, 12, 8, 3)
    a.label(Lend)
    a("s_endpgm")
    return 160


G2_STAGE = 8192
G2_NST = 5
G2_LDS = G2_STAGE * G2_NST * 4


def gen_g2(a, name, res_off, out_ka, out_off, fz=None, h_off=H_OFF):
    Lend = a.newlabel("Lend")
    if fz is None:
        kernel_header(a, name, "GEMM2 + bias + residual")
        a("s_cmp_ge_u32 s2, 256")
        a(f"s_cbranch_scc1 {Lend}")
        stamp(a, 0)
        stamp_real(a, 6)
        a(f"s_load_dwordx4 s[4:7], s[0:1], {KA_W2}")
        a(f"s_load_dwordx2 s[8:9], s[0:1], {KA_WS}")
        a(f"s_load_dwordx2 s[40:41], s[0:1], {out_ka}")
        a("v_and_b32 v1, 63, v0")
        a("v_lshrrev_b32 v2, 6, v0")
        a("s_nop 0")
        a("v_readfirstlane_b32 s3, v2")
    else:
        a(f"s_mov_b64 s[4:5], {sp(fz['ptr'](KA_W2))}")
        a(f"s_mov_b64 s[6:7], {sp(fz['ptr'](KA_B2))}")
        a(f"s_mov_b64 s[8:9], {sp(fz['ptr'](KA_WS))}")
        a(f"s_mov_b64 s[40:41], {sp(fz['ptr'](out_ka))}")
    a("s_and_b32 s10, s2, 7")
    a("s_lshr_b32 s11, s2, 3")
    a("s_and_b32 s28, s11, 3")
    a("s_lshl_b32 s10, s10, 2")
    a("s_add_u32 s10, s10, s28")
    a("s_lshr_b32 s11, s11, 2")
    a("s_waitcnt lgkmcnt(0)")
    make_srd(a, 12, 4, F * D * 2)
    make_srd(a, 16, 6, D * 2)
    make_srd_off(a, 20, 8, h_off, S * F * 2)
    make_srd_off(a, 24, 8, res_off, S * D * 2)
    if out_off:
        make_srd_off(a, 44, 40, out_off, S * D * 2)
    else:
        make_srd(a, 44, 40, S * D * 2)
    vHd0, vHd1, vWd = 3, 4, 5
    a("v_lshrrev_b32 v6, 3, v1")
    a("s_movk_i32 s30, 3584")
    a("v_mul_lo_u32 v6, v6, s30")
    a("v_and_b32 v7, 7, v1")
    a("v_lshrrev_b32 v8, 4, v1")
    a("v_xor_b32 v7, v7, v8")
    a(f"v_lshl_add_u32 v{vHd0}, v7, 4, v6")
    a("v_xor_b32 v7, 4, v7")
    a(f"v_lshl_add_u32 v{vHd1}, v7, 4, v6")
    a("s_lshl_b32 s28, s10, 6")
    a("s_mul_i32 s28, s28, 3584")
    a("s_mul_i32 s29, s3, 896")
    a("s_add_u32 s28, s28, s29")
    a("v_lshrrev_b32 v6, 3, v1")
    a("v_lshlrev_b32 v6, 10, v6")
    a("v_and_b32 v7, 7, v1")
    a("v_bfe_u32 v8, v1, 4, 1")
    a("v_lshlrev_b32 v8, 2, v8")
    a("v_xor_b32 v7, v7, v8")
    a(f"v_lshl_add_u32 v{vWd}, v7, 4, v6")
    a(f"s_mul_i32 s31, s3, {448*1024}")
    a("s_lshl_b32 s29, s11, 7")
    a("s_add_u32 s31, s31, s29")
    a(f"s_mul_i32 s32, s3, {G2_STAGE*G2_NST}")
    NSTG = 448 // 64
    NU = 2 * NSTG

    scf = " sc1" if (fz is not None and OPT.get("ldsc1", 0)) else ""
    order = []

    def need(u):
        last = max(i for i, t in enumerate(order) if 0 <= t <= u)
        return len(order) - 1 - last

    def uslot(u):
        st = u >> 1
        return u % G2_NST

    def issue_unit(u):
        order.extend([u] * 8)
        slot = uslot(u)
        st = u >> 1
        for q in range(8):
            a(f"s_add_u32 m0, s32, {slot*G2_STAGE + q*1024}")
            if u & 1 == 0:
                a(f"s_add_u32 s33, s28, {q*8*3584 + st*128}")
                a(f"buffer_load_dwordx4 v{vHd1 if q & 1 else vHd0}, s[20:23], s33 offen{scf} lds")
            else:
                a(f"s_add_u32 s33, s31, {(st*64 + 8*q)*1024}")
                a(f"buffer_load_dwordx4 v{vWd}, s[12:15], s33 offen lds")

    if fz is None:
        for u in range(2):
            issue_unit(u)
    else:
        fz['poll'](a)
        for u in (1, 3):
            issue_unit(u)
    HA = 10
    a("v_and_b32 v6, 31, v1")
    a("v_lshlrev_b32 v6, 7, v6")
    a("v_add_u32 v6, s32, v6")
    a("v_lshrrev_b32 v7, 5, v1")
    a("v_bfe_u32 v8, v1, 1, 3")
    a("v_xor_b32 v7, v7, v8")
    a("v_lshl_add_u32 v6, v7, 4, v6")
    for ks in range(4):
        a(f"v_xor_b32 v{HA+ks}, {32*ks}, v6")
    WA = 14
    a("v_lshrrev_b32 v6, 5, v1")
    a("v_lshlrev_b32 v6, 3, v6")
    a("v_bfe_u32 v7, v1, 2, 2")
    a("v_add_u32 v6, v6, v7")
    a("v_lshlrev_b32 v6, 7, v6")
    a("v_bfe_u32 v8, v1, 4, 1")
    a("v_lshlrev_b32 v8, 1, v8")
    a("v_bfe_u32 v9, v1, 1, 1")
    a("v_add_u32 v8, v8, v9")
    a("v_bfe_u32 v7, v1, 3, 1")
    a("v_lshlrev_b32 v7, 2, v7")
    a("v_xor_b32 v8, v8, v7")
    a("v_lshl_add_u32 v6, v8, 4, v6")
    a("v_and_b32 v9, 1, v1")
    a("v_lshl_add_u32 v6, v9, 3, v6")
    a(f"v_add_u32 v{WA}, s32, v6")
    a(f"v_xor_b32 v{WA+1}, 64, v{WA}")
    ACC = 64
    for i in range(64):
        a(f"v_mov_b32 v{ACC+i}, 0")
    FR = [128, 144]
    def res_loads():
        a("v_lshrrev_b32 v28, 3, v1")
        a("v_lshlrev_b32 v28, 10, v28")
        a("v_and_b32 v29, 7, v1")
        a("v_lshl_add_u32 v28, v29, 4, v28")
        a("s_lshl_b32 s34, s10, 16")
        a("s_lshl_b32 s35, s3, 14")
        a("s_add_u32 s34, s34, s35")
        a("s_lshl_b32 s35, s11, 7")
        a("s_add_u32 s34, s34, s35")
        a(f"buffer_load_dwordx4 v[16:19], v28, s[24:27], s34 offen{scf}")
        a(f"s_add_u32 s36, s34, 8192")
        a(f"buffer_load_dwordx4 v[20:23], v28, s[24:27], s36 offen{scf}")
        a("v_lshlrev_b32 v30, 4, v29")
        a(f"buffer_load_dwordx4 v[24:27], v30, s[16:19], s35 offen")
        order.extend([-1] * 3)

    if fz is None:
        for u in range(2, G2_NST):
            issue_unit(u)
        res_loads()
    else:
        a("s_barrier")
        for u in (0, 2, 4):
            issue_unit(u)
        res_loads()

    def rd(st, ks, fs, which):
        f = FR[fs]
        if which[0] == 'W':
            so = uslot(2 * st + 1) * G2_STAGE
            nt, h = which[1], which[2]
            a(f"ds_read_b64_tr_b16 {vp(f + 4*nt + 2*h)}, v{WA + nt} offset:{so + (16*ks + 4*h)*128}")
        else:
            so = uslot(2 * st) * G2_STAGE
            mt = which[1]
            a(f"ds_read_b128 {vq(f + 8 + 4*mt)}, v{HA + ks} offset:{so + mt*4096}")

    RD_ORDER = [('W', 0, 0), ('W', 0, 1), ('A', 0), ('A', 1), ('W', 1, 0), ('W', 1, 1)]

    def mf(fs, nt, mt):
        f = FR[fs]
        c = ACC + 16 * (2 * nt + mt)
        a(f"v_mfma_f32_32x32x16_bf16 v[{c}:{c+15}], {vq(f + 4*nt)}, {vq(f + 8 + 4*mt)}, v[{c}:{c+15}]")

    stamp(a, 1)
    a(f"s_waitcnt vmcnt({need(1)})")
    stamp(a, 2)
    for w in RD_ORDER:
        rd(0, 0, 0, w)
    fs = 0
    steps = [(st, ks) for st in range(NSTG) for ks in range(4)]
    for i, (st, ks) in enumerate(steps):
        nxt = steps[i + 1] if i + 1 < len(steps) else None
        cross = nxt is not None and nxt[0] != st
        a("s_waitcnt lgkmcnt(3)")
        mf(fs, 0, 0)
        if cross:
            a("s_waitcnt lgkmcnt(2)")
            mf(fs, 0, 1)
            a(f"s_waitcnt vmcnt({need(2*st+3)}) lgkmcnt(0)")
            for w in RD_ORDER[0:4]:
                rd(nxt[0], nxt[1], fs ^ 1, w)
            mf(fs, 1, 0)
            for w in RD_ORDER[4:6]:
                rd(nxt[0], nxt[1], fs ^ 1, w)
            mf(fs, 1, 1)
            for u in (2 * st + 5, 2 * st + 6):
                if u < NU:
                    issue_unit(u)
        elif nxt is not None:
            for w in RD_ORDER[0:2]:
                rd(nxt[0], nxt[1], fs ^ 1, w)
            a("s_waitcnt lgkmcnt(4)")
            mf(fs, 0, 1)
            for w in RD_ORDER[2:4]:
                rd(nxt[0], nxt[1], fs ^ 1, w)
            a("s_waitcnt lgkmcnt(4)")
            mf(fs, 1, 0)
            for w in RD_ORDER[4:6]:
                rd(nxt[0], nxt[1], fs ^ 1, w)
            mf(fs, 1, 1)
        else:
            a("s_waitcnt lgkmcnt(2)")
            mf(fs, 0, 1)
            a("s_waitcnt lgkmcnt(0)")
            mf(fs, 1, 0)
            mf(fs, 1, 1)
        fs ^= 1
    stamp(a, 3)
    RS = 272
    PT = 64 * RS
    a("v_mov_b32 v6, v28")
    a("v_and_b32 v7, 7, v1")
    a("s_barrier")
    a(f"s_mul_i32 s37, s3, {PT}")
    a("v_and_b32 v9, 31, v1")
    a(f"v_mul_u32_u24 v9, {RS}, v9")
    a("v_lshrrev_b32 v10, 5, v1")
    a("v_lshl_add_u32 v9, v10, 4, v9")
    a("v_add_u32 v9, s37, v9")
    a("s_nop 7")
    for nt in range(2):
        for mt in range(2):
            c = ACC + 16 * (2 * nt + mt)
            for q in range(4):
                a(f"ds_write_b128 v9, {vq(c+4*q)} offset:{mt*32*RS + (32*nt + 8*q)*4}")
    a("s_waitcnt lgkmcnt(0)")
    a("s_barrier")
    a("v_lshrrev_b32 v9, 3, v1")
    a(f"v_mul_u32_u24 v9, {RS}, v9")
    a("v_lshl_add_u32 v9, v7, 5, v9")
    a(f"s_mul_i32 s37, s3, {16*RS}")
    a("v_add_u32 v9, s37, v9")
    for it in range(2):
        for p in range(4):
            for hh in range(2):
                a(f"ds_read_b128 {vq(64 + 32*it + 8*p + 4*hh)}, v9 offset:{p*PT + it*8*RS + hh*16}")
    a("s_waitcnt vmcnt(0)")
    for d in range(4):
        a(f"v_lshlrev_b32 v{28+2*d}, 16, v{24+d}")
        a(f"v_and_b32 v{29+2*d}, 0xffff0000, v{24+d}")
    a("s_waitcnt lgkmcnt(0)")
    for it in range(2):
        b = 64 + 32 * it
        for e in range(4):
            a(f"v_pk_add_f32 {vp(b+2*e)}, {vp(b+2*e)}, {vp(b+8+2*e)}")
            a(f"v_pk_add_f32 {vp(b+16+2*e)}, {vp(b+16+2*e)}, {vp(b+24+2*e)}")
        for e in range(4):
            a(f"v_pk_add_f32 {vp(b+2*e)}, {vp(b+2*e)}, {vp(b+16+2*e)}")
        for e in range(4):
            round_pair(a, b + 2 * e, 36 + e)
        for e in range(4):
            a(f"v_pk_add_f32 {vp(b+2*e)}, {vp(b+2*e)}, {vp(28+2*e)}")
        for e in range(4):
            round_pair(a, b + 2 * e, 36 + e)
        for e in range(4):
            a(f"v_lshlrev_b32 v{b+8+2*e}, 16, v{16+4*it+e}")
            a(f"v_and_b32 v{b+9+2*e}, 0xffff0000, v{16+4*it+e}")
        for e in range(4):
            a(f"v_pk_add_f32 {vp(b+2*e)}, {vp(b+2*e)}, {vp(b+8+2*e)}")
        for e in range(4):
            a(f"v_cvt_pk_bf16_f32 v{40+4*it+e}, v{b+2*e}, v{b+2*e+1}")
    a(f"buffer_store_dwordx4 v[40:43], v6, s[44:47], s34 offen")
    a(f"buffer_store_dwordx4 v[44:47], v6, s[44:47], s36 offen")
    if fz is not None:
        return 160
    stamp(a, 4)
    a("s_waitcnt vmcnt(0)")
    stamp(a, 5)
    stamp_real(a, 7)
    stamp_dump(a, 8, 8, 4)
    a.label(Lend)
    a("s_endpgm")
    return 160
```
